```python
import torch

def _softmax(x, axis=-1):
    return torch.softmax(x, dim=axis)

def _gelu(x):
    return torch.nn.functional.gelu(x, approximate='tanh')

def _silu(x):
    return torch.nn.functional.silu(x)

def _sigmoid(x):
    return torch.sigmoid(x)

def _layernorm(x, axis=-1, eps=1e-05):
    m = x.mean(dim=axis, keepdim=True)
    v = x.var(dim=axis, keepdim=True, unbiased=False)
    return (x - m) / torch.sqrt(v + eps)

def _scatter_add(tgt, idx, src, axis=0):
    return tgt.clone().index_add_(axis, idx, src)

def _segment_sum(src, seg, n):
    out = torch.zeros((n,) + src.shape[1:], dtype=src.dtype)
    return out.index_add_(0, seg, src)

def _pad(x, pw):
    flat = tuple((v for pair in reversed(pw) for v in pair))
    return torch.nn.functional.pad(x, flat)
kernel_name = 'parallel_sum__memory_aug_recurrent_mem_tr__glu_gated_swiglu__prompt'

def setup_inputs():

    _w = lambda a: (lambda t: t.to(torch.bfloat16) if t.is_floating_point() else t)(torch.as_tensor(a))

    def _A_setup():
        B, S, Dm = (1, 2048, 512)
        H, Dh = (32, 128)
        M, seg = (8, 32)
        seg = min(seg, S)
        S = S // seg * seg
        return {'x': _w((lambda *s: torch.randn(*s, dtype=torch.bfloat16) * 0.05)(B, S, Dm)), 'mem0': _w((lambda *s: torch.randn(*s, dtype=torch.bfloat16) * 0.2)(B, M, Dm)), 'Wq': _w((lambda *s: torch.randn(*s, dtype=torch.bfloat16) * 1.6)(Dm, H, Dh) * Dm ** (-0.5)), 'Wk': _w((lambda *s: torch.randn(*s, dtype=torch.bfloat16) * 1.6)(Dm, H, Dh) * Dm ** (-0.5)), 'Wv': _w((lambda *s: torch.randn(*s, dtype=torch.bfloat16) * 0.2)(Dm, H, Dh) * Dm ** (-0.5)), 'Wo': _w((lambda *s: torch.randn(*s, dtype=torch.bfloat16) * 0.2)(H, Dh, Dm) * (H * Dh) ** (-0.5)), 'seg_len': seg}
    _A_in = _A_setup()

    def _B_setup():
        B, S, D, F = (1, 2048, 512, 1376)
        return {'x': _w((lambda *s: torch.randn(*s, dtype=torch.bfloat16) * 0.05)(B, S, D)), 'w1': _w((lambda *s: torch.randn(*s, dtype=torch.bfloat16) * 0.2)(D, F) * (2.0 / D) ** 0.5), 'w3': _w((lambda *s: torch.randn(*s, dtype=torch.bfloat16) * 0.2)(D, F) * (2.0 / D) ** 0.5), 'w2': _w((lambda *s: torch.randn(*s, dtype=torch.bfloat16) * 0.2)(F, D) * (2.0 / F) ** 0.5)}
    _B_in = _B_setup()
    return {'A_x': _A_in['x'], 'A_mem0': _A_in['mem0'], 'A_Wq': _A_in['Wq'], 'A_Wk': _A_in['Wk'], 'A_Wv': _A_in['Wv'], 'A_Wo': _A_in['Wo'], 'A_seg_len': _A_in['seg_len'], 'B_x': _B_in['x'], 'B_w1': _B_in['w1'], 'B_w3': _B_in['w3'], 'B_w2': _B_in['w2']}

def reference(A_x, A_mem0, A_Wq, A_Wk, A_Wv, A_Wo, A_seg_len, B_x, B_w1, B_w3, B_w2):

    def _A_ref(x, mem0, Wq, Wk, Wv, Wo, seg_len):
        B, S, Dm = x.shape
        H, Dh = (Wq.shape[1], Wq.shape[2])
        M = mem0.shape[1]
        scale = Dh ** (-0.5)
        n_seg = S // seg_len
        L = M + seg_len
        idx = torch.arange(L)
        mask = (idx[:, None] < M) | (idx[:, None] >= idx[None, :])
        mem = mem0
        outs = []
        for s in range(n_seg):
            xs = x[:, s * seg_len:(s + 1) * seg_len, :].clone()
            h = torch.concatenate([mem, xs], axis=1)
            q = torch.einsum('btd,dhe->bhte', h, Wq)
            k = torch.einsum('btd,dhe->bhte', h, Wk)
            v = torch.einsum('btd,dhe->bhte', h, Wv)
            scores = torch.einsum('bhqe,bhke->bhqk', q, k) * scale
            scores = torch.where(mask[None, None], scores, -1000000000.0)
            p = _softmax(scores, axis=-1)
            o = torch.einsum('bhqk,bhke->bhqe', p, v)
            o = torch.einsum('bhte,hed->btd', o, Wo)
            mem = o[:, :M, :].clone()
            outs.append(o[:, M:, :])
        return torch.concatenate(outs, axis=1)

    def _B_ref(x, w1, w3, w2):
        gate = torch.einsum('bsd,df->bsf', x, w1)
        up = torch.einsum('bsd,df->bsf', x, w3)
        h = _silu(gate) * up
        out = torch.einsum('bsf,fd->bsd', h, w2)
        return out
    x = A_x
    xn = _layernorm(x, axis=-1)
    return x + _A_ref(xn, A_mem0, A_Wq, A_Wk, A_Wv, A_Wo, A_seg_len) + _B_ref(xn, B_w1, B_w3, B_w2)
```

```python
import re


class Asm:
    def __init__(self):
        self.lines = []

    def __call__(self, s):
        for ln in s.split("\n"):
            ln = ln.strip()
            if ln:
                self.lines.append(ln)

    def label(self, name):
        self.lines.append(name + ":")

    def text(self):
        out = []
        for ln in self.lines:
            if ln.endswith(":") or ln.startswith("."):
                out.append(ln)
            else:
                out.append("    " + ln)
        return "\n".join(out) + "\n"


def vr(base, n=1):
    if isinstance(base, tuple):
        f, k = base
    else:
        f, k = "v", base
    return f"{f}{k}" if n == 1 else f"{f}[{k}:{k+n-1}]"


def sr(k, n=1):
    return f"s{k}" if n == 1 else f"s[{k}:{k+n-1}]"


def weave(main, fill):
    out = list(fill.get(-1, []))
    for i, m in enumerate(main):
        out.append(m)
        out.extend(fill.get(i, []))
    for p in fill:
        assert -1 <= p < len(main), p
    return out


_REG = re.compile(r"\b([va])(?:\[(\d+):(\d+)\]|(\d+))")
TRANS = ("v_exp_f32", "v_log_f32", "v_rcp_f32", "v_rsq_f32", "v_sqrt_f32", "v_sin_f32", "v_cos_f32")


def _regs(tok):
    out = set()
    for m in _REG.finditer(tok):
        if m.group(4) is not None:
            out.add((m.group(1), int(m.group(4))))
        else:
            out.update((m.group(1), k) for k in range(int(m.group(2)), int(m.group(3)) + 1))
    return out


def _parse(ln):
    ln = ln.split(";")[0].strip()
    if not ln or ln.endswith(":") or ln.startswith("."):
        return None
    parts = ln.split(None, 1)
    op = parts[0]
    ops = [x.strip() for x in parts[1].split(",")] if len(parts) > 1 else []
    d = dict(op=op, text=ln, w=set(), r=set(), c=set(), ab=set(), kind="other", passes=0, sw=set(), sreads=set())
    sreg = lambda t: set(
        k for m in re.finditer(r"\bs(?:\[(\d+):(\d+)\]|(\d+))", t)
        for k in (range(int(m.group(1)), int(m.group(2)) + 1) if m.group(3) is None else [int(m.group(3))])
    ) | ({"vcc"} if re.search(r"\bvcc\b", t) else set())
    if op.startswith("v_mfma") or op.startswith("v_smfmac"):
        d["kind"] = "mfma"
        d["passes"] = 8 if "32x32" in op else 4
        d["w"] = _regs(ops[0])
        d["ab"] = _regs(ops[1]) | _regs(ops[2])
        if op.startswith("v_smfmac"):
            d["ab"] |= _regs(ops[3])
            d["c"] = set(d["w"])
            d["port"] = 12
        else:
            d["c"] = _regs(ops[3])
            d["port"] = 8 if len(_regs(ops[1])) == 4 else 4
        d["r"] = d["ab"] | d["c"]
    elif op.startswith("v_"):
        d["kind"] = "valu"
        if op.startswith("v_cmp"):
            d["sw"] = sreg(ops[0])
            d["r"] = set().union(*[_regs(x) for x in ops[1:]])
            d["sreads"] = set().union(*[sreg(x) for x in ops[1:]])
        elif op.startswith("v_readfirstlane") or op.startswith("v_readlane"):
            d["sw"] = sreg(ops[0])
            d["r"] = _regs(ops[1])
        else:
            d["w"] = _regs(ops[0])
            d["r"] = set().union(*[_regs(x) for x in ops[1:]]) if len(ops) > 1 else set()
            d["sreads"] = set().union(*[sreg(x) for x in ops[1:]]) if len(ops) > 1 else set()
            if "swap" in op:
                d["w"] |= _regs(ops[1])
                d["r"] |= _regs(ops[0])
            if op.startswith("v_fmac") or op.startswith("v_dot2c") or "bank_mask" in ln or "dst_unused:UNUSED_PRESERVE" in ln:
                d["r"] |= _regs(ops[0])
        d["dpp"] = "_dpp" in op or "row_" in ln or "quad_perm" in ln
        d["perm"] = "permlane" in op
        d["trans"] = op.replace("_e32", "").replace("_e64", "") in TRANS
        d["lane"] = op.startswith("v_readfirstlane") or op.startswith("v_readlane")
    elif op.startswith("ds_"):
        d["kind"] = "mem"
        if op.startswith("ds_read") or op.startswith("ds_bpermute") or op.startswith("ds_swizzle"):
            d["w"] = _regs(ops[0])
            d["r"] = set().union(*[_regs(x) for x in ops[1:]])
        else:
            d["r"] = set().union(*[_regs(x) for x in ops])
    elif op.startswith("buffer_") or op.startswith("global_"):
        d["kind"] = "mem"
        d["vmem"] = True
        d["sreads"] = set().union(*[sreg(x) for x in ops]) if ops else set()
        lds = ln.rstrip().endswith(" lds") or " lds " in ln
        if "load" in op and not lds:
            d["w"] = _regs(ops[0])
            d["r"] = set().union(*[_regs(x) for x in ops[1:]])
        else:
            d["r"] = set().union(*[_regs(x) for x in ops]) if ops else set()
            if "atomic" in op and " sc0" in ln:
                d["w"] = _regs(ops[0])
            if "store" in op and ("x4" in op or "x3" in op):
                data = ops[0] if op.startswith("buffer_") else ops[1]
                d["widestore"] = _regs(data)
        d["lds"] = lds
    elif op.startswith("s_"):
        d["kind"] = "salu"
        if op == "s_nop":
            d["nop"] = int(ops[0], 0) + 1
        if ops and ops[0] == "m0":
            d["m0w"] = True
    return d


def check_hazards(lines, timeaware=True, name=""):
    ins = [x for x in (_parse(l) for l in lines) if x]
    t = 0
    pipe_free = 0
    port_free = 0
    for d in ins:
        if timeaware and d["kind"] == "mfma":
            t = max(t, pipe_free, port_free)
        if timeaware and d["kind"] == "valu":
            t = max(t, port_free)
        d["t"] = t
        if d["kind"] == "mfma":
            pipe_free = t + 4 * d["passes"]
            port_free = t + d["port"]
        t += 4 * d.get("nop", 1)
    errs = []

    def dist(i, j):
        t = 0
        p = ins[i]
        pipe_free = 4 * p["passes"] if p["kind"] == "mfma" else 0
        port_free = p.get("port", 0) if p["kind"] == "mfma" else 0
        t = 4 * p.get("nop", 1)
        for k in range(i + 1, j + 1):
            d = ins[k]
            if timeaware and d["kind"] == "mfma":
                t = max(t, pipe_free, port_free)
            if timeaware and d["kind"] == "valu":
                t = max(t, port_free)
            if k == j:
                return t // 4 - 1
            if d["kind"] == "mfma":
                pipe_free = t + 4 * d["passes"]
                port_free = t + d["port"]
            t += 4 * d.get("nop", 1)

    for i, p in enumerate(ins):
        for j in range(i + 1, min(len(ins), i + 24)):
            c = ins[j]
            need = 0
            if p["kind"] == "valu":
                if c["kind"] == "mfma" and p["w"] & c["r"]:
                    need = max(need, 2)
                if c["kind"] == "valu":
                    if (c["dpp"] or c["perm"]) and p["w"] & c["r"]:
                        need = max(need, 2)
                    if c["lane"] and p["w"] & c["r"]:
                        need = max(need, 1)
                    if p["trans"] and not c["trans"] and p["w"] & c["r"]:
                        need = max(need, 1)
                    if p["sw"] & (c["sreads"] | ({"vcc"} if "cndmask" in c["op"] and "s[" not in c["text"] else set())):
                        need = max(need, 2)
                    if ("sdwa" in p["op"] or "op_sel" in p["text"]) and "pk_" not in p["op"] and p["w"] & (c["r"] | c["w"]):
                        need = max(need, 1)
                if c.get("vmem") and p["sw"] & c["sreads"]:
                    need = max(need, 5)
            if p["kind"] == "mfma":
                big = {4: 8, 8: 12}[p["passes"]]
                if c["kind"] == "mfma":
                    if p["w"] & c["ab"]:
                        need = max(need, big)
                    if p["w"] & c["c"] and not (p["w"] == c["c"] and p["passes"] == c["passes"]):
                        need = max(need, big - 2)
                    if p["w"] & c["w"] and not (p["w"] == c["w"] and p["passes"] == c["passes"]):
                        need = max(need, big - 2)
                elif c["kind"] in ("valu", "mem"):
                    if p["w"] & (c["r"] | c["w"]):
                        need = max(need, big)
                    if c["kind"] == "valu" and p["c"] & c["w"]:
                        need = max(need, p["passes"] - 1)
            if p.get("widestore") and p["widestore"] & c["w"]:
                need = max(need, 2 if c["kind"] in ("valu", "mfma") else 1)
            if p.get("m0w") and c.get("lds"):
                need = max(need, 1)
            if need:
                got = dist(i, j)
                if got < need:
                    errs.append(f"{name}: need {need} got {got}: [{p['text']}] -> [{c['text']}]")
    return errs


def resolve_waits(lines):
    out = []
    for i, ln in enumerate(lines):
        m = re.match(r"WAIT([LV])\s+(\S+)", ln)
        if not m:
            out.append(ln)
            continue
        kind, tag = m.groups()
        n = 0
        for k in range(i - 1, -1, -1):
            p = lines[k]
            op = p.split(None, 1)[0]
            is_l = op.startswith("ds_")
            is_v = op.startswith("buffer_") or op.startswith("global_")
            if (is_l if kind == "L" else is_v):
                if re.search(r"@" + re.escape(tag) + r"(\s|$)", p):
                    break
                n += 1
        else:
            raise AssertionError("tag not found: " + tag)
        if kind == "L":
            out.append(f"s_waitcnt lgkmcnt({min(n, 15)})")
        else:
            out.append(f"s_waitcnt vmcnt({min(n, 63)})")
    return out
```

```python
import struct
P_X, P_MEM0, P_WQ, P_WK, P_WV, P_WO = 36, 38, 40, 42, 44, 46
P_W1, P_W3, P_W2, P_OUT, P_DBG, P_WS = 52, 54, 56, 58, 60, 62
sWS = 4
sH, sW = 24, 25
sXCC = 3

DBG_TEAM = 4
DBG_ZERO = 8

WS_FLAGS = 0x0
WS_FL_KV = 0x0
WS_FL_XN = 0x1000
WS_FL_O = 0x2000
WS_FL_HF = 0x3000
WS_FLAG_BYTES = 0x4000
WS_DIAG = 0x8000
WS_MB = 0x10000
WS_HU = 0x20000
WS_PA = 0x80000
WS_XN = 0x100000
WS_MEMX = 0x300000
WS_KV = 0x1000000
KV_HEAD = 0x104000
WS_ACT = 0x3200000
ACT_UNIT = 0x30000
WS_BYTES = 0x10000000

SPIN_MAX = 0x20000
C_EXP = struct.unpack("<I", struct.pack("<f", 128 ** -0.5 * 1.4426950408889634))[0]
```

```python
import re
from asmlib import *
from layout import *

SM = "v_smfmac_f32_16x16x64_bf16"
D32 = "v_mfma_f32_16x16x32_bf16"
D16 = "v_mfma_f32_16x16x16_bf16"

L_KX, L_MEM, L_QK, L_O, L_SEL, L_W = 0, 16384, 24576, 28928, 30976, 32768

vL16, vL16b, vL16c, vIdx, vPAst, vMBst, vQKw, vQKr, vO, vKX, vVM, vFlag = range(12)
vQKown, vVMh, vPub, vVX, vVXn, vMemA = 12, 16, 18, 20, 28, 36
aK0, aQ0, aK1, aQ1, aV0, aV1 = 68, 72, 76, 80, 84, 88
vSt = 92
vT = 124

sWv, sWq, sWk, sWo = 8, 12, 16, 20
sStep, sMBw, sMBr, sPAw, sPAr, sKV, sMX, sFL, sNeed, sTO = 26, 27, 28, 29, 30, 31, 32, 33, 34, 35
sC, sM0, sTmp, sTmp2, sMBl, sKV2, sHUw, sHUr = 64, 66, 67, 68, 69, 70, 71, 65


def own_blocks(w):
    a = 2 * (w & 1) + (w >> 1)
    return [a, a + 4]


class Plan:
    def __init__(self, w):
        self.w = w
        self.blocks = [own_blocks((w + i) % 4)[k] for k in range(2) for i in range(4)]
        seq = []
        for b in range(4):
            seq += [("K", b, 0), ("Q", b, 0), ("K", b, 1), ("Q", b, 1)]
        for t in range(2):
            for m in "KQ":
                seq += [(m, b, t) for b in (4, 5, 6, 7)]
        self.qk = seq
        self.v = [("V", b, t) for b in range(8) for t in range(2)]
        self.o = [("O", 0, sl) for sl in range(4)]
        self.o += [("O", i, sl) for sl in range(4) for i in (1, 2, 3)]
        self.qk_lds_pos = [0, 1, 2, 3, 12, 14, 16, 18]
        self.o_lds_pos = [0, 1, 2, 3, 12, 13, 14, 15]
        lds = [self.qk[p] for p in self.qk_lds_pos] + [self.o[p] for p in self.o_lds_pos]
        self.reg = {}
        free = [("a", 8 * i) for i in range(32)] + [("v", 128 + 8 * i) for i in range(16)]
        for f in self.qk + self.v + self.o:
            if f not in lds:
                self.reg[f] = free.pop(0)
        assert not free
        self.ldsn = {}

    def name_abs(self, f):
        m, i, t = f
        return (m, self.blocks[i] if m != "O" else (self.w + i) % 4, t)

    def lds_read(self, f, dst, tag=""):
        n = self.ldsn[f]
        off = L_W + (n >> 1) * 16384 + self.w * 4096 + (n & 1) * 2048
        out = []
        for hlf in range(2):
            o = off + hlf * 1024
            base = [vL16, vL16b, vL16c][o >> 16]
            out.append(f"ds_read_b128 {vr(dst + 4 * hlf, 4)}, v{base} offset:{o & 0xffff} ; @{tag}")
        return out


def r_setup(a, opt):
    for s, p in ((sWv, P_WV), (sWq, P_WQ), (sWk, P_WK), (sWo, P_WO)):
        a(f"""
        s_mov_b32 s{s}, s{p}
        s_mov_b32 s{s+1}, s{p+1}
        s_mov_b32 s{s+2}, 0x400000
        s_mov_b32 s{s+3}, 0x20000
        """)
    a(f"""
    v_mov_b32 v12, v0
    v_lshrrev_b32 v13, 4, v12
    v_and_b32 v14, 15, v12
    v_lshlrev_b32 v{vL16}, 4, v12
    v_add_u32 v{vL16b}, 0x10000, v{vL16}
    v_add_u32 v{vL16c}, 0x20000, v{vL16}
    v_mov_b32 v{vKX}, v{vL16}
    v_bfe_u32 v15, v12, 1, 1
    v_mul_u32_u24 v15, 0xaaaa, v15
    v_add_u32 v{vIdx}, 0x4444, v15
    v_and_b32 v15, 7, v14
    v_lshlrev_b32 v15, 3, v15
    v_lshl_add_u32 v15, v13, 13, v15
    v_lshrrev_b32 v16, 3, v14
    v_lshl_add_u32 v{vPAst}, v16, 15, v15
    v_and_b32 v17, 3, v12
    v_lshlrev_b32 v15, 2, v17
    v_lshl_add_u32 v{vMBst}, v13, 4, v15
    v_lshrrev_b32 v15, 2, v14
    v_mul_u32_u24 v15, 136, v15
    v_lshl_add_u32 v15, v13, 3, v15
    v_lshl_add_u32 v{vQKw}, v17, 5, v15
    v_lshrrev_b32 v15, 1, v13
    v_mul_u32_u24 v15, 544, v15
    v_and_b32 v16, 1, v13
    v_mul_u32_u24 v16, 136, v16
    v_add_u32 v15, v15, v16
    v_lshl_add_u32 v{vQKr}, v14, 3, v15
    v_lshrrev_b32 v15, 2, v14
    v_and_b32 v16, 1, v14
    v_lshl_add_u32 v15, v15, 1, v16
    v_lshlrev_b32 v15, 4, v15
    v_lshl_add_u32 v{vO}, v13, 7, v15
    v_bfe_u32 v10, v{vL16}, 2, 7
    """)
    a(f"""
    v_mov_b32 v16, 0x3f80
    v_bfe_u32 v15, v14, 2, 1
    v_lshlrev_b32 v15, 4, v15
    v_lshlrev_b32 v16, v15, v16
    v_and_b32 v15, 11, v14
    """)
    for q in range(4):
        a(f"""
        v_cmp_eq_u32 vcc, {8 * (q & 1) + (q >> 1)}, v15
        s_nop 1
        v_cndmask_b32 v{20+q}, 0, v16, vcc
        """)
    a(f"ds_write_b128 v{vL16}, v[20:23] offset:{L_SEL}")
    a(f"""
    s_and_b32 s{sTmp}, s{sW}, 1
    s_lshl_b32 s{sTmp}, s{sTmp}, 2
    v_and_b32 v15, 1, v13
    v_or_b32 v15, s{sTmp}, v15
    v_lshlrev_b32 v15, 1, v15
    v_xor_b32 v15, v15, v14
    v_lshlrev_b32 v15, 4, v15
    v_lshl_add_u32 v15, v13, 13, v15
    s_lshr_b32 s{sTmp}, s{sW}, 1
    s_lshl_b32 s{sTmp}, s{sTmp}, 20
    s_and_b32 s{sTmp2}, s{sW}, 1
    s_lshl_b32 s{sTmp2}, s{sTmp2}, 17
    s_add_u32 s{sTmp}, s{sTmp}, s{sTmp2}
    s_lshl_b32 s{sTmp2}, s{sH}, 8
    s_add_u32 s{sTmp}, s{sTmp}, s{sTmp2}
    v_add_u32 v24, s{sTmp}, v15
    v_and_b32 v15, 1, v13
    v_lshlrev_b32 v15, 2, v15
    v_xor_b32 v15, v15, v14
    v_lshlrev_b32 v15, 4, v15
    v_lshl_add_u32 v15, v13, 10, v15
    s_lshl_b32 s{sTmp}, s{sW}, 8
    s_lshl_b32 s{sTmp2}, s{sH}, 17
    s_add_u32 s{sTmp}, s{sTmp}, s{sTmp2}
    v_add_u32 v25, s{sTmp}, v15
    v_bfe_u32 v15, v12, 2, 1
    v_bfe_u32 v16, v12, 3, 1
    v_and_b32 v18, 1, v13
    v_lshrrev_b32 v19, 1, v13
    v_lshl_add_u32 v28, v16, 1, v18
    v_lshl_add_u32 v29, v28, 1, v15
    v_lshl_add_u32 v28, v13, 2, v15
    v_lshl_add_u32 v28, v16, 4, v28
    s_lshl_b32 s{sTmp}, s{sW}, 1
    v_xor_b32 v29, s{sTmp}, v29
    v_lshlrev_b32 v29, 5, v29
    v_lshl_add_u32 v29, v28, 8, v29
    v_lshl_add_u32 v26, v17, 3, v29
    v_lshl_add_u32 v28, v19, 2, v15
    v_lshlrev_b32 v28, 8, v28
    v_lshl_add_u32 v28, v18, 14, v28
    v_lshl_add_u32 v29, v18, 1, v15
    v_lshl_add_u32 v28, v29, 6, v28
    v_lshl_add_u32 v28, v16, 5, v28
    v_lshl_add_u32 v28, v17, 3, v28
    s_lshl_b32 s{sTmp}, s{sW}, 12
    v_add_u32 v27, s{sTmp}, v28
    """)
    a(f"""
    s_lshl_b32 s{sMBw}, s{sW}, 11
    s_lshl_b32 s{sTmp}, s{sH}, 6
    s_add_u32 s{sMBw}, s{sMBw}, s{sTmp}
    s_add_u32 s{sMX}, s{sMBw}, {WS_MEMX}
    s_add_u32 s{sMBw}, s{sMBw}, {WS_MB}
    s_lshr_b32 s{sMBr}, s{sW}, 1
    s_and_b32 s{sTmp2}, s{sW}, 1
    s_lshl_b32 s{sTmp2}, s{sTmp2}, 1
    s_add_u32 s{sMBr}, s{sMBr}, s{sTmp2}
    s_lshl_b32 s{sMBr}, s{sMBr}, 10
    s_add_u32 s{sMBr}, s{sMBr}, {WS_MB}
    s_add_u32 s{sMBl}, s{sMBr}, 0x1000
    s_lshl_b32 s{sPAw}, s{sW}, 16
    s_add_u32 s{sPAw}, s{sPAw}, s{sTmp}
    s_add_u32 s{sPAw}, s{sPAw}, {WS_PA}
    s_lshl_b32 s{sPAr}, s{sH}, 13
    s_lshl_b32 s{sTmp}, s{sW}, 11
    s_add_u32 s{sPAr}, s{sPAr}, s{sTmp}
    s_add_u32 s{sPAr}, s{sPAr}, {WS_PA + 0x40000}
    s_mul_i32 s{sKV}, s{sH}, {KV_HEAD}
    s_add_u32 s{sKV}, s{sKV}, s{sTmp}
    s_add_u32 s{sKV}, s{sKV}, {WS_KV}
    s_lshl_b32 s{sM0}, s{sW}, 11
    s_mov_b32 s{sC}, {hex(C_EXP)}
    s_lshl_b32 s{sHUw}, s{sH}, 2
    s_add_u32 s{sHUw}, s{sHUw}, {WS_HU}
    s_and_b32 s{sHUr}, s{sH}, {opt.get('hurep', 4) - 1}
    s_lshl_b32 s{sHUr}, s{sHUr}, 8
    s_add_u32 s{sHUr}, s{sHUr}, {WS_HU}
    s_mov_b32 s{sStep}, 0
    """)


def dma_chunk(w, c):
    out = []
    slot = c % 8
    for i in range(4):
        if c < 24:
            srd = [sWv, sWq, sWk][c >> 3]
            so = (256 * (c & 1) + 32 * ((c & 7) >> 1) + 4 * i) * 8192
            m0 = L_W + slot * 16384 + (16 * w + 4 * i) * 256
            vo = [24, 15][i & 1]
        else:
            srd = sWo
            so = (16 * (c - 24) + 4 * i) * 1024
            m0 = L_W + slot * 16384 + w * 4096 + 4 * i * 256
            vo = 25 if (c & 1) == 0 else 30
        out += [f"s_mov_b32 m0, {m0}", f"s_mov_b32 s{sTmp}, {so}",
                f"buffer_load_dwordx4 v{vo}, s[{srd}:{srd+3}], s{sTmp} offen lds ; @c{c}"]
    return out


def spin(a, name, load, chk, cond_ok):
    a(f"s_mov_b32 s{sTO}, 0")
    a.label(name)
    a(load)
    a(f"s_waitcnt vmcnt(0)")
    a(chk)
    a(f"""
    {cond_ok} {name}_ok
    s_add_u32 s{sTO}, s{sTO}, 1
    s_cmp_lt_u32 s{sTO}, {SPIN_MAX}
    s_cbranch_scc1 {name}
    s_branch L_END
    """)
    a.label(name + "_ok")


def r_startup(w, pl, opt):
    a = Asm()
    inv = {pl.name_abs(f): f for f in pl.qk + pl.v + pl.o}
    temps = [32 + 8 * i for i in range(12)]
    pending = []
    a("v_xor_b32 v30, 0x80, v25\nv_xor_b32 v15, 0x40, v24")
    for c in range(8):
        a("\n".join(dma_chunk(w, c)))
    for c in range(24):
        a(f"WAITV c{c}\ns_barrier")
        if 1 <= c and c + 7 < 32:
            a("\n".join(dma_chunk(w, c + 7)))
        if c == 19:
            a(f"""
            v_mov_b64 v[20:21], 0
            v_mov_b64 v[22:23], 0
            v_mov_b32 v18, -1
            v_lshlrev_b32 v19, 4, v{vL16}
            s_xor_b32 s{sTmp}, s{sPAr}, 0x40000
            s_xor_b32 s{sTmp2}, s{sMBw}, 0x2000
            buffer_store_dwordx4 v[20:23], v{vL16}, s[{sWS}:{sWS+3}], s{sPAr} offen
            buffer_store_dwordx4 v[20:23], v{vL16}, s[{sWS}:{sWS+3}], s{sPAr} offen offset:1024
            buffer_store_dwordx4 v[20:23], v{vL16}, s[{sWS}:{sWS+3}], s{sTmp} offen
            buffer_store_dwordx4 v[20:23], v{vL16}, s[{sWS}:{sWS+3}], s{sTmp} offen offset:1024
            buffer_store_dword v18, v{vMBst}, s[{sWS}:{sWS+3}], s{sMBw} offen
            buffer_store_dword v18, v{vMBst}, s[{sWS}:{sWS+3}], s{sTmp2} offen
            s_mov_b64 exec, 0xffff
            buffer_store_dword v20, v19, s[{sWS}:{sWS+3}], s{sHUw} offen
            s_mov_b64 exec, -1
            """)
        a(f"v_add_u32 v28, {L_W + (c % 8) * 16384}, v26\nv_xor_b32 v29, 32, v28")
        for t in range(2):
            f = inv[("VQK"[c >> 3], c & 7, t)]
            if f in pl.reg:
                dst = pl.reg[f]
            else:
                dst = ("v", temps.pop(0))
                pending.append((f, dst[1]))
            for u in range(4):
                z, y = u >> 1, u & 1
                a(f"ds_read_b64_tr_b16 {vr((dst[0], dst[1] + 2 * u), 2)}, v{28 + t} offset:{(32 * z + 2 * y) * 256}")
        a("s_waitcnt lgkmcnt(0)")
    a("s_barrier")
    a("\n".join(dma_chunk(w, 31)))
    nslot = 0
    for kap in range(4):
        a(f"WAITV c{25 + 2 * kap}")
        if kap == 1:
            a("s_barrier")
            if w == 0:
                a(f"""
                v_mov_b32 v20, {DBG_TEAM}
                v_mov_b32 v21, 1
                s_mov_b64 exec, 1
                global_atomic_add v20, v21, s[{P_DBG}:{P_DBG+1}]
                s_mov_b64 exec, -1
                """)
        for sl in range(4):
            f = inv[("O", kap, sl)]
            if f in pl.reg:
                dst = pl.reg[f]
            else:
                dst = ("v", temps.pop(0))
                pending.append((f, dst[1]))
            a(f"v_xor_b32 v28, {sl * 64}, v27\nv_add_u32 v28, {L_W + 2 * kap * 16384}, v28")
            for u in range(4):
                z, y = u >> 1, u & 1
                a(f"ds_read_b64_tr_b16 {vr((dst[0], dst[1] + 2 * u), 2)}, v28 offset:{(8 * z + 2 * y) * 256}")
        a("s_waitcnt lgkmcnt(0)")
        while pending and nslot < 4 * kap + 4:
            f, r = pending.pop(0)
            pl.ldsn[f] = nslot
            off = L_W + (nslot >> 1) * 16384 + w * 4096 + (nslot & 1) * 2048
            for hlf in range(2):
                o = off + hlf * 1024
                a(f"ds_write_b128 v{[vL16, vL16b, vL16c][o >> 16]}, {vr(r + 4 * hlf, 4)} offset:{o & 0xffff}")
            temps.append(r)
            nslot += 1
        a("s_waitcnt lgkmcnt(0)")
    assert not pending and nslot == 16
    a(f"""
    s_mov_b32 s{sWv}, s{P_MEM0}
    s_mov_b32 s{sWv+1}, s{P_MEM0+1}
    s_mov_b32 s{sWv+2}, 8192
    s_and_b32 s{sTmp}, s{sH}, 3
    s_lshl_b32 s{sTmp}, s{sTmp}, 11
    s_lshr_b32 s{sTmp2}, s{sH}, 3
    s_lshl_b32 s{sTmp2}, s{sTmp2}, 8
    s_add_u32 s{sTmp}, s{sTmp}, s{sTmp2}
    s_and_b32 s{sTmp2}, s{sH}, 4
    s_lshl_b32 s{sTmp2}, s{sTmp2}, 2
    s_add_u32 s{sTmp}, s{sTmp}, s{sTmp2}
    v_and_b32 v28, 1, v13
    v_lshlrev_b32 v28, 10, v28
    v_lshl_add_u32 v28, v17, 2, v28
    v_lshrrev_b32 v29, 1, v13
    v_lshl_add_u32 v28, v29, 5, v28
    buffer_load_dword v{vPub}, v28, s[{sWv}:{sWv+3}], s{sTmp} offen offset:{64 * w}
    s_waitcnt vmcnt(0)
    v_min_u32 v{vPub}, -2, v{vPub}
    """)
    if not opt.get("r_only"):
        a("v_and_b32 v20, 7, v12\nv_lshlrev_b32 v20, 5, v20")
        spin(a, f"R{w}_reg", f"global_load_dword v21, v20, s[{P_DBG}:{P_DBG+1}] offset:{DBG_ZERO} sc1",
             "v_cmp_ne_u32 vcc, 32, v21", "s_cbranch_vccz")
    spin(a, f"R{w}_team", f"v_mov_b32 v20, {DBG_TEAM}\nglobal_load_dword v21, v20, s[{P_DBG}:{P_DBG+1}] sc1",
         "v_cmp_ne_u32 vcc, 32, v21", "s_cbranch_vccz")
    a(f"s_lshl_b32 s{sFL}, s{sH}, 7\ns_add_u32 s{sFL}, s{sFL}, {WS_FL_KV}")
    spin(a, f"R{w}_kv0", f"buffer_load_dword v21, off, s[{sWS}:{sWS+3}], s{sFL} sc1",
         "v_cmp_gt_u32 vcc, 1, v21", "s_cbranch_vccz")
    a(f"""
    s_add_u32 s{sFL}, s{sFL}, 4
    s_mov_b32 s{sNeed}, 1
    s_add_u32 s{sKV2}, s{sKV}, 0x2000
    s_mov_b32 m0, s{sM0}
    s_nop 0
    buffer_load_dwordx4 v{vL16}, s[{sWS}:{sWS+3}], s{sKV} offen sc1 lds
    buffer_load_dwordx4 v{vL16}, s[{sWS}:{sWS+3}], s{sKV} offen offset:1024 sc1 lds
    buffer_load_dwordx4 {vr(vVXn,4)}, v{vL16}, s[{sWS}:{sWS+3}], s{sKV2} offen sc1
    buffer_load_dwordx4 {vr(vVXn+4,4)}, v{vL16}, s[{sWS}:{sWS+3}], s{sKV2} offen offset:1024 sc1
    buffer_load_dword v{vFlag}, off, s[{sWS}:{sWS+3}], s{sFL} sc1
    s_add_u32 s{sKV}, s{sKV}, 0x4000
    s_add_u32 s{sKV2}, s{sKV}, 0x2000
    s_xor_b32 s{sM0}, s{sM0}, 0x2000
    s_waitcnt vmcnt(0)
    s_mov_b32 m0, s{sM0}
    """)
    return resolve_waits(a.lines)


def check8(r, t0, t1):
    return [f"v_max3_u32 v{t0}, v{r}, v{r+1}, v{r+2}", f"v_max3_u32 v{t1}, v{r+3}, v{r+4}, v{r+5}",
            f"v_max3_u32 v{t0}, v{t0}, v{r+6}, v{r+7}", f"v_max_u32 v{t0}, v{t0}, v{t1}",
            f"v_cmp_eq_u32 vcc, -1, v{t0}"]


def nops(n):
    out = []
    while n > 0:
        k = min(n, 16)
        out.append(f"s_nop {k-1}")
        n -= k
    return out


def stamp(opt, k):
    if opt.get("stamps"):
        return [f"s_memtime s[{72+2*k}:{73+2*k}]"]
    return []


def r_loop(w, pl, opt):
    WSR = f"s[{sWS}:{sWS+3}]"
    L = []
    X = []
    n = f"R{w}"
    acc = {("K", 0): aK0, ("Q", 0): aQ0, ("K", 1): aK1, ("Q", 1): aQ1, ("V", 0): aV0, ("V", 1): aV1}
    cnt = lambda r, k=1: [f"s_add_u32 s{r}, s{r}, {k}"] if opt.get("stamps") and not opt.get("raw") else []
    bail = lambda lab: [f"s_add_u32 s{sTO}, s{sTO}, 1", f"s_cmp_lt_u32 s{sTO}, {SPIN_MAX}", f"s_cbranch_scc1 {lab}", "s_branch L_END"]
    par = lambda name, dflt: opt.get(name, dflt)[w]

    def sm(d, aop, b):
        return f"{SM} {vr(d,4)}, {vr(aop,4)}, {vr(b,8)}, v{vIdx}"

    def cv(d, r):
        return f"v_cvt_pk_bf16_f32 v{d}, v{r}, v{r+1}"

    def add(r):
        return f"v_add_f32 v{r}, v{r}, v{r+2}"

    def zero(r):
        return f"v_mov_b64 {vr(r,2)}, 0"

    def take(lst, k):
        out = []
        while k > 0 and lst:
            out.append(lst.pop(0))
            k -= 0 if out[-1].endswith(":") else 1
        return out + nops(k)

    memE, memL = vMemA, vMemA + 16
    Pa, Sel, Rd, C0 = 40, 48, 56, 60
    iv = [zero(aK0 + k) for k in range(0, 24, 2)] + [zero(124), zero(126)]
    il = [f"ds_read_b128 {vr(Sel,4)}, v{vL16} offset:{L_SEL}"]
    for k in range(4):
        il += pl.lds_read(pl.qk[k], vSt + 8 * k, f"st{k}")
    isc = [f"s_xor_b32 s{sP[k]}, s{sP[k]}, 0x40000" for k in range(2)]
    isc += [f"s_add_u32 s{sKV}, s{sKV}, 0x4000", f"s_add_u32 s{sKV2}, s{sKV}, 0x2000",
            f"s_xor_b32 s{sM0}, s{sM0}, 0x2000", f"s_mov_b32 m0, s{sM0}"]
    idle = []
    for k, x in enumerate(il + isc):
        idle += [x] + iv[k:k + 1]
    idle += ["s_waitcnt lgkmcnt(0)"]
    if opt.get("raw"):
        idle += [f"s_cmp_eq_u32 s26, {opt['raw']}", "s_cselect_b32 s36, s92, s36", "s_cselect_b32 s37, s90, s37"]
        for k in range(9):
            idle += [f"s_cselect_b32 s{38+k}, s{72+2*k}, s{38+k}"]
        idle += ["s_mov_b32 s92, s88"]
    elif opt.get("trace"):
        idle += [f"v_writelane_b32 v17, s{72+2*k}, {k}" for k in range(10)]
        idle += [f"s_lshl_b32 s67, s{sH}, 2", f"s_add_u32 s67, s67, {w}", "s_lshl_b32 s67, s67, 6", f"s_add_u32 s67, s67, s{sStep}",
                 "s_lshl_b32 s67, s67, 10", f"s_add_u32 s67, s67, {WS_ACT}", "s_mov_b32 s36, s67"]
    elif opt.get("stamps"):
        idle += ["s_sub_u32 s67, s72, s90", "s_add_u32 s36, s36, s67"]
        for k in range(8):
            idle += [f"s_sub_u32 s67, s{74+2*k}, s{72+2*k}", f"s_add_u32 s{37+k}, s{37+k}, s67"]
        idle += ["s_sub_u32 s67, s90, s92", "s_cmp_gt_u32 s26, 1", "s_cselect_b32 s67, s67, 0", "s_add_u32 s45, s45, s67", "s_mov_b32 s92, s88"]
    pollA = [f"buffer_load_dwordx4 {vr(Pa,4)}, v{vL16}, {WSR}, s{sPAr} offen sc1 ; @pa0",
             f"buffer_load_dwordx4 {vr(Pa+4,4)}, v{vL16}, {WSR}, s{sPAr} offen offset:1024 sc1 ; @pa1"]
    pollE = [f"buffer_load_dwordx4 {vr(memE,4)}, v{vL16}, {WSR}, s{sMBr} offen sc1 ; @pe"]
    pollL = [f"buffer_load_dwordx4 {vr(memL,4)}, v{vL16}, {WSR}, s{sMBl} offen sc1 ; @pl"]
    L += [f"{n}_loop:"] + (["s_barrier"] if opt.get("barS", 1) else []) + take(idle, par("dA", [0, 0, 0, 0])) + pollA
    early = w >= 2 and opt.get("earlyE", 1)
    if early:
        L += take(idle, par("dE", [0, 0, 0, 0])) + pollE
    L += idle
    ne = lambda d, r: f"v_bitop3_b32 v{d}, v{r}, v{r+1}, s{sTag} bitop3:0x7e"
    L += ["WAITV pa0", f"{n}_pa:", f"{D32} {vr(Rd,4)}, {vr(Sel,4)}, {vr(Pa,4)}, 0", ne(C0, Pa), ne(C0 + 1, Pa + 2), "WAITV pa1"] + stamp(opt, 9)
    L += [f"{D32} {vr(Rd,4)}, {vr(Sel,4)}, {vr(Pa+4,4)}, {vr(Rd,4)}", ne(C0 + 2, Pa + 4), ne(C0 + 3, Pa + 6),
          f"v_or3_b32 v{C0}, v{C0}, v{C0+1}, v{C0+2}", f"v_bitop3_b32 v{C0}, v{C0}, v{C0+3}, 1 bitop3:0xa8",
          f"v_cmp_ne_u32 vcc, 0, v{C0}", "s_nop 1"]
    for rot in (4, 8):
        for q in range(2):
            L.append(f"v_add_f32_dpp v{Rd+q}, v{Rd+q}, v{Rd+q} row_ror:{rot} row_mask:0xf bank_mask:0xf")
        if rot == 4:
            L.append("s_nop 0")
    L += [cv(vPub, Rd), f"s_cbranch_vccnz {n}_par", f"{n}_pub:", f"buffer_store_dword v{vPub}, v{vMBst}, {WSR}, s{sMBw} offen"] + stamp(opt, 0)
    X += [f"{n}_par:"] + pollA + cnt(46) + ["s_waitcnt vmcnt(0)"] + bail(f"{n}_pa")
    mx = f"buffer_store_dword v{vPub}, v{vMBst}, {WSR}, s{sMX} offen sc1"
    X += [f"{n}_last:", mx, "s_branch R_DONE"]
    top = [f"s_cmp_eq_u32 s{sStep}, 63", f"s_cbranch_scc1 {n}_last", f"v_cmp_gt_u32 vcc, s{sNeed}, v{vFlag}"]
    top += [f"v_mov_b64 {vr(vVX+k,2)}, {vr(vVXn+k,2)}" for k in range(0, 8, 2)]
    top += [f"s_xor_b32 s{sMBp}, s{sMBw}, 0x4000", f"s_add_u32 s{sMBw}, s{sMBw}, 0x2000", f"s_bitset0_b32 s{sMBw}, 15", f"s_xor_b32 s{sPAr}, s{sPAr}, 0x40000", f"s_mov_b32 s{sTO}, 0",
            f"s_cbranch_vccnz {n}_flag", f"{n}_flagok:",
            f"s_add_u32 s{sTmp}, s{sStep}, 2", f"s_lshr_b32 s{sTag}, s{sTmp}, 1", f"s_min_u32 s{sTmp}, s{sTmp}, 62",
            f"s_lshr_b32 s{sNeed}, s{sTmp}, 2", f"s_add_u32 s{sNeed}, s{sNeed}, 1",
            f"s_and_b32 s{sTmp}, s{sTmp}, 3", f"s_lshl_b32 s{sTmp}, s{sTmp}, 2",
            f"s_andn2_b32 s{sFL}, s{sFL}, 15", f"s_or_b32 s{sFL}, s{sFL}, s{sTmp}", f"s_add_u32 s{sStep}, s{sStep}, 1"]
    X += [f"{n}_flag:", f"buffer_load_dword v{vFlag}, off, {WSR}, s{sFL} sc1", "s_waitcnt vmcnt(0)",
          f"v_cmp_gt_u32 vcc, s{sNeed}, v{vFlag}", f"s_cbranch_vccz {n}_flagok"] + bail(f"{n}_flag")
    ck4 = lambda r: [f"v_max3_u32 v{C0}, v{r}, v{r+1}, v{r+2}", f"v_max_u32 v{C0}, v{C0}, v{r+3}", f"v_cmp_eq_u32 vcc, -1, v{C0}"]
    we = f"ds_write_b128 v{vL16}, {vr(memE,4)} offset:{L_MEM + w*1024}"
    dep = par("dep", [0, 0, 0, 0])
    if dep:
        L += take(top, par("dE", [0, 0, 0, 0]) if not early else par("dL", [0, 0, 0, 0]))
        for k in range(dep - 1 - (1 if early else 0)):
            L += pollE + take(top, opt.get("gapE", 14))
        L += top
        if early:
            L += pollE + [f"s_waitcnt vmcnt({dep})"] + stamp(opt, 1) + ck4(memE) + [we, f"s_cbranch_vccz {n}_peok"]
        L += [f"{n}_pe:"] + pollE + cnt(47) + [f"s_add_u32 s{sTO}, s{sTO}, 1", f"s_cmp_ge_u32 s{sTO}, {SPIN_MAX}", "s_cbranch_scc1 L_END",
                                                     f"s_waitcnt vmcnt({dep-1})"] + stamp(opt, 1)
        L += ck4(memE) + [we, f"s_cbranch_vccnz {n}_pe", f"{n}_peok:"]
    else:
        if not early:
            L += take(top, par("dE", [0, 0, 0, 0])) + pollE
        L += take(top, par("dL", [0, 0, 0, 0])) + pollL + top
        L += ["WAITV pe", f"{n}_pe:"] + stamp(opt, 1) + [we]
        X += [f"{n}_per:"] + pollE + pollL + cnt(47) + ["s_nop 7"] + [zero(aK0 + k) for k in range(0, 16, 2)] + ["s_waitcnt vmcnt(0)"] + bail(f"{n}_pe")
    V = [sm(acc[("V", f[2])], vMemA + 4 * f[1], pl.reg[f]) for f in pl.v]
    main = []
    for p, f in enumerate(pl.qk):
        b = pl.reg[f] if f in pl.reg else vSt + 8 * (pl.qk_lds_pos.index(p) % 4)
        main.append(sm(acc[(f[0], f[2])], vMemA + 4 * f[1], b))
    main[4:4] = V[:2]
    fill = {p: [] for p in range(-1, 34)}
    ck = ck4(memE)
    pa_ = opt.get("barA", 2)
    if dep:
        fill[0] += pollL
    else:
        fill[-1] += ck[:2]
        fill[0] += ck[2:]
        fill[pa_] += [f"s_cbranch_vccnz {n}_per"]
    fill[pa_] += ["s_waitcnt lgkmcnt(0)", "s_barrier"] + stamp(opt, 2)
    for b in (1, 2, 3):
        fill[pa_ + (b - 1) // 2].append(f"ds_read_b128 {vr(vMemA+4*b,4)}, v{vL16} offset:{L_MEM + ((w+b)%4)*1024} ; @ma{b}")
        fill[1 + 4 * b].append(f"WAITL ma{b}")
    for k in range(4):
        rd = pl.lds_read(pl.qk[pl.qk_lds_pos[4 + k]], vSt + 8 * k, f"su{k}")
        fill[4 + 2 * k].append(rd[0])
        fill[5 + 2 * k].insert(0, rd[1])
        fill[pl.qk_lds_pos[4 + k] + 1].append(f"WAITL su{k}")
    pl_ = par("posL", [8, 8, 8, 8])
    pb_ = opt.get("barB", 13)
    assert 1 <= pa_ <= 3 and pa_ < pl_ and pl_ + 3 <= pb_ <= 17 and (opt.get("gtx", 17) > pb_ or not opt.get("gate", 1))
    ck = ck4(memL)
    wl = f"ds_write_b128 v{vL16}, {vr(memL,4)} offset:{L_MEM + 4096 + w*1024} ; @lw"
    fill[pl_] += ["WAITV pl", wl]
    for k in range(3):
        fill[pl_ + 1 + k].append(ck[k])
    fill[pb_] += [f"s_cbranch_vccnz {n}_plr", f"{n}_plok:", "WAITL lw", "s_barrier"]
    X += [f"{n}_plr:"] + pollL + cnt(47, 0x10000) + ["s_waitcnt vmcnt(0)", wl] + ck + ["s_waitcnt lgkmcnt(0)", f"s_cbranch_vccz {n}_plok"] + bail(f"{n}_plr")
    for b in (5, 6, 7):
        fill[pb_ + (b - 4) // 2].append(f"ds_read_b128 {vr(vMemA+4*b,4)}, v{vL16} offset:{L_MEM + 4096 + ((w+b)%4)*1024} ; @ma{b}")
        fill[13 + b].append(f"WAITL ma{b}")
    fill[pb_ + 2] += [f"s_add_u32 s{sMBr}, s{sMBr}, 0x2000", f"s_bitset0_b32 s{sMBr}, 15"]
    fill[pb_ + 3] += [f"s_add_u32 s{sMBl}, s{sMBr}, 0x1000"]
    kvl = [f"buffer_store_dword v{vVMh}, v{vMBst}, {WSR}, s{sMBp} offen",
           f"buffer_load_dwordx4 v{vL16}, {WSR}, s{sKV} offen sc1 lds",
           f"buffer_load_dwordx4 v{vL16}, {WSR}, s{sKV} offen offset:1024 sc1 lds",
           f"buffer_load_dwordx4 {vr(vVXn,4)}, v{vL16}, {WSR}, s{sKV2} offen sc1",
           f"buffer_load_dwordx4 {vr(vVXn+4,4)}, v{vL16}, {WSR}, s{sKV2} offen offset:1024 sc1",
           f"buffer_load_dword v{vFlag}, off, {WSR}, s{sFL} sc1", mx]
    if opt.get("nokv"):
        kvl[1:5] = ["s_nop 0"] * 4
    if opt.get("trace"):
        kvl[6] = f"buffer_store_dword v17, v{vL16}, {WSR}, s36 offen"
    fill[2].insert(0, f"v_mov_b32 v{vVMh}, -1")
    kvS = opt.get("kvS", 1)
    if not kvS:
        for k, g in enumerate(kvl):
            fill[min(33, pb_ + 2 + (w & 1) + 2 * k)].append(g)
    GTr, GTf, GTw, GTd = 10, 19, 12, 13
    gate = opt.get("gate", 1)
    gtl = f"buffer_load_dword v{GTf}, v{GTr}, {WSR}, s{sHUr} offen sc1"
    look = gate and w == 3
    if gate and w == 0:
        gx = opt.get("gtx", 17)
        fill[gx - 2].append(f"v_lshlrev_b32 v{GTw}, 4, v{vL16}")
        fill[gx - 1].append(f"v_mov_b32 v{GTd}, s{sStep}")
        fill[gx] += [f"s_mov_b64 exec, {(1 << opt.get('hurep', 4)) - 1}", f"buffer_store_dword v{GTd}, v{GTw}, {WSR}, s{sHUw} offen", "s_mov_b64 exec, -1"]
    if look:
        for p in opt.get("gtl", [21, 23, 25, 27, 29, 31, 33]):
            fill[p].append(gtl)
    Tq = 92
    kx = {(0, 0): 104, (1, 0): 108, (0, 1): 112, (1, 1): 116, (0, 2): 120, (0, 3): 80, (1, 2): 104, (1, 3): 108}

    def kxr(t, i):
        return f"ds_read_b128 {vr(kx[(t,i)],4)}, v{vKX} offset:{L_KX + ((w+i)%4)*2048 + t*1024} ; @kx{t}{i}"
    for k, (t, i) in enumerate([(0, 0), (1, 0), (0, 1), (1, 1), (0, 2)]):
        fill[22 + 2 * k].append(kxr(t, i))
    for p0, r, d in ((23, aK0, Tq), (27, aQ0, Tq + 1), (31, aK1, Tq + 2)):
        for k, x in enumerate([add(r), add(r + 1), cv(d, r)]):
            fill[p0 + k].insert(0, x)
    fill[30].append(f"ds_write_b64 v{vQKw}, {vr(Tq,2)} offset:{L_QK + w*1088}")
    L += weave(main, fill) + stamp(opt, 3)
    qk = [vQKown, 92, 96, 100]

    def qkr(i, y):
        return f"ds_read_b64_tr_b16 {vr(qk[i]+2*y,2)}, v{vQKr} offset:{L_QK + ((w+i)%4)*1088 + y*272} ; @qk{i}"
    L += [V[2], "s_nop 3", add(aQ1), add(aQ1 + 1), cv(Tq + 3, aQ1),
          f"ds_write_b64 v{vQKw}, {vr(Tq+2,2)} offset:{L_QK + w*1088 + 544} ; @qw",
          qkr(0, 0), qkr(0, 1)]
    gc = lambda k: f"v_cmp_gt_u32 s[{sG[k%3]}:{sG[k%3]+1}], s{sStep}, v{GTf}"
    if look and gate == 1:
        g1 = f"v_cmp_gt_u32 vcc, s{sStep}, v{GTf}"
        L += [V[3], kxr(0, 3), gtl, V[4], g1, V[5], gtl, V[6], f"s_cbranch_vccnz {n}_gt", f"{n}_gtok:"]
        X += [f"{n}_gt:"]
        for k in range(4):
            X += cnt(46, 0x10000) + [g1, gtl, f"s_cbranch_vccz {n}_gtok"]
        X += bail(f"{n}_gt")
    elif look and gate == 3:
        g1 = f"v_cmp_gt_u32 vcc, s{sStep}, v{GTf}"
        L += [V[3], kxr(0, 3), g1, V[4], gtl, V[5], f"s_cbranch_vccz {n}_gtok", f"{n}_gt:"]
        for k in range(6):
            L += cnt(46, 0x10000) + [g1, gtl, f"s_cbranch_vccz {n}_gtok"]
        L += bail(f"{n}_gt") + [f"{n}_gtok:", V[6]]
    elif look:
        L += [V[3], kxr(0, 3), gc(0), V[4], gtl, gc(1), V[5], f"{n}_gt:"]
        for k in range(12):
            L += [gc(k + 2), f"s_cmp_eq_u64 s[{sG[k%3]}:{sG[k%3]+1}], 0", f"s_cbranch_scc1 {n}_gtok"] + cnt(46, 0x10000)
            if k % 2 == 0:
                L += [gtl]
        L += bail(f"{n}_gt") + [f"{n}_gtok:", V[6]]
    else:
        L += [V[3], kxr(0, 3), V[4], V[5], V[6]]
    L += ["WAITL qw", "s_barrier"] + stamp(opt, 4)
    L += [qkr(1, 0), qkr(1, 1), V[7], qkr(2, 0), qkr(2, 1)]
    Sx0, Sx1, Sm = 68, 72, 76
    T0, T1, T2 = 78, 79, 96

    def smm(d, aop, i):
        return f"{D32} {vr(d,4)}, {vr(aop,4)}, {vr(qk[i],4)}, " + ("0" if i == 0 else vr(d, 4))
    Px, Pm, One, Oa, La = 104, 108, 112, 92, 100
    wacc = [116, 120, 80, 124]
    Op, oA = 84, [88, 68, 72, 76]
    kv = (lambda k: [kvl[k]]) if kvS else (lambda k: [])
    L += ["WAITL qk0", smm(Sm, qk[0], 0), qkr(3, 0), qkr(3, 1), smm(Sx0, kx[(0, 0)], 0), kxr(1, 2), smm(Sx1, kx[(1, 0)], 0),
          kxr(1, 3), "WAITL qk1", smm(Sm, qk[1], 1)] + kv(0) + [smm(Sx0, kx[(0, 1)], 1)] + kv(1) + [smm(Sx1, kx[(1, 1)], 1),
          f"v_mov_b64 {vr(One,2)}, s[{sOnes}:{sOnes+1}]", "WAITL qk3",
          smm(Sm, qk[2], 2)] + kv(2) + [smm(Sm, qk[3], 3), zero(wacc[0]), zero(wacc[0] + 2),
          smm(Sx0, kx[(0, 2)], 2)] + kv(3) + [smm(Sx0, kx[(0, 3)], 3), zero(wacc[1]), zero(wacc[1] + 2), "WAITL kx13",
          smm(Sx1, kx[(1, 2)], 2), f"v_mov_b64 {vr(One+2,2)}, s[{sOnes}:{sOnes+1}]", f"v_max_f32 v{T0}, v{Sm}, v{Sm+1}",
          smm(Sx1, kx[(1, 3)], 3)] + stamp(opt, 5)
    so = []
    for k in range(4):
        so += pl.lds_read(pl.o[k], vMemA + 8 * k, f"so{k}")

    def fma(r):
        return f"v_fma_f32 v{r}, v{r}, s{sC}, -v{T0}"

    def ex(r):
        return f"v_exp_f32 v{r}, v{r}"
    L += [f"v_max3_f32 v{T0}, v{T0}, v{Sx0}, v{Sx0+1}", f"v_max3_f32 v{T0}, v{T0}, v{Sx0+2}, v{Sx0+3}",
          V[8]] + kv(4) + [f"v_mov_b32 v{Pm+1}, 0", f"v_mov_b32 v{Pm+2}, 0",
          f"v_max3_f32 v{T0}, v{T0}, v{Sx1}, v{Sx1+1}",
          f"v_max3_f32 v{T1}, v{T0}, v{Sx1+2}, v{Sx1+3}", f"v_max3_f32 v{T2}, v{T0}, v{Sx1+2}, v{Sx1+3}",
          V[9], so[0], so[1], f"v_permlane16_swap_b32 v{T1}, v{T2}",
          f"v_max_f32 v{T0}, v{T1}, v{T2}", f"v_max_f32 v{T1}, v{T1}, v{T2}",
          V[10], so[2], so[3], f"v_permlane32_swap_b32 v{T0}, v{T1}",
          f"v_max_f32 v{T0}, v{T0}, v{T1}", f"v_mul_f32 v{T0}, s{sC}, v{T0}"]
    L += [V[11]] + kv(5) + [fma(Sm), V[12], so[4], so[5], fma(Sm + 1), V[13]] + kv(6) + [fma(Sx0), V[14], so[6], fma(Sx0 + 1),
          V[15], so[7], fma(Sx0 + 2),
          ex(Sm), ex(Sm + 1), fma(Sx0 + 3), ex(Sx0), ex(Sx0 + 1),
          add(aV0), add(aV0 + 1), add(aV1), add(aV1 + 1), cv(vVMh, aV0), cv(vVMh + 1, aV1),
          cv(Pm, Sm), cv(Pm + 3, Sm), ex(Sx0 + 2), ex(Sx0 + 3),
          f"{D16} {vr(La,4)}, {vr(One,2)}, {vr(Pm,2)}, 0", fma(Sx1), fma(Sx1 + 1), fma(Sx1 + 2),
          f"{D16} {vr(Oa,4)}, {vr(vVMh,2)}, {vr(Pm,2)}, 0", fma(Sx1 + 3), ex(Sx1), ex(Sx1 + 1),
          f"{D16} {vr(Oa+4,4)}, {vr(vVMh,2)}, {vr(Pm+2,2)}, 0", ex(Sx1 + 2), ex(Sx1 + 3),
          cv(Px, Sx0), cv(Px + 1, Sx0 + 2), cv(Px + 2, Sx1), cv(Px + 3, Sx1 + 2), zero(wacc[2]), zero(wacc[2] + 2),
          f"{D32} {vr(La,4)}, {vr(One,4)}, {vr(Px,4)}, {vr(La,4)}", f"v_xor_b32 v{vKX}, 0x2000, v{vKX}",
          f"{D32} {vr(Oa,4)}, {vr(vVX,4)}, {vr(Px,4)}, {vr(Oa,4)}", f"s_add_u32 s{sMX}, s{sMX}, 0x2000",
          f"{D32} {vr(Oa+4,4)}, {vr(vVX+4,4)}, {vr(Px,4)}, {vr(Oa+4,4)}"] + stamp(opt, 6)

    def mul(r):
        return f"v_mul_f32 v{r}, v{La}, v{r}"
    L += [f"v_rcp_f32 v{La}, v{La}", "s_nop 1",
          mul(Oa), mul(Oa + 1), mul(Oa + 2), mul(Oa + 3), mul(Oa + 4), mul(Oa + 5), mul(Oa + 6), mul(Oa + 7),
          cv(Op, Oa), cv(Op + 1, Oa + 2), cv(Op + 2, Oa + 4), cv(Op + 3, Oa + 6),
          f"s_mov_b64 exec, s[{sMaskQ}:{sMaskQ+1}]",
          f"ds_write_b128 v{vO}, {vr(Op,4)} offset:{L_O + w*512} ; @ow", "s_mov_b64 exec, -1"]
    for q in range(4):
        L.append(f"v_mov_b32_dpp v{oA[0]+q}, v{Op+q} quad_perm:[2,3,2,3] row_mask:0xf bank_mask:0xf")
    L += ["WAITL so3", "s_nop 0"]
    main = []
    for p, f in enumerate(pl.o):
        b = pl.reg[f] if f in pl.reg else vMemA + 8 * (pl.o_lds_pos.index(p) % 4)
        main.append(sm(wacc[f[2]], oA[f[1]], b))
    fill = {p: [] for p in range(-1, 16)}
    po = opt.get("barpos2", 0)
    fill[po] += ["WAITL ow", "s_barrier"] + stamp(opt, 7)
    for i in (1, 2, 3):
        fill[po].append(f"ds_read_b128 {vr(oA[i],4)}, v{vO} offset:{L_O + ((w+i)%4)*512} ; @oa{i}")
    for k in range(4):
        rd = pl.lds_read(pl.o[pl.o_lds_pos[4 + k]], vMemA + 8 * k, f"sp{k}")
        fill[[1, 3, 5, 6][k]].append(rd[0])
        fill[[2, 4, 6, 7][k]].append(rd[1])
        fill[pl.o_lds_pos[4 + k] - 1].append(f"WAITL sp{k}")
    for i in (1, 2, 3):
        fill[2 + i].append(f"WAITL oa{i}")

    def out(sl):
        r = wacc[sl]
        return [cv(r, r), cv(r + 1, r + 2), f"v_bfi_b32 v{r}, 1, s{sTag}, v{r}", f"v_bfi_b32 v{r+1}, 1, s{sTag}, v{r+1}",
                f"buffer_store_dwordx2 {vr(r,2)}, v{vPAst}, {WSR}, s{sP[sl>>1]} offen offset:{2048*(sl&1)}"]
    for sl in range(3):
        o = out(sl)
        fill[8 + 3 * sl] += o[:4]
        fill[9 + 3 * sl].insert(0, o[4])
    L += weave(main, fill) + ["s_nop 6"] + out(3) + stamp(opt, 8) + [f"s_branch {n}_loop"]
    if opt.get("nocheck"):
        L = [x for x in L if not (x.startswith("s_cbranch_vccnz") and ("_par" in x or "_per" in x or "_plr" in x))]
    for pat in opt.get("drop", []):
        L = [x for x in L if x.startswith("s_") or x.endswith(":") or not re.search(pat, x)]
    assert f"s_cbranch_scc1 {n}_last" in L and f"s_add_u32 s{sStep}, s{sStep}, 1" in L and f"s_cmp_eq_u32 s{sStep}, 63" in L
    L = resolve_waits(L)
    errs = check_hazards(L + L[:60], name=n) if not opt.get("nocheck") else []
    for e in errs:
        print("HAZARD", e)
    assert not errs
    return L, X, iv + il + [f"v_mov_b64 {vr(memE,2)}, -1", f"v_mov_b64 {vr(memE+2,2)}, -1", f"v_mov_b32 v{GTf}, 0"]


sMaskQ, sOnes, sTag, sMBp = 14, 16, 18, 19
sP = [sPAw, 8]
sG = [50, 52, 54]


def role_r(a, opt):
    a.label("ROLE_R")
    r_setup(a, opt)
    for w in (1, 2, 3):
        a(f"s_cmp_eq_u32 s{sW}, {w}\ns_cbranch_scc1 R{w}_start")
    for w in range(4):
        pl = Plan(w)
        a.label(f"R{w}_start")
        st = r_startup(w, pl, opt)
        for e in check_hazards(st, timeaware=False, name=f"R{w}start"):
            print("HAZARD", e)
        a.lines += st
        a(f"""
        s_add_u32 s{sP[1]}, s{sPAw}, 0x1000
        s_mov_b32 s{sMaskQ}, 0xcccccccc
        s_mov_b32 s{sMaskQ+1}, 0xcccccccc
        s_mov_b32 s{sOnes}, 0x3f803f80
        s_mov_b32 s{sOnes+1}, 0x3f803f80
        """)
        if opt.get('stamps'):
            for k in range(36, 50):
                a(f's_mov_b32 s{k}, 0')
            a('s_memtime s[90:91]')
            if opt.get("trace"):
                a(f"s_mov_b32 s36, {WS_XN + 0x180000}")
        if opt.get("diag"):
            a("s_memtime s[96:97]\ns_memrealtime s[98:99]\ns_waitcnt lgkmcnt(0)")
        L, X, idle = r_loop(w, pl, opt)
        a.lines += idle
        a(f"s_waitcnt lgkmcnt(0)\ns_branch R{w}_pub")
        a(".p2align 6")
        a.lines += L + X
    a.label("R_DONE")
    if opt.get("diag"):
        a(f"""
        s_memtime s[72:73]
        s_memrealtime s[74:75]
        s_waitcnt lgkmcnt(0)
        s_mov_b32 s49, s72
        s_sub_u32 s72, s72, s96
        v_mov_b32 v20, s72
        v_mov_b32 v21, s100
        v_mov_b32 v22, s98
        v_mov_b32 v23, s74
        s_lshl_b32 s72, s{sH}, 2
        s_add_u32 s72, s72, s{sW}
        s_lshl_b32 s72, s72, 6
        s_add_u32 s72, s72, {WS_DIAG}
        buffer_store_dwordx4 v[20:23], off, s[{sWS}:{sWS+3}], s72
        """)
        if opt.get("raw"):
            a("s_mov_b32 s47, s49")
        for k in range(12):
            a(f"v_mov_b32 v{24+k}, s{36+k}")
        for k in range(3):
            a(f"buffer_store_dwordx4 v[{24+4*k}:{27+4*k}], off, s[{sWS}:{sWS+3}], s72 offset:{16+16*k}")
        if opt.get("raw") or opt.get("trace"):
            a("s_sleep 40\ns_add_u32 s72, s72, 0x2000")
            for k in range(8):
                a(f"s_memtime s[{36+4*k}:{37+4*k}]\ns_memrealtime s[{38+4*k}:{39+4*k}]")
            a("s_waitcnt lgkmcnt(0)")
            for k in range(16):
                a(f"v_mov_b32 v{40+k}, s{36+2*k}")
            for k in range(4):
                a(f"buffer_store_dwordx4 v[{40+4*k}:{43+4*k}], off, s[{sWS}:{sWS+3}], s72 offset:{16*k}")
    a("s_branch L_END")
```

```python
from asmlib import *
from layout import *

M32 = "v_mfma_f32_32x32x16_bf16"
M8 = "v_mfma_f32_32x32x8_bf16"
D32 = "v_mfma_f32_16x16x32_bf16"
WSR = f"s[{sWS}:{sWS+3}]"
sTO, sT0, sT1, sT2 = 35, 67, 68, 69


def cv(d, r):
    return f"v_cvt_pk_bf16_f32 v{d}, v{r}, v{r+1}"


def srd(a, s, p, nbytes):
    a(f"s_mov_b32 s{s}, s{p}\ns_mov_b32 s{s+1}, s{p+1}\ns_mov_b32 s{s+2}, {hex(nbytes)}\ns_mov_b32 s{s+3}, 0x20000")


def spin(a, name, load, chk, sleep=1):
    a(f"s_mov_b32 s{sTO}, 0")
    a.label(name)
    a(load)
    a("s_waitcnt vmcnt(0)")
    a(chk)
    a(f"s_cbranch_vccz {name}_ok")
    if sleep:
        a(f"s_sleep {sleep}")
    a(f"""
    s_add_u32 s{sTO}, s{sTO}, 1
    s_cmp_lt_u32 s{sTO}, {SPIN_MAX}
    s_cbranch_scc1 {name}
    s_branch L_END
    """)
    a.label(name + "_ok")


def wait_zeroed(a, name, va, vd):
    a(f"v_and_b32 v{va}, 7, v0\nv_lshlrev_b32 v{va}, 5, v{va}")
    spin(a, name, f"global_load_dword v{vd}, v{va}, s[{P_DBG}:{P_DBG+1}] offset:{DBG_ZERO} sc1", f"v_cmp_ne_u32 vcc, 32, v{vd}")


def post_flag(a, soff, sval, vt, name):
    a(f"""
    s_waitcnt vmcnt(0)
    s_barrier
    s_cmp_lg_u32 s{sW}, 0
    s_cbranch_scc1 {name}
    v_mov_b32 v{vt}, s{sval}
    s_mov_b64 exec, 1
    buffer_store_dword v{vt}, off, {WSR}, s{soff} sc1
    s_mov_b64 exec, -1
    """)
    a.label(name)


def load_proj_weights(a, mats, rowbytes, scol):
    L = Asm()
    L(f"""
    v_lshrrev_b32 v2, 4, v0
    v_and_b32 v3, 15, v0
    v_lshlrev_b32 v4, 2, v2
    v_xor_b32 v4, v4, v3
    v_lshlrev_b32 v4, 4, v4
    s_lshl_b32 s{sT0}, s{sW}, 4
    v_add_u32 v5, s{sT0}, v2
    v_mul_u32_u24 v5, {rowbytes}, v5
    v_add_u32 v4, v4, v5
    v_add_u32 v4, s{scol}, v4
    v_bfe_u32 v5, v0, 2, 2
    v_lshrrev_b32 v6, 5, v0
    v_lshl_add_u32 v6, v6, 3, v5
    v_lshlrev_b32 v6, 8, v6
    v_xor_b32 v5, s{sW}, v5
    v_lshl_add_u32 v6, v5, 6, v6
    v_bfe_u32 v5, v0, 4, 1
    v_lshl_add_u32 v6, v5, 5, v6
    v_and_b32 v5, 3, v0
    v_lshl_add_u32 v6, v5, 3, v6
    v_add_u32 v7, 0x10000, v6
    s_lshl_b32 s{sT2}, s{sW}, 12
    """)
    n = 8 * len(mats)

    def dma(c):
        s = mats[c >> 3][0]
        for i in range(4):
            L(f"""
            s_add_u32 m0, s{sT2}, {(c % 8) * 16384 + i * 1024}
            s_mov_b32 s{sT0}, {(64 * (c & 7) + 4 * i) * rowbytes}
            buffer_load_dwordx4 v4, s[{s}:{s+3}], s{sT0} offen lds ; @c{c}
            """)
    for c in range(8):
        dma(c)
    for c in range(n):
        L(f"WAITV c{c}\ns_barrier")
        if c >= 1 and c + 7 < n:
            dma(c + 7)
        f, base = mats[c >> 3][1]
        for kk in range(4):
            for y in range(2):
                o = (c % 8) * 16384 + (16 * kk + 4 * y) * 256
                L(f"ds_read_b64_tr_b16 {vr((f, base + 16 * (c & 7) + 4 * kk + 2 * y), 2)}, v{6 + (o >> 16)} offset:{o & 0xffff}")
        L("s_waitcnt lgkmcnt(0)")
    L("s_barrier")
    a.lines += resolve_waits(L.lines)


def xn_dma(a, sseg, sbuf):
    a(f"""
    s_lshl_b32 s{sT0}, s{sseg}, 15
    s_lshl_b32 s{sT1}, s{sW}, 13
    s_add_u32 s{sT0}, s{sT0}, s{sT1}
    s_add_u32 s{sT0}, s{sT0}, {WS_XN}
    s_add_u32 s{sT1}, s{sT1}, s{sbuf}
    """)
    for k in range(2):
        a(f"s_mov_b32 m0, s{sT1}\ns_nop 0")
        for i in range(4):
            a(f"buffer_load_dwordx4 v1, {WSR}, s{sT0} offen offset:{1024 * i} sc1 lds")
        if k == 0:
            a(f"s_add_u32 s{sT0}, s{sT0}, 0x1000\ns_add_u32 s{sT1}, s{sT1}, 0x1000")


def proj_gemm(a, vaddr, offs, frag, prods):
    L = []
    rd = lambda k: f"ds_read_b128 {vr(frag + 4 * (k % 4), 4)}, v{vaddr} offset:{offs(k)} ; @x{k}"
    for k in range(3):
        L.append(rd(k))
    for k in range(32):
        L.append(f"WAITL x{k}")
        for q, (acc, wb, isA) in enumerate(prods):
            wv, xv = vr((wb[0], wb[1] + 4 * k), 4), vr(frag + 4 * (k % 4), 4)
            aa, bb = (wv, xv) if isA else (xv, wv)
            L.append(f"{M32} {vr(acc,16)}, {aa}, {bb}, " + ("0" if k == 0 else vr(acc, 16)))
            if q == 0 and k + 3 < 32:
                L.append(rd(k + 3))
    a.lines += resolve_waits(L)


def wait_xn(a, name):
    a("v_lshlrev_b32 v2, 6, v0")
    wait_zeroed(a, name + "_z", 3, 4)
    a(f"s_mov_b32 s{sT0}, {WS_FL_XN}")
    spin(a, name + "_x", f"buffer_load_dword v4, v2, {WSR}, s{sT0} offen sc1", "v_cmp_ne_u32 vcc, 1, v4")


QL_XN, QL_ST, QL_MEM, QL_MASK, QL_SX = 0, 65536, 65536 + 73728, 65536 + 73728 + 8192, 65536 + 73728 + 8192 + 4096


def role_qa(a, opt):
    sHead, sRep, sIa, sIb, sBuf, sSegN, sSta, sStb, sKV, sFkv, sFo, sAct, sMx, sCn = 26, 27, 28, 29, 30, 31, 32, 33, 34, 64, 65, 66, 70, 71
    sRet = 72
    vXa, vSt, vKst, vVst, vOst, vMa, vHi = 10, 11, 12, 13, 14, 15, 16
    aK, aV, aQ, Fr, Pk = 32, 48, 64, 80, 96
    WK, WV, WQ = ("a", 0), ("a", 128), ("v", 128)
    a.label("ROLE_QA")
    srd(a, 8, P_WK, 0x400000)
    srd(a, 12, P_WV, 0x400000)
    srd(a, 16, P_WQ, 0x400000)
    a(f"""
    s_sub_u32 s{sHead}, s{sXCC}, 1
    s_lshl_b32 s{sHead}, s{sHead}, 3
    s_lshr_b32 s{sT0}, s{sH}, 2
    s_add_u32 s{sHead}, s{sHead}, s{sT0}
    s_and_b32 s{sRep}, s{sH}, 3
    s_lshl_b32 s{sBuf}, s{sHead}, 8
    v_lshlrev_b32 v1, 4, v0
    """)
    load_proj_weights(a, [(8, WK), (12, WV), (16, WQ)], 8192, sBuf)
    a(f"""
    v_lshrrev_b32 v2, 5, v0
    v_and_b32 v3, 31, v0
    v_lshlrev_b32 v4, 8, v2
    v_bfe_u32 v5, v3, 3, 1
    v_lshl_add_u32 v5, v5, 10, v4
    v_lshrrev_b32 v6, 4, v3
    v_lshl_add_u32 v5, v6, 7, v5
    v_and_b32 v7, 7, v3
    v_lshl_add_u32 v{vKst}, v7, 4, v5
    v_and_b32 v8, 15, v3
    v_lshl_add_u32 v5, v8, 4, v4
    v_lshl_add_u32 v{vVst}, v6, 10, v5
    v_mul_u32_u24 v6, {ACT_UNIT}, v6
    v_add_u32 v{vOst}, v5, v6
    v_lshrrev_b32 v5, 1, v7
    v_lshl_add_u32 v5, v5, 6, v4
    v_and_b32 v6, 1, v7
    v_lshl_add_u32 v5, v6, 4, v5
    v_add_u32 v{vMa}, {QL_MEM}, v5
    v_add_u32 v{vHi}, {QL_MEM}, v1
    v_lshlrev_b32 v2, 2, v2
    v_sub_u32 v2, v3, v2
    v_mov_b32 v3, 0xf149f2ca
    """)
    for r in range(16):
        a(f"v_cmp_gt_i32 vcc, {(r & 3) + 8 * (r >> 2)}, v2\ns_nop 1\nv_cndmask_b32 v{aK + r}, 0, v3, vcc")
    for q in range(4):
        a(f"ds_write_b128 v{vHi}, {vr(aK + 4 * q, 4)} offset:{QL_MASK - QL_MEM + 1024 * q}")
    a(f"""
    s_mul_i32 s{sKV}, s{sHead}, {KV_HEAD}
    s_lshl_b32 s{sT0}, s{sRep}, 14
    s_lshl_b32 s{sT1}, s{sW}, 11
    s_add_u32 s{sKV}, s{sKV}, s{sT0}
    s_add_u32 s{sKV}, s{sKV}, s{sT1}
    s_add_u32 s{sKV}, s{sKV}, {WS_KV}
    s_lshl_b32 s{sMx}, s{sRep}, 13
    s_add_u32 s{sMx}, s{sMx}, s{sT1}
    s_add_u32 s{sMx}, s{sMx}, {WS_MEMX}
    s_lshl_b32 s{sFkv}, s{sHead}, 7
    s_lshl_b32 s{sT0}, s{sRep}, 2
    s_add_u32 s{sFkv}, s{sFkv}, s{sT0}
    s_add_u32 s{sFo}, s{sFkv}, {WS_FL_O}
    s_add_u32 s{sFkv}, s{sFkv}, {WS_FL_KV}
    s_mul_i32 s{sAct}, s{sRep}, {2 * ACT_UNIT}
    s_lshl_b32 s{sT0}, s{sHead}, 12
    s_lshl_b32 s{sT1}, s{sW}, 10
    s_add_u32 s{sAct}, s{sAct}, s{sT0}
    s_add_u32 s{sAct}, s{sAct}, s{sT1}
    s_add_u32 s{sAct}, s{sAct}, {WS_ACT}
    s_mov_b32 s{sCn}, {hex(C_EXP)}
    s_mov_b32 s{sIa}, 0
    s_mov_b32 s{sIb}, 0
    s_mov_b32 s{sSta}, {QL_ST}
    s_mov_b32 s{sStb}, {QL_ST}
    s_mov_b32 s{sBuf}, 0
    s_mov_b32 s{sSegN}, s{sRep}
    """)
    wait_xn(a, "QA_w")
    xn_dma(a, sSegN, sBuf)
    a("s_waitcnt vmcnt(0) lgkmcnt(0)\ns_barrier")
    a.label("QA_A")
    a(f"""
    v_add_u32 v{vXa}, s{sBuf}, v1
    s_xor_b32 s{sBuf}, s{sBuf}, 0x8000
    s_add_u32 s{sSegN}, s{sSegN}, 4
    s_min_u32 s{sSegN}, s{sSegN}, 63
    """)
    xn_dma(a, sSegN, sBuf)
    proj_gemm(a, vXa, lambda k: 1024 * k, Fr, [(aK, WK, True), (aV, WV, False), (aQ, WQ, True)])
    A = [f"s_lshl_b32 s{sT0}, s{sW}, 11", f"s_add_u32 s{sT0}, s{sT0}, s{sSta}", f"v_add_u32 v{vSt}, s{sT0}, v1",
         f"s_add_u32 s{sT1}, s{sKV}, 0x2000", "s_nop 1"]
    A += [cv(Pk + q, aK + 2 * q) for q in range(8)]
    A += [f"buffer_store_dwordx4 {vr(Pk + 4 * j, 4)}, v{vKst}, {WSR}, s{sKV} offen offset:{512 * j} sc1" for j in range(2)]
    A += [cv(Pk + 8 + q, aV + 2 * q) for q in range(8)]
    A += [f"buffer_store_dwordx4 {vr(Pk + 8 + 4 * j, 4)}, v{vVst}, {WSR}, s{sT1} offen offset:{512 * j} sc1" for j in range(2)]
    A += [cv(Pk + 16 + q, aQ + 2 * q) for q in range(8)]
    for m in range(3):
        A += [f"ds_write_b128 v{vSt}, {vr(Pk + 8 * m + 4 * j, 4)} offset:{8192 * m + 1024 * j}" for j in range(2)]
    A += [f"s_add_u32 s{sKV}, s{sKV}, 0x10000", f"s_add_u32 s{sIa}, s{sIa}, 1",
          f"s_add_u32 s{sSta}, s{sSta}, 24576", f"s_cmp_eq_u32 s{sSta}, {QL_ST + 73728}", f"s_cselect_b32 s{sSta}, {QL_ST}, s{sSta}",
          "s_waitcnt lgkmcnt(0)"]
    a.lines += A
    post_flag(a, sFkv, sIa, 2, "QA_fa")
    a(f"s_cmp_lt_u32 s{sIa}, 2\ns_cbranch_scc1 QA_A")
    a.label("QA_B")
    S, Oa, Km, Vm = 32, 48, 48, 64
    Qo, Vx, Mp, Sm, Px, Pm, Vmp = 96, 104, 112, 112, 80, 88, 90
    B = [f"v_add_u32 v{vSt}, s{sStb}, v1", f"s_lshl_b32 s{sT0}, s{sW}, 11", f"v_add_u32 v2, s{sT0}, v{vSt}", f"v_add_u32 v3, s{sT0}, v{vHi}"]
    B += [f"ds_read_b128 {vr(S + 4 * q, 4)}, v{vHi} offset:{QL_MASK - QL_MEM + 1024 * q}" for q in range(4)]
    kq = lambda k: [f"ds_read_b128 {vr(48 + 8 * (k % 4), 4)}, v{vSt} offset:{1024 * k}",
                    f"ds_read_b128 {vr(52 + 8 * (k % 4), 4)}, v{vSt} offset:{16384 + 1024 * k} ; @s{k}"]
    for k in range(3):
        B += kq(k)
    for k in range(8):
        B += [f"WAITL s{k}", f"{M32} {vr(S,16)}, {vr(48 + 8 * (k % 4), 4)}, {vr(52 + 8 * (k % 4), 4)}, {vr(S,16)}"]
        if k + 3 < 8:
            B += kq(k + 3)
    B += [f"ds_read_b128 {vr(Qo + 4 * j, 4)}, v2 offset:{16384 + 1024 * j}" for j in range(2)]
    B += [f"ds_read_b128 {vr(Vx + 4 * j, 4)}, v2 offset:{8192 + 1024 * j}" for j in range(2)]
    a.lines += resolve_waits(B)
    spin(a, "QA_m", f"buffer_load_dwordx4 {vr(Mp,4)}, v1, {WSR}, s{sMx} offen sc1\nbuffer_load_dwordx4 {vr(Mp+4,4)}, v1, {WSR}, s{sMx} offen offset:1024 sc1",
         f"v_max3_u32 v4, v{Mp}, v{Mp+1}, v{Mp+2}\nv_max3_u32 v5, v{Mp+3}, v{Mp+4}, v{Mp+5}\nv_max3_u32 v4, v4, v{Mp+6}, v{Mp+7}\n"
         f"v_max_u32 v4, v4, v5\nv_cmp_eq_u32 vcc, -1, v4", sleep=opt.get("qsleep", 2))
    a(f"""
    ds_write_b128 v3, {vr(Mp,4)}
    ds_write_b128 v3, {vr(Mp+4,4)} offset:1024
    s_waitcnt lgkmcnt(0)
    s_barrier
    """)
    moff = lambda k: ((k >> 1) & 3) * 2048 + (k >> 4) * 1024 + ((k >> 3) & 1) * 512 + (k & 1) * 32
    proj_gemm(a, vMa, moff, Fr, [(Km, WK, True), (Vm, WV, False)])
    B = [f"s_lshl_b32 s{sT0}, s{sW}, 10", f"v_add_u32 v3, s{sT0}, v{vHi}", "s_nop 1"]
    B += [cv(Fr + q, Km + 2 * q) for q in range(8)]
    B += [cv(Vmp, Vm), cv(Vmp + 1, Vm + 2),
          f"{M32} {vr(Km,16)}, {vr(Fr,4)}, {vr(Qo,4)}, 0", f"{M32} {vr(Km,16)}, {vr(Fr+4,4)}, {vr(Qo+4,4)}, {vr(Km,16)}"]
    B += [f"v_max3_f32 v4, v{S}, v{S+1}, v{S+2}"] + [f"v_max3_f32 v4, v4, v{S+3+2*q}, v{S+4+2*q}" for q in range(6)]
    B += [f"v_max_f32 v4, v4, v{S+15}", "s_nop 3",
          f"ds_write_b128 v3, {vr(Km,4)} offset:{QL_SX - QL_MEM}", "s_waitcnt lgkmcnt(0)", "s_barrier"]
    B += [f"ds_read_b128 {vr(Sm + 4 * q, 4)}, v{vHi} offset:{QL_SX - QL_MEM + 1024 * q}" for q in range(4)]
    B += ["s_waitcnt lgkmcnt(0)"]
    for q in range(4):
        B += [f"v_add_f32 v{Sm+q}, v{Sm+q}, v{Sm+4+q}", f"v_add_f32 v{Sm+8+q}, v{Sm+8+q}, v{Sm+12+q}"]
    B += [f"v_add_f32 v{Sm+q}, v{Sm+q}, v{Sm+8+q}" for q in range(4)]
    B += [f"v_max3_f32 v4, v4, v{Sm}, v{Sm+1}", f"v_max3_f32 v5, v4, v{Sm+2}, v{Sm+3}", f"v_max3_f32 v4, v4, v{Sm+2}, v{Sm+3}",
          "s_nop 1", "v_permlane32_swap_b32 v4, v5", "v_max_f32 v4, v4, v5", f"v_mul_f32 v4, s{sCn}, v4"]
    regs = [Sm + q for q in range(4)] + [S + q for q in range(16)]
    B += [f"v_fma_f32 v{r}, v{r}, s{sCn}, -v4" for r in regs]
    B += [f"v_exp_f32 v{r}, v{r}" for r in regs]
    B += [cv(Pm, Sm), cv(Pm + 1, Sm + 2)] + [cv(Px + q, S + 2 * q) for q in range(8)]
    B += [f"{M8} {vr(Oa,16)}, {vr(Vmp,2)}, {vr(Pm,2)}, 0", f"v_add_f32 v5, v{regs[0]}, v{regs[1]}", f"v_add_f32 v6, v{regs[2]}, v{regs[3]}"]
    for j in range(2):
        B += [f"{M32} {vr(Oa,16)}, {vr(Vx + 4 * j, 4)}, {vr(Px + 4 * j, 4)}, {vr(Oa,16)}"]
        for q in range(4):
            B += [f"v_add_f32 v5, v5, v{S + 8 * j + 2 * q}", f"v_add_f32 v6, v6, v{S + 8 * j + 2 * q + 1}"]
    B += ["v_add_f32 v4, v5, v6", "v_add_f32 v5, v5, v6", "s_nop 1", "v_permlane32_swap_b32 v4, v5", "v_add_f32 v4, v4, v5",
          "v_rcp_f32 v4, v4", "s_nop 0"]
    B += [f"v_mul_f32 v{Oa+q}, v4, v{Oa+q}" for q in range(16)]
    B += [cv(Px + q, Oa + 2 * q) for q in range(8)]
    B += [f"buffer_store_dwordx4 {vr(Px + 4 * j, 4)}, v{vOst}, {WSR}, s{sAct} offen offset:{512 * j} sc1" for j in range(2)]
    B += [f"s_add_u32 s{sAct}, s{sAct}, {8 * ACT_UNIT}", f"s_add_u32 s{sMx}, s{sMx}, 0x8000", f"s_add_u32 s{sIb}, s{sIb}, 1",
          f"s_add_u32 s{sStb}, s{sStb}, 24576", f"s_cmp_eq_u32 s{sStb}, {QL_ST + 73728}", f"s_cselect_b32 s{sStb}, {QL_ST}, s{sStb}"]
    a.lines += B
    post_flag(a, sFo, sIb, 2, "QA_fb")
    a(f"""
    s_cmp_lt_u32 s{sIa}, 16
    s_cbranch_scc1 QA_A
    s_cmp_lt_u32 s{sIb}, 16
    s_cbranch_scc1 QA_B
    s_branch L_END
    """)


def role_fu(a, opt):
    sCu, sRep, sI, sBuf, sSegN, sAct, sFl, sCn, sOk = 26, 27, 28, 30, 31, 32, 33, 34, 29
    vXa, vOst = 10, 11
    aG, aU, Fr, Pk = 32, 48, 64, 80
    W1, W3 = ("a", 0), ("a", 128)
    a.label("ROLE_FU")
    a(f"s_cmp_ge_u32 s{sH}, 22\ns_cbranch_scc1 L_END")
    srd(a, 8, P_W1, 512 * 2752)
    srd(a, 12, P_W3, 512 * 2752)
    a(f"""
    s_cmp_ge_u32 s{sH}, 11
    s_cselect_b32 s{sRep}, 1, 0
    s_mul_i32 s{sT0}, s{sRep}, 11
    s_sub_u32 s{sCu}, s{sH}, s{sT0}
    s_lshl_b32 s{sBuf}, s{sCu}, 8
    v_lshlrev_b32 v1, 4, v0
    """)
    load_proj_weights(a, [(8, W1), (12, W3)], 2752, sBuf)
    a(f"""
    v_lshrrev_b32 v2, 5, v0
    v_lshlrev_b32 v4, 8, v2
    v_and_b32 v8, 15, v0
    v_lshl_add_u32 v5, v8, 4, v4
    v_bfe_u32 v6, v0, 4, 1
    v_mul_u32_u24 v6, {ACT_UNIT}, v6
    v_add_u32 v{vOst}, v5, v6
    s_lshl_b32 s{sT0}, s{sCu}, 2
    s_add_u32 s{sT0}, s{sT0}, s{sW}
    s_lshl_b32 s{sT0}, s{sT0}, 10
    s_mul_i32 s{sAct}, s{sRep}, {2 * ACT_UNIT}
    s_add_u32 s{sAct}, s{sAct}, s{sT0}
    s_add_u32 s{sAct}, s{sAct}, {WS_ACT + 128 * 1024}
    s_lshl_b32 s{sFl}, s{sH}, 6
    s_add_u32 s{sFl}, s{sFl}, {WS_FL_HF}
    s_mov_b32 s{sCn}, 0xbfb8aa3b
    s_mov_b32 s{sI}, 0
    s_mov_b32 s{sBuf}, 0
    s_mov_b32 s{sSegN}, s{sRep}
    """)
    wait_xn(a, "FU_w")
    xn_dma(a, sSegN, sBuf)
    a("s_waitcnt vmcnt(0)\ns_barrier")
    a.label("FU_A")
    a(f"""
    v_add_u32 v{vXa}, s{sBuf}, v1
    s_xor_b32 s{sBuf}, s{sBuf}, 0x8000
    s_add_u32 s{sSegN}, s{sSegN}, 2
    s_min_u32 s{sSegN}, s{sSegN}, 63
    """)
    xn_dma(a, sSegN, sBuf)
    proj_gemm(a, vXa, lambda k: 1024 * k, Fr, [(aG, W1, True), (aU, W3, True)])
    T = 96
    A = ["s_nop 3"] + [f"v_mul_f32 v{T+q}, s{sCn}, v{aG+q}" for q in range(16)]
    A += [f"v_exp_f32 v{T+q}, v{T+q}" for q in range(16)]
    A += [f"v_add_f32 v{T+q}, 1.0, v{T+q}" for q in range(16)]
    A += [f"v_rcp_f32 v{T+q}, v{T+q}" for q in range(16)]
    A += [f"v_mul_f32 v{aG+q}, v{aG+q}, v{T+q}" for q in range(16)]
    A += [f"v_mul_f32 v{aG+q}, v{aG+q}, v{aU+q}" for q in range(16)]
    A += [cv(Pk + q, aG + 2 * q) for q in range(8)]
    A += [f"buffer_store_dwordx4 {vr(Pk + 4 * j, 4)}, v{vOst}, {WSR}, s{sAct} offen offset:{512 * j} sc1" for j in range(2)]
    A += [f"s_add_u32 s{sAct}, s{sAct}, {4 * ACT_UNIT}", f"s_add_u32 s{sI}, s{sI}, 1"]
    a.lines += A
    post_flag(a, sFl, sI, 2, "FU_f")
    a(f"s_cmp_lt_u32 s{sI}, 32\ns_cbranch_scc1 FU_A\ns_branch L_END")


def layer_norm(a, sF):
    X, Y = 32, 64
    L = Asm()
    L(f"""
    v_and_b32 v2, 7, v0
    v_lshrrev_b32 v3, 3, v0
    s_lshl_b32 s{sT0}, s{sW}, 3
    v_add_u32 v2, s{sT0}, v2
    v_lshlrev_b32 v4, 10, v2
    v_lshl_add_u32 v4, v3, 4, v4
    v_lshlrev_b32 v5, 9, v3
    v_lshl_add_u32 v5, v2, 4, v5
    s_lshl_b32 s{sT0}, s{sF}, 15
    """)
    for i in range(8):
        L(f"buffer_load_dwordx4 {vr(X + 4 * i, 4)}, v4, s[8:11], s{sT0} offen offset:{128 * i}")
    L("s_waitcnt vmcnt(0)")
    for q in range(32):
        L(f"v_lshlrev_b32 v{Y + 2*q}, 16, v{X+q}\nv_and_b32 v{Y + 2*q + 1}, 0xffff0000, v{X+q}")

    def reduce(r):
        L(f"""
        s_nop 1
        v_add_f32_dpp v{r}, v{r}, v{r} row_ror:8 row_mask:0xf bank_mask:0xf
        v_mov_b32 v{r+1}, v{r}
        s_nop 1
        v_permlane16_swap_b32 v{r}, v{r+1}
        v_add_f32 v{r}, v{r}, v{r+1}
        v_mov_b32 v{r+1}, v{r}
        s_nop 1
        v_permlane32_swap_b32 v{r}, v{r+1}
        v_add_f32 v{r}, v{r}, v{r+1}
        v_mul_f32 v{r}, 0x3b000000, v{r}
        """)

    def round_bf16(r):
        L(f"v_cvt_pk_bf16_f32 v{r}, v{r}, v{r}\nv_lshlrev_b32 v{r}, 16, v{r}")
    for q in range(4):
        L(f"v_add_f32 v{6+q}, v{Y+q}, v{Y+4+q}")
    for q in range(8, 64):
        L(f"v_add_f32 v{6 + (q & 3)}, v{6 + (q & 3)}, v{Y+q}")
    L("v_add_f32 v6, v6, v7\nv_add_f32 v8, v8, v9\nv_add_f32 v6, v6, v8")
    reduce(6)
    for q in range(64):
        L(f"v_sub_f32 v{12 + (q & 3)}, v{Y+q}, v6")
        L(f"v_mul_f32 v{8 + q}, v{12 + q}, v{12 + q}" if q < 4 else f"v_fmac_f32 v{8 + (q & 3)}, v{12 + (q & 3)}, v{12 + (q & 3)}")
    L("v_add_f32 v8, v8, v9\nv_add_f32 v10, v10, v11\nv_add_f32 v8, v8, v10")
    reduce(8)
    round_bf16(6)
    round_bf16(8)
    L("v_add_f32 v8, 0x3727c5ac, v8")
    round_bf16(8)
    L("v_sqrt_f32 v8, v8\ns_nop 0")
    round_bf16(8)
    L("v_rcp_f32 v8, v8")
    for q in range(64):
        L(f"v_sub_f32 v{Y+q}, v{Y+q}, v6")
    for q in range(32):
        L(cv(X + q, Y + 2 * q))
    for q in range(32):
        L(f"v_lshlrev_b32 v{Y + 2*q}, 16, v{X+q}\nv_and_b32 v{Y + 2*q + 1}, 0xffff0000, v{X+q}")
    for q in range(64):
        L(f"v_mul_f32 v{Y+q}, v{Y+q}, v8")
    for q in range(32):
        L(cv(X + q, Y + 2 * q))
    L(f"s_add_u32 s{sT0}, s{sT0}, {WS_XN}")
    for i in range(8):
        L(f"buffer_store_dwordx4 {vr(X + 4 * i, 4)}, v5, {WSR}, s{sT0} offen sc1\ns_add_u32 s{sT0}, s{sT0}, 0x1000")
    a.lines += L.lines


def role_f(a, opt):
    sF, sU, sAo, sAh, sAl, sNeed, sFo, sFh, sXo, sRed, sOne = 26, 27, 28, 29, 30, 31, 32, 33, 34, 64, 65
    vFo, vFh, vX, vRed, vHv, vXr, Acc, Hf, Ob = 10, 11, 12, 13, 14, 16, 20, 28, 72
    NB = 24
    a.label("ROLE_F")
    srd(a, 8, P_X, 2048 * 1024)
    srd(a, 12, P_WO, 0x400000)
    srd(a, 16, P_W2, 1376 * 1024)
    srd(a, 20, P_OUT, 2048 * 1024)
    a(f"""
    s_sub_u32 s{sF}, s{sXCC}, 5
    s_lshl_b32 s{sF}, s{sF}, 5
    s_add_u32 s{sF}, s{sF}, s{sH}
    v_lshlrev_b32 v1, 4, v0
    """)
    layer_norm(a, sF)
    wait_zeroed(a, "F_z", 3, 4)
    a(f"s_lshl_b32 s{sFo}, s{sF}, 6\ns_add_u32 s{sFo}, s{sFo}, {WS_FL_XN}\ns_mov_b32 s{sOne}, 1")
    post_flag(a, sFo, sOne, 2, "F_fx")
    a(f"""
    s_and_b32 s{sXo}, s{sF}, 15
    s_lshl_b32 s{sXo}, s{sXo}, 6
    v_lshrrev_b32 v2, 2, v0
    v_lshlrev_b32 v2, 10, v2
    v_and_b32 v3, 3, v0
    v_lshl_add_u32 v2, v3, 4, v2
    v_add_u32 v2, s{sXo}, v2
    v_lshrrev_b32 v4, 5, v0
    v_lshlrev_b32 v4, 4, v4
    v_bfe_u32 v5, v0, 2, 3
    v_add_u32 v4, v4, v5
    v_lshlrev_b32 v4, 6, v4
    v_lshl_add_u32 v4, v3, 4, v4
    s_mul_i32 s{sT2}, s{sW}, 40960
    v_add_u32 v4, s{sT2}, v4
    """)
    for rnd, (s, first, cnt, dst) in enumerate([(12, 0, 16, ("a", 0)), (12, 16, 16, ("a", 128)), (16, 0, 11, ("v", 168))]):
        a(f"s_mul_i32 s{sT0}, s{sW}, {(32 if s == 12 else 11) * 32768}\ns_add_u32 s{sT0}, s{sT0}, {first * 32768}")
        for k in range(2 * cnt):
            a(f"s_add_u32 m0, s{sT2}, {1024 * k}\ns_nop 0\nbuffer_load_dwordx4 v2, s[{s}:{s+3}], s{sT0} offen lds\ns_add_u32 s{sT0}, s{sT0}, 0x4000")
        a("s_waitcnt vmcnt(0)")
        for k in range(cnt):
            for t in range(2):
                for y in range(2):
                    a(f"ds_read_b64_tr_b16 {vr((dst[0], dst[1] + 8 * k + 4 * t + 2 * y), 2)}, v4 offset:{2048 * k + 512 * y + 8 * t}")
            if k % 2 == 1:
                a("s_waitcnt lgkmcnt(0)")
        a("s_waitcnt lgkmcnt(0)")
    a(f"""
    s_barrier
    s_lshr_b32 s{sU}, s{sF}, 4
    v_and_b32 v2, 7, v0
    v_lshlrev_b32 v{vFo}, 7, v2
    v_min_u32 v2, 10, v0
    v_lshlrev_b32 v{vFh}, 6, v2
    v_and_b32 v2, 15, v0
    v_lshrrev_b32 v3, 4, v0
    v_lshlrev_b32 v2, 10, v2
    v_lshl_add_u32 v2, v3, 4, v2
    v_add_u32 v{vX}, s{sXo}, v2
    v_mov_b32 v{vHv}, 0
    s_mov_b32 s{sRed}, 0
    s_lshr_b32 s{sT0}, s{sU}, 1
    s_mul_i32 s{sFh}, s{sT0}, {11 * 64}
    s_add_u32 s{sFh}, s{sFh}, {WS_FL_HF}
    """)

    def hf_fetch(name):
        a(f"""
        s_lshr_b32 s{sNeed}, s{sU}, 2
        v_cmp_ge_u32 vcc, s{sNeed}, v{vHv}
        s_cbranch_vccz {name}_ok
        """)
        spin(a, name, f"buffer_load_dword v{vHv}, v{vFh}, {WSR}, s{sFh} offen sc1", f"v_cmp_ge_u32 vcc, s{sNeed}, v{vHv}")
        a(f"""
        s_mul_i32 s{sAo}, s{sU}, {ACT_UNIT}
        s_add_u32 s{sAo}, s{sAo}, {WS_ACT}
        s_mul_i32 s{sT0}, s{sW}, 11
        s_add_u32 s{sT1}, s{sT0}, 10
        s_min_u32 s{sT1}, s{sT1}, 42
        s_lshl_b32 s{sT0}, s{sT0}, 10
        s_lshl_b32 s{sT1}, s{sT1}, 10
        s_add_u32 s{sAh}, s{sAo}, {128 * 1024}
        s_add_u32 s{sAl}, s{sAh}, s{sT1}
        s_add_u32 s{sAh}, s{sAh}, s{sT0}
        s_lshl_b32 s{sT0}, s{sW}, 15
        s_add_u32 s{sAo}, s{sAo}, s{sT0}
        """)
        for k in range(10):
            a(f"buffer_load_dwordx4 {vr(Hf + 4 * k, 4)}, v1, {WSR}, s{sAh} offen offset:{1024 * (k & 3)} sc1")
            if k & 3 == 3:
                a(f"s_add_u32 s{sAh}, s{sAh}, 0x1000")
        a(f"buffer_load_dwordx4 {vr(Hf + 40, 4)}, v1, {WSR}, s{sAl} offen sc1")
    hf_fetch("F_h0")
    a.label("F_U")
    a(f"""
    s_lshl_b32 s{sXo}, s{sU}, 14
    buffer_load_dwordx4 {vr(vXr,4)}, v{vX}, s[8:11], s{sXo} offen
    s_waitcnt vmcnt(1)
    """)
    for k in range(11):
        for t in range(2):
            a(f"{D32} {vr(Acc + 4 * t, 4)}, {vr(168 + 8 * k + 4 * t, 4)}, {vr(Hf + 4 * k, 4)}, " + ("0" if k == 0 else vr(Acc + 4 * t, 4)))
    a(f"""
    s_lshr_b32 s{sNeed}, s{sU}, 3
    s_bfe_u32 s{sT0}, s{sU}, 0x20001
    s_lshl_b32 s{sT0}, s{sT0}, 2
    s_lshl_b32 s{sFo}, s{sW}, 10
    s_add_u32 s{sFo}, s{sFo}, s{sT0}
    s_add_u32 s{sFo}, s{sFo}, {WS_FL_O}
    """)
    spin(a, "F_o", f"buffer_load_dword v2, v{vFo}, {WSR}, s{sFo} offen sc1", f"v_cmp_ge_u32 vcc, s{sNeed}, v2", sleep=opt.get("fsleep", 1))
    L = []

    def ld(k):
        out = [f"buffer_load_dwordx4 {vr(Ob + 4 * (k % NB), 4)}, v1, {WSR}, s{sAo} offen offset:{1024 * (k & 3)} sc1 ; @o{k}"]
        if k & 3 == 3:
            out.append(f"s_add_u32 s{sAo}, s{sAo}, 0x1000")
        return out
    for k in range(NB):
        L += ld(k)
    for k in range(32):
        L.append(f"WAITV o{k}")
        for t in range(2):
            L.append(f"{D32} {vr(Acc + 4 * t, 4)}, {vr(('a', 8 * k + 4 * t), 4)}, {vr(Ob + 4 * (k % NB), 4)}, {vr(Acc + 4 * t, 4)}")
        if k + NB < 32:
            L += ld(k + NB)
    a.lines += resolve_waits(L)
    a(f"""
    s_lshl_b32 s{sT0}, s{sW}, 11
    s_add_u32 s{sT0}, s{sT0}, s{sRed}
    v_add_u32 v{vRed}, s{sT0}, v1
    v_add_u32 v2, s{sRed}, v1
    s_xor_b32 s{sRed}, s{sRed}, 0x2000
    s_add_u32 s{sU}, s{sU}, 4
    s_nop 1
    ds_write_b128 v{vRed}, {vr(Acc,4)}
    ds_write_b128 v{vRed}, {vr(Acc+4,4)} offset:1024
    s_waitcnt lgkmcnt(0)
    s_barrier
    s_cmp_lg_u32 s{sW}, 0
    s_cbranch_scc1 F_next
    """)
    for q in range(6):
        a(f"ds_read_b128 {vr(Ob + 4 * q, 4)}, v2 offset:{2048 + 1024 * q}")
    for q in range(4):
        a(f"v_lshlrev_b32 v{Ob + 24 + 2*q}, 16, v{vXr+q}\nv_and_b32 v{Ob + 25 + 2*q}, 0xffff0000, v{vXr+q}")
    for q in range(8):
        a(f"v_add_f32 v{Acc+q}, v{Acc+q}, v{Ob + 24 + q}")
    a("s_waitcnt lgkmcnt(0)")
    for q in range(8):
        a(f"v_add_f32 v{Ob+q}, v{Ob+q}, v{Ob+8+q}\nv_add_f32 v{Acc+q}, v{Acc+q}, v{Ob+16+q}")
    for q in range(8):
        a(f"v_add_f32 v{Acc+q}, v{Acc+q}, v{Ob+q}")
    for q in range(4):
        a(cv(Ob + 32 + q, Acc + 2 * q))
    a(f"buffer_store_dwordx4 {vr(Ob + 32, 4)}, v{vX}, s[20:23], s{sXo} offen")
    a.label("F_next")
    a(f"s_cmp_ge_u32 s{sU}, 128\ns_cbranch_scc1 L_END")
    hf_fetch("F_h1")
    a("s_branch F_U")
```

```python
import sys
from asmlib import *
from layout import *
import role_r, role_w

NAME = "parallel_sum__memory_aug_recurrent_mem_tr__glu_gated_swiglu__prompt"
L_BC = 32000
BEST = {"gate": 0, "kvS": 0, "earlyE": 0, "dep": [3, 3, 3, 3], "gapE": 20, "dA": [15, 24, 50, 63], "dE": [16, 18, 0, 0],
        "posL": [11, 11, 11, 11], "barB": 15, "barA": 2}

def entry(a, opt):
    a(f"""
    s_cmp_ge_u32 s2, 256
    s_cbranch_scc1 L_END
    """)
    if opt.get("diag"):
        a("s_memrealtime s[100:101]")
    a(f"""
    s_load_dwordx16 s[36:51], s[0:1], 0
    s_load_dwordx8 s[52:59], s[0:1], 64
    s_load_dwordx4 s[60:63], s[0:1], 96
    s_getreg_b32 s{sXCC}, hwreg(HW_REG_XCC_ID)
    s_and_b32 s{sXCC}, s{sXCC}, 7
    v_lshrrev_b32 v1, 6, v0
    v_and_b32 v0, 63, v0
    v_readfirstlane_b32 s{sW}, v1
    v_mov_b32 v4, {L_BC}
    s_waitcnt lgkmcnt(0)
    s_mov_b32 s{sWS}, s{P_WS}
    s_mov_b32 s{sWS+1}, s{P_WS+1}
    s_mov_b32 s{sWS+2}, {hex(WS_BYTES)}
    s_mov_b32 s{sWS+3}, 0x20000
    s_lshl_b32 s8, s{sXCC}, 5
    v_mov_b32 v1, s8
    v_mov_b32 v2, 1
    """)
    if not opt.get("r_only"):
        a(f"""
        s_cmp_lg_u32 s{sW}, 1
        s_cbranch_scc1 L_NOCLR
        v_lshlrev_b32 v5, 4, v0
        v_lshlrev_b32 v6, 2, v0
        v_mov_b32 v7, 0
        v_mov_b64 v[8:9], -1
        v_mov_b64 v[10:11], -1
        s_lshl_b32 s9, s2, 11
        s_add_u32 s9, s9, {WS_MEMX}
        s_lshl_b32 s10, s2, 6
        buffer_store_dwordx4 v[8:11], v5, s[{sWS}:{sWS+3}], s9 offen sc1
        buffer_store_dwordx4 v[8:11], v5, s[{sWS}:{sWS+3}], s9 offen offset:1024 sc1
        s_mov_b64 exec, 0xffff
        buffer_store_dword v7, v6, s[{sWS}:{sWS+3}], s10 offen sc1
        s_mov_b64 exec, -1
        """)
        a.label("L_NOCLR")
    a(f"""
    s_cmp_lg_u32 s{sW}, 0
    s_cbranch_scc1 L_RANKED
    s_mov_b64 exec, 1
    global_atomic_add v3, v1, v2, s[{P_DBG}:{P_DBG+1}] sc0
    s_waitcnt vmcnt(0)
    ds_write_b32 v4, v3
    s_mov_b64 exec, -1
    s_waitcnt lgkmcnt(0)
    """)
    a.label("L_RANKED")
    a(f"""
    s_barrier
    ds_read_b32 v3, v4
    s_waitcnt lgkmcnt(0)
    v_readfirstlane_b32 s{sH}, v3
    s_barrier
    """)
    if not opt.get("r_only"):
        a(f"""
        s_cmp_lg_u32 s{sW}, 1
        s_cbranch_scc1 L_CLRD
        s_waitcnt vmcnt(0)
        s_mov_b64 exec, 1
        global_atomic_add v1, v2, s[{P_DBG}:{P_DBG+1}] offset:{DBG_ZERO}
        s_mov_b64 exec, -1
        """)
        a.label("L_CLRD")
    a(f"""
    s_cmp_ge_u32 s{sH}, 32
    s_cbranch_scc1 L_END
    """)

def build(opt):
    a = Asm()
    entry(a, opt)
    a(f"s_cmp_eq_u32 s{sXCC}, 0\ns_cbranch_scc1 ROLE_R")
    if opt.get("r_only"):
        a("s_branch L_END")
    else:
        a(f"""
        s_cmp_eq_u32 s{sXCC}, 7
        s_cbranch_scc1 ROLE_FU
        s_cmp_ge_u32 s{sXCC}, 5
        s_cbranch_scc1 ROLE_F
        """)
        n0 = len(a.lines)
        role_w.role_qa(a, opt)
        role_w.role_fu(a, opt)
        role_w.role_f(a, opt)
        errs = check_hazards(a.lines, name="W")
        for e in errs:
            print("HAZARD", e)
        assert not errs
    role_r.role_r(a, opt)
    a.label("L_END")
    hdr = open("cdna_kernels/" + NAME + ".s.ref").read().split("; Override launch geometry")[0] if not opt.get("nohdr") else ""
    return hdr + f"""; @launch grid=(256,1,1) block=(256,1,1) lds=163840
.amdgcn_target "amdgcn-amd-amdhsa--gfx950"
.text
.globl {NAME}_kernel
.p2align 8
.type {NAME}_kernel,@function
{NAME}_kernel:
""" + a.text() + f"""    s_endpgm
.section .rodata,"a"
.p2align 6
.amdhsa_kernel {NAME}_kernel
  .amdhsa_next_free_vgpr 512
  .amdhsa_next_free_sgpr 102
  .amdhsa_accum_offset 256
  .amdhsa_group_segment_fixed_size 0
  .amdhsa_kernarg_size 112
  .amdhsa_user_sgpr_count 2
  .amdhsa_user_sgpr_kernarg_segment_ptr 1
  .amdhsa_system_sgpr_workgroup_id_x 1
.end_amdhsa_kernel
"""

if __name__ == "__main__":
    s = build(BEST)
    open("cdna_kernels/" + NAME + ".s", "w").write(s)
```

```python
import re


class Asm:
    def __init__(self):
        self.lines = []

    def __call__(self, s):
        for ln in s.split("\n"):
            ln = ln.strip()
            if ln:
                self.lines.append(ln)

    def label(self, name):
        self.lines.append(name + ":")

    def text(self):
        out = []
        for ln in self.lines:
            if ln.endswith(":") or ln.startswith("."):
                out.append(ln)
            else:
                out.append("    " + ln)
        return "\n".join(out) + "\n"


def vr(base, n=1):
    if isinstance(base, tuple):
        f, k = base
    else:
        f, k = "v", base
    return f"{f}{k}" if n == 1 else f"{f}[{k}:{k+n-1}]"


def sr(k, n=1):
    return f"s{k}" if n == 1 else f"s[{k}:{k+n-1}]"


def weave(main, fill):
    out = list(fill.get(-1, []))
    for i, m in enumerate(main):
        out.append(m)
        out.extend(fill.get(i, []))
    for p in fill:
        assert -1 <= p < len(main), p
    return out


_REG = re.compile(r"\b([va])(?:\[(\d+):(\d+)\]|(\d+))")
TRANS = ("v_exp_f32", "v_log_f32", "v_rcp_f32", "v_rsq_f32", "v_sqrt_f32", "v_sin_f32", "v_cos_f32")


def _regs(tok):
    out = set()
    for m in _REG.finditer(tok):
        if m.group(4) is not None:
            out.add((m.group(1), int(m.group(4))))
        else:
            out.update((m.group(1), k) for k in range(int(m.group(2)), int(m.group(3)) + 1))
    return out


def _parse(ln):
    ln = ln.split(";")[0].strip()
    if not ln or ln.endswith(":") or ln.startswith("."):
        return None
    parts = ln.split(None, 1)
    op = parts[0]
    ops = [x.strip() for x in parts[1].split(",")] if len(parts) > 1 else []
    d = dict(op=op, text=ln, w=set(), r=set(), c=set(), ab=set(), kind="other", passes=0, sw=set(), sreads=set())
    sreg = lambda t: set(
        k for m in re.finditer(r"\bs(?:\[(\d+):(\d+)\]|(\d+))", t)
        for k in (range(int(m.group(1)), int(m.group(2)) + 1) if m.group(3) is None else [int(m.group(3))])
    ) | ({"vcc"} if re.search(r"\bvcc\b", t) else set())
    if op.startswith("v_mfma") or op.startswith("v_smfmac"):
        d["kind"] = "mfma"
        d["passes"] = 8 if "32x32" in op else 4
        d["w"] = _regs(ops[0])
        d["ab"] = _regs(ops[1]) | _regs(ops[2])
        if op.startswith("v_smfmac"):
            d["ab"] |= _regs(ops[3])
            d["c"] = set(d["w"])
            d["port"] = 12
        else:
            d["c"] = _regs(ops[3])
            d["port"] = 8 if len(_regs(ops[1])) == 4 else 4
        d["r"] = d["ab"] | d["c"]
    elif op.startswith("v_"):
        d["kind"] = "valu"
        if op.startswith("v_cmp"):
            d["sw"] = sreg(ops[0])
            d["r"] = set().union(*[_regs(x) for x in ops[1:]])
            d["sreads"] = set().union(*[sreg(x) for x in ops[1:]])
        elif op.startswith("v_readfirstlane") or op.startswith("v_readlane"):
            d["sw"] = sreg(ops[0])
            d["r"] = _regs(ops[1])
        else:
            d["w"] = _regs(ops[0])
            d["r"] = set().union(*[_regs(x) for x in ops[1:]]) if len(ops) > 1 else set()
            d["sreads"] = set().union(*[sreg(x) for x in ops[1:]]) if len(ops) > 1 else set()
            if "swap" in op:
                d["w"] |= _regs(ops[1])
                d["r"] |= _regs(ops[0])
            if op.startswith("v_fmac") or op.startswith("v_dot2c") or "bank_mask" in ln or "dst_unused:UNUSED_PRESERVE" in ln:
                d["r"] |= _regs(ops[0])
        d["dpp"] = "_dpp" in op or "row_" in ln or "quad_perm" in ln
        d["perm"] = "permlane" in op
        d["trans"] = op.replace("_e32", "").replace("_e64", "") in TRANS
        d["lane"] = op.startswith("v_readfirstlane") or op.startswith("v_readlane")
    elif op.startswith("ds_"):
        d["kind"] = "mem"
        if op.startswith("ds_read") or op.startswith("ds_bpermute") or op.startswith("ds_swizzle"):
            d["w"] = _regs(ops[0])
            d["r"] = set().union(*[_regs(x) for x in ops[1:]])
        else:
            d["r"] = set().union(*[_regs(x) for x in ops])
    elif op.startswith("buffer_") or op.startswith("global_"):
        d["kind"] = "mem"
        d["vmem"] = True
        d["sreads"] = set().union(*[sreg(x) for x in ops]) if ops else set()
        lds = ln.rstrip().endswith(" lds") or " lds " in ln
        if "load" in op and not lds:
            d["w"] = _regs(ops[0])
            d["r"] = set().union(*[_regs(x) for x in ops[1:]])
        else:
            d["r"] = set().union(*[_regs(x) for x in ops]) if ops else set()
            if "atomic" in op and " sc0" in ln:
                d["w"] = _regs(ops[0])
            if "store" in op and ("x4" in op or "x3" in op):
                data = ops[0] if op.startswith("buffer_") else ops[1]
                d["widestore"] = _regs(data)
        d["lds"] = lds
    elif op.startswith("s_"):
        d["kind"] = "salu"
        if op == "s_nop":
            d["nop"] = int(ops[0], 0) + 1
        if ops and ops[0] == "m0":
            d["m0w"] = True
    return d


def check_hazards(lines, timeaware=True, name=""):
    ins = [x for x in (_parse(l) for l in lines) if x]
    t = 0
    pipe_free = 0
    port_free = 0
    for d in ins:
        if timeaware and d["kind"] == "mfma":
            t = max(t, pipe_free, port_free)
        if timeaware and d["kind"] == "valu":
            t = max(t, port_free)
        d["t"] = t
        if d["kind"] == "mfma":
            pipe_free = t + 4 * d["passes"]
            port_free = t + d["port"]
        t += 4 * d.get("nop", 1)
    errs = []

    def dist(i, j):
        t = 0
        p = ins[i]
        pipe_free = 4 * p["passes"] if p["kind"] == "mfma" else 0
        port_free = p.get("port", 0) if p["kind"] == "mfma" else 0
        t = 4 * p.get("nop", 1)
        for k in range(i + 1, j + 1):
            d = ins[k]
            if timeaware and d["kind"] == "mfma":
                t = max(t, pipe_free, port_free)
            if timeaware and d["kind"] == "valu":
                t = max(t, port_free)
            if k == j:
                return t // 4 - 1
            if d["kind"] == "mfma":
                pipe_free = t + 4 * d["passes"]
                port_free = t + d["port"]
            if p["kind"] == "mfma" and (d["kind"] == "mem" or d.get("trans") or d.get("perm")):
                port_free = max(port_free, t + 8)
            t += 4 * d.get("nop", 1)

    for i, p in enumerate(ins):
        for j in range(i + 1, min(len(ins), i + 24)):
            c = ins[j]
            need = 0
            if p["kind"] == "valu":
                if c["kind"] == "mfma" and p["w"] & c["r"]:
                    need = max(need, 2)
                if c["kind"] == "valu":
                    if (c["dpp"] or c["perm"]) and p["w"] & c["r"]:
                        need = max(need, 2)
                    if c["lane"] and p["w"] & c["r"]:
                        need = max(need, 1)
                    if p["trans"] and not c["trans"] and p["w"] & c["r"]:
                        need = max(need, 1)
                    if p["sw"] & (c["sreads"] | ({"vcc"} if "cndmask" in c["op"] and "s[" not in c["text"] else set())):
                        need = max(need, 2)
                    if ("sdwa" in p["op"] or "op_sel" in p["text"]) and "pk_" not in p["op"] and p["w"] & (c["r"] | c["w"]):
                        need = max(need, 1)
                if c.get("vmem") and p["sw"] & c["sreads"]:
                    need = max(need, 5)
            if p["kind"] == "mfma":
                big = {4: 8, 8: 12}[p["passes"]]
                if c["kind"] == "mfma":
                    if p["w"] & c["ab"]:
                        need = max(need, big)
                    if p["w"] & c["c"] and not (p["w"] == c["c"] and p["passes"] == c["passes"]):
                        need = max(need, big - 2)
                    if p["w"] & c["w"] and not (p["w"] == c["w"] and p["passes"] == c["passes"]):
                        need = max(need, big - 2)
                elif c["kind"] in ("valu", "mem"):
                    if p["w"] & (c["r"] | c["w"]):
                        need = max(need, big)
                    if c["kind"] == "valu" and p["c"] & c["w"]:
                        need = max(need, p["passes"] - 1)
            if p.get("widestore") and p["widestore"] & c["w"]:
                need = max(need, 2 if c["kind"] in ("valu", "mfma") else 1)
            if p.get("m0w") and c.get("lds"):
                need = max(need, 1)
            if need:
                got = dist(i, j)
                if got < need:
                    errs.append(f"{name}: need {need} got {got}: [{p['text']}] -> [{c['text']}]")
    return errs


def resolve_waits(lines):
    out = []
    issued = {"L": [], "V": []}
    done = {"L": 0, "V": 0}
    for ln in lines:
        m = re.match(r"WAIT([LV])\s+(\S+)", ln)
        op = ln.split(None, 1)[0]
        if m:
            kind, tag = m.groups()
            idx = [k for k, p in enumerate(issued[kind]) if re.search(r"@" + re.escape(tag) + r"(\s|$)", p)]
            assert idx, "tag not found: " + tag
            if idx[-1] < done[kind]:
                continue
            n = min(len(issued[kind]) - 1 - idx[-1], 15 if kind == "L" else 63)
            done[kind] = len(issued[kind]) - n
            out.append(f"s_waitcnt lgkmcnt({n})" if kind == "L" else f"s_waitcnt vmcnt({n})")
            continue
        if op.startswith("ds_"):
            issued["L"].append(ln)
        elif op.startswith("buffer_") or op.startswith("global_"):
            issued["V"].append(ln)
        elif op == "s_waitcnt":
            for kind, nm in (("L", "lgkmcnt"), ("V", "vmcnt")):
                mm = re.search(nm + r"\((\d+)\)", ln)
                if mm:
                    done[kind] = max(done[kind], len(issued[kind]) - int(mm.group(1)))
        out.append(ln)
    return out


def estimate(lines):
    out = []
    t = 0
    tm = 0
    port = pipe = 0
    vcc = -100
    for ln in lines:
        d = _parse(ln)
        if d is None:
            out.append((t, ln))
            continue
        k = d["kind"]
        if k == "mem":
            s = tm
            extra = 13 if d["op"] == "ds_write_b128" else 4 if d["op"] == "ds_write_b64" else 10 if "store_dwordx2" in d["op"] else 20 if "store_dwordx4" in d["op"] else 0
            tm = s + 4 + extra
            t = s + 8 + extra
        elif k == "mfma":
            s = max(t, port, pipe)
            pipe = s + 4 * d["passes"]
            port = s + d["port"]
            t = tm = s + 4
        elif k == "valu":
            s = max(t, port)
            if "pk_" in d["op"] and "cvt" not in d["op"]:
                s = max(s, pipe + 12)
            dur = 8 if d["trans"] or d["perm"] else 4
            t = port = s + dur
            tm = t + 4
            if "vcc" in d["sw"]:
                vcc = s
        else:
            s = t
            if "vcc" in d["op"]:
                s = max(s, vcc + 28)
            dur = 4 * d.get("nop", 1)
            t = s + dur
            tm = max(tm, t)
        out.append((s, ln))
    return out


_NARROW = ("v_add_f32", "v_mul_f32", "v_max_f32", "v_max_u32", "v_exp_f32", "v_rcp_f32", "v_mov_b32", "v_mov_b64", "v_cmp_eq_u32", "v_cmp_ne_u32")


def isize(ln):
    ln = ln.split(";")[0].strip()
    if not ln or ln.endswith(":"):
        return 0
    op = ln.split()[0]
    args = ln[len(op):]
    lit = False
    for m in re.finditer(r"(?<![\w\[:])(-?0x[0-9a-f]+|-?\d+)(?![\w\]:.])", args):
        v = int(m.group(1), 0)
        lit |= not -16 <= v <= 64
    if op.startswith("s_"):
        if op.startswith(("s_load", "s_memtime", "s_memrealtime", "s_atomic")):
            return 8
        if op in ("s_waitcnt", "s_nop", "s_barrier", "s_sleep", "s_branch") or op.startswith("s_cbranch"):
            return 4
        return 8 if lit else 4
    if op.startswith("v_cmp") and not args.strip().startswith("vcc"):
        return 8
    if op in _NARROW or op.startswith("v_permlane") or op in ("v_xor_b32", "v_add_u32", "v_cndmask_b32", "v_lshlrev_b32"):
        return 8 if lit else 4
    return 8


def align8(lines):
    out = list(lines)
    off = 0
    cand = None
    for i, ln in enumerate(out):
        sz = isize(ln)
        if sz == 8 and off % 8 == 4 and cand is not None:
            op = out[cand].split()[0]
            out[cand] = out[cand].replace(op, op + "_e64", 1)
            off += 4
        if sz == 8:
            cand = None
        elif sz == 4 and ln.split()[0] in _NARROW:
            cand = i
        off += sz
    return out
```

```python
import struct
P_X, P_MEM0, P_WQ, P_WK, P_WV, P_WO = 36, 38, 40, 42, 44, 46
P_W1, P_W3, P_W2, P_OUT, P_DBG, P_WS = 52, 54, 56, 58, 60, 62
sWS = 4
sH, sW = 24, 25
sXCC = 3

DBG_TEAM = 4
DBG_READY = 72
DBG_GO = 136

WS_FL_KV = 0x0
WS_FL_O = 0x8000
WS_FL_HF = 0x10000
WS_HU = 0x17000
WS_FLAG_BYTES = 0x20000
WS_MB = 0x20000
WS_DIAG = 0x30000
WS_MB2 = 0x40000
WS_PA2 = 0x380000
WS_PA = 0x80000
WS_XN = 0x100000
WS_MEMX = 0x300000
WS_KV = 0x1000000
KV_HEAD = 0x104000
WS_ACT = 0x3200000
ACT_UNIT = 0x30000
WS_BYTES = 0x10000000

SPIN_MAX = 0x20000
C_EXP = struct.unpack("<I", struct.pack("<f", 128 ** -0.5 * 1.4426950408889634))[0]


def cleared(name):
    return ["s_mov_b32 s77, 1", f"s_atomic_add s77, s[{P_DBG}:{P_DBG+1}], {DBG_READY} glc", "s_waitcnt lgkmcnt(0)",
            "s_cmp_lg_u32 s77, 95", f"s_cbranch_scc1 {name}", "s_mov_b32 s77, 1", f"s_atomic_add s77, s[{P_DBG}:{P_DBG+1}], {DBG_GO}", f"{name}:"]
```

```python
import re
from asmlib import *
from layout import *

SM = "v_smfmac_f32_16x16x64_bf16"
D32 = "v_mfma_f32_16x16x32_bf16"
D16 = "v_mfma_f32_16x16x16_bf16"

L_KX, L_MEM, L_QK, L_O, L_SEL, L_W = 0, 16384, 24576, 28928, 30976, 32768

vL16, vL16b, vL16c, vIdx, vPAst, vMBst, vQKw, vQKr, vO, vKX, vVM, vFlag = range(12)
vQKown, vVMh, vPub, vVX, vVXn, vMemA = 12, 16, 18, 20, 28, 36
aK0, aQ0, aK1, aQ1, aV0, aV1 = 68, 72, 76, 80, 84, 88
vNeg, vG = 19, 10
vSt = 92
vT = 124

sWv, sWq, sWk, sWo = 8, 12, 16, 20
sStep, sMBw, sMBr, sPAw, sPAr, sKV, sMX, sFL, sNeed, sTO = 26, 27, 28, 29, 30, 31, 32, 33, 34, 35
sC, sM0, sTmp, sTmp2, sMBl, sKV2, sHUw, sHUr = 64, 66, 67, 68, 69, 70, 71, 65


def own_blocks(w):
    a = w ^ 2
    return [a, a + 4]


class Plan:
    def __init__(self, w):
        self.w = w
        self.blocks = [own_blocks((w + i) % 4)[k] for k in range(2) for i in range(4)]
        seq = []
        for b in range(5):
            seq += [("K", b, 0), ("Q", b, 0), ("K", b, 1), ("Q", b, 1)]
        for t in range(2):
            for m in "KQ":
                seq += [(m, b, t) for b in (5, 6, 7)]
        self.qk = seq
        self.v = [("V", b, t) for b in range(8) for t in range(2)]
        self.o = [("O", 0, sl) for sl in range(4)]
        self.o += [("O", i, sl) for sl in range(4) for i in (1, 2, 3)]
        self.qk_lds_pos = [0, 1, 2, 3, 12, 14, 16, 18]
        self.o_lds_pos = [0, 1, 2, 3, 12, 13, 14, 15]
        lds = [self.qk[p] for p in self.qk_lds_pos] + [self.o[p] for p in self.o_lds_pos]
        self.reg = {}
        free = [("a", 8 * i) for i in range(32)] + [("v", 128 + 8 * i) for i in range(16)]
        for f in self.qk + self.v + self.o:
            if f not in lds:
                self.reg[f] = free.pop(0)
        assert not free
        self.ldsn = {}

    def name_abs(self, f):
        m, i, t = f
        return (m, self.blocks[i] if m != "O" else (self.w + i) % 4, t)

    def lds_read(self, f, dst, tag=""):
        n = self.ldsn[f]
        off = L_W + (n >> 1) * 16384 + self.w * 4096 + (n & 1) * 2048
        out = []
        for hlf in range(2):
            o = off + hlf * 1024
            base = [vL16, vL16b, vL16c][o >> 16]
            out.append(f"ds_read_b128 {vr(dst + 4 * hlf, 4)}, v{base} offset:{o & 0xffff} ; @{tag}")
        return out


def r_setup(a, opt):
    for s, p in ((sWv, P_WV), (sWq, P_WQ), (sWk, P_WK), (sWo, P_WO)):
        a(f"""
        s_mov_b32 s{s}, s{p}
        s_mov_b32 s{s+1}, s{p+1}
        s_mov_b32 s{s+2}, 0x400000
        s_mov_b32 s{s+3}, 0x20000
        """)
    a(f"""
    v_mov_b32 v12, v0
    v_lshrrev_b32 v13, 4, v12
    v_and_b32 v14, 15, v12
    v_lshlrev_b32 v{vL16}, 4, v12
    v_add_u32 v{vL16b}, 0x10000, v{vL16}
    v_add_u32 v{vL16c}, 0x20000, v{vL16}
    v_mov_b32 v{vKX}, v{vL16}
    v_bfe_u32 v15, v12, 1, 1
    v_mul_u32_u24 v15, 0xaaaa, v15
    v_add_u32 v{vIdx}, 0x4444, v15
    ; (c>>3)*32768 + (g>>1)*16384 + ((h>>1) ^ 8(g&1))*256 + (g&1)*128 + (c&7)*8
    v_and_b32 v15, 7, v14
    v_lshlrev_b32 v15, 3, v15
    v_lshrrev_b32 v16, 1, v13
    v_lshl_add_u32 v15, v16, 14, v15
    v_lshrrev_b32 v16, 3, v14
    v_lshl_add_u32 v15, v16, 15, v15
    v_and_b32 v16, 1, v13
    v_lshl_add_u32 v15, v16, 7, v15
    v_lshlrev_b32 v16, 3, v16
    s_lshr_b32 s{sTmp}, s{sH}, 1
    v_xor_b32 v16, s{sTmp}, v16
    v_lshl_add_u32 v{vPAst}, v16, 8, v15
    v_and_b32 v17, 3, v12
    v_lshlrev_b32 v15, 2, v17
    v_lshl_add_u32 v{vMBst}, v13, 4, v15
    v_lshrrev_b32 v15, 2, v14
    v_mul_u32_u24 v15, 136, v15
    v_lshl_add_u32 v15, v13, 3, v15
    v_lshl_add_u32 v{vQKw}, v17, 5, v15
    v_lshrrev_b32 v15, 1, v13
    v_mul_u32_u24 v15, 544, v15
    v_and_b32 v16, 1, v13
    v_mul_u32_u24 v16, 136, v16
    v_add_u32 v15, v15, v16
    v_lshl_add_u32 v{vQKr}, v14, 3, v15
    v_lshrrev_b32 v15, 2, v14
    v_and_b32 v16, 1, v14
    v_lshl_add_u32 v15, v15, 1, v16
    v_lshlrev_b32 v15, 4, v15
    v_lshl_add_u32 v{vO}, v13, 7, v15
    v_lshrrev_b32 v15, 3, v12
    v_and_b32 v16, 7, v12
    v_lshlrev_b32 v16, 4, v16
    v_lshl_add_u32 v{vG}, v15, 8, v16
    """)
    a(f"""
    v_mov_b32 v16, 0x3f80
    v_bfe_u32 v15, v14, 2, 1
    v_lshlrev_b32 v15, 4, v15
    v_lshlrev_b32 v16, v15, v16
    v_and_b32 v15, 11, v14
    """)
    for q in range(4):
        a(f"""
        v_cmp_eq_u32 vcc, {8 * (q & 1) + (q >> 1)}, v15
        s_nop 1
        v_cndmask_b32 v{20+q}, 0, v16, vcc
        """)
    a(f"ds_write_b128 v{vL16}, v[20:23] offset:{L_SEL}")
    a(f"""
    s_and_b32 s{sTmp}, s{sW}, 1
    s_lshl_b32 s{sTmp}, s{sTmp}, 2
    v_and_b32 v15, 1, v13
    v_or_b32 v15, s{sTmp}, v15
    v_lshlrev_b32 v15, 1, v15
    v_xor_b32 v15, v15, v14
    v_lshlrev_b32 v15, 4, v15
    v_lshl_add_u32 v15, v13, 13, v15
    s_lshr_b32 s{sTmp}, s{sW}, 1
    s_lshl_b32 s{sTmp}, s{sTmp}, 20
    s_and_b32 s{sTmp2}, s{sW}, 1
    s_lshl_b32 s{sTmp2}, s{sTmp2}, 17
    s_add_u32 s{sTmp}, s{sTmp}, s{sTmp2}
    s_lshl_b32 s{sTmp2}, s{sH}, 8
    s_add_u32 s{sTmp}, s{sTmp}, s{sTmp2}
    v_add_u32 v24, s{sTmp}, v15
    v_and_b32 v15, 1, v13
    v_lshlrev_b32 v15, 2, v15
    v_xor_b32 v15, v15, v14
    v_lshlrev_b32 v15, 4, v15
    v_lshl_add_u32 v15, v13, 10, v15
    s_lshl_b32 s{sTmp}, s{sW}, 8
    s_lshl_b32 s{sTmp2}, s{sH}, 17
    s_add_u32 s{sTmp}, s{sTmp}, s{sTmp2}
    v_add_u32 v25, s{sTmp}, v15
    ; lane fields: v15 = x (bit 2), v16 = p (bit 3), v18 = g&1, v19 = g>>1, v17 = cc
    v_bfe_u32 v15, v12, 2, 1
    v_bfe_u32 v16, v12, 3, 1
    v_and_b32 v18, 1, v13
    v_lshrrev_b32 v19, 1, v13
    v_lshl_add_u32 v28, v16, 1, v18
    v_lshl_add_u32 v29, v28, 1, v15
    v_lshl_add_u32 v28, v13, 2, v15
    v_lshl_add_u32 v28, v16, 4, v28
    s_lshl_b32 s{sTmp}, s{sW}, 1
    v_xor_b32 v29, s{sTmp}, v29
    v_lshlrev_b32 v29, 5, v29
    v_lshl_add_u32 v29, v28, 8, v29
    v_lshl_add_u32 v26, v17, 3, v29
    v_lshl_add_u32 v28, v19, 2, v15
    v_lshlrev_b32 v28, 8, v28
    v_lshl_add_u32 v28, v18, 14, v28
    v_lshl_add_u32 v29, v18, 1, v15
    v_lshl_add_u32 v28, v29, 6, v28
    v_lshl_add_u32 v28, v16, 5, v28
    v_lshl_add_u32 v28, v17, 3, v28
    s_lshl_b32 s{sTmp}, s{sW}, 12
    v_add_u32 v27, s{sTmp}, v28
    """)
    a(f"""
    s_lshl_b32 s{sMX}, s{sW}, 11
    s_lshl_b32 s{sTmp}, s{sH}, 6
    s_add_u32 s{sMX}, s{sMX}, s{sTmp}
    s_add_u32 s{sMX}, s{sMX}, {WS_MEMX}
    s_and_b32 s{sTmp}, s{sTmp}, 64
    s_lshr_b32 s{sMBw}, s{sH}, 1
    s_lshl_b32 s{sMBw}, s{sMBw}, 8
    s_add_u32 s{sMBw}, s{sMBw}, s{sTmp}
    s_lshr_b32 s{sTmp2}, s{sW}, 1
    s_lshl_b32 s{sMBr}, s{sTmp2}, 12
    s_add_u32 s{sMBw}, s{sMBw}, s{sMBr}
    s_xor_b32 s{sMBr}, s{sTmp2}, 1
    s_lshl_b32 s{sMBr}, s{sMBr}, 7
    s_and_b32 s{sTmp2}, s{sW}, 1
    s_lshl_b32 s{sTmp2}, s{sTmp2}, 7
    s_add_u32 s{sMBw}, s{sMBw}, s{sTmp2}
    s_add_u32 s{sMBw}, s{sMBw}, {opt.get('mb', WS_MB)}
    s_lshl_b32 s{sTmp2}, s{sTmp2}, 4
    s_add_u32 s{sMBr}, s{sMBr}, s{sTmp2}
    s_add_u32 s{sMBr}, s{sMBr}, {opt.get('mb', WS_MB)}
    s_add_u32 s{sMBl}, s{sMBr}, 0x1000
    s_lshl_b32 s{sPAw}, s{sW}, 16
    s_add_u32 s{sPAw}, s{sPAw}, s{sTmp}
    s_add_u32 s{sPAw}, s{sPAw}, {opt.get('pa', WS_PA)}
    s_lshr_b32 s{sPAr}, s{sH}, 1
    s_lshl_b32 s{sPAr}, s{sPAr}, 14
    s_lshl_b32 s{sTmp}, s{sTmp}, 1
    s_add_u32 s{sPAr}, s{sPAr}, s{sTmp}
    s_lshl_b32 s{sTmp}, s{sW}, 12
    s_add_u32 s{sPAr}, s{sPAr}, s{sTmp}
    s_add_u32 s{sPAr}, s{sPAr}, {opt.get('pa', WS_PA) + (0 if opt.get('pa1') else 0x40000)}
    s_lshl_b32 s{sTmp}, s{sW}, 11
    s_mul_i32 s{sKV}, s{sH}, {KV_HEAD}
    s_add_u32 s{sKV}, s{sKV}, s{sTmp}
    s_add_u32 s{sKV}, s{sKV}, {WS_KV}
    s_lshl_b32 s{sM0}, s{sW}, 11
    s_mov_b32 s{sC}, {hex(C_EXP)}
    s_mov_b32 s{sStep}, {opt.get('first', 0)}
    s_add_u32 s{sKV}, s{sKV}, {opt.get('first', 0) * 0x4000}
    s_add_u32 s{sMX}, s{sMX}, {opt.get('first', 0) * 0x2000}
    """)


def dma_chunk(w, c):
    out = []
    slot = c % 8
    for i in range(4):
        if c < 24:
            srd = [sWk, sWv, sWq][c >> 3]
            so = (256 * (c & 1) + 32 * ((c & 7) >> 1) + 4 * i) * 8192
            m0 = L_W + slot * 16384 + (16 * w + 4 * i) * 256
            vo = [24, 15][i & 1]
        else:
            srd = sWo
            so = (16 * (c - 24) + 4 * i) * 1024
            m0 = L_W + slot * 16384 + w * 4096 + 4 * i * 256
            vo = 25 if (c & 1) == 0 else 30
        out += [f"s_mov_b32 m0, {m0}", f"s_mov_b32 s{sTmp}, {so}",
                f"buffer_load_dwordx4 v{vo}, s[{srd}:{srd+3}], s{sTmp} offen lds ; @c{c}"]
    return out


def spin(a, name, load, chk, cond_ok):
    a(f"s_mov_b32 s{sTO}, 0")
    a.label(name)
    a(load)
    a(f"s_waitcnt vmcnt(0)")
    a(chk)
    a(f"""
    {cond_ok} {name}_ok
    s_add_u32 s{sTO}, s{sTO}, 1
    s_cmp_lt_u32 s{sTO}, {SPIN_MAX}
    s_cbranch_scc1 {name}
    s_branch L_END
    """)
    a.label(name + "_ok")


def sspin(a, name, load, chk):
    a(f"s_mov_b32 s{sTO}, 0")
    a.label(name)
    a(load)
    a("s_waitcnt lgkmcnt(0)")
    a(chk)
    a(f"""
    s_cbranch_scc1 {name}_ok
    s_sleep 4
    s_add_u32 s{sTO}, s{sTO}, 1
    s_cmp_lt_u32 s{sTO}, {SPIN_MAX}
    s_cbranch_scc1 {name}
    s_branch L_END
    """)
    a.label(name + "_ok")


def r_startup(w, pl, opt):
    a = Asm()
    X = Asm()
    WSR = f"s[{sWS}:{sWS+3}]"
    inv = {pl.name_abs(f): f for f in pl.qk + pl.v + pl.o}
    temps = [32 + 8 * i for i in range(12)]
    pending = []
    a("v_xor_b32 v30, 0x80, v25\nv_xor_b32 v15, 0x40, v24\nv_mov_b32 v31, v27")
    pl_ate = opt.get("palate", 0)

    def pa_init(r):
        a(f"""
        v_mov_b64 {vr(r,2)}, 0
        v_mov_b64 {vr(r+2,2)}, 0
        s_xor_b32 s{sTmp}, s{sPAr}, 0x40000
        buffer_store_dwordx4 {vr(r,4)}, v{vG}, {WSR}, s{sPAr} offen
        buffer_store_dwordx4 {vr(r,4)}, v{vG}, {WSR}, s{sPAr} offen offset:2048
        buffer_store_dwordx4 {vr(r,4)}, v{vG}, {WSR}, s{sTmp} offen
        buffer_store_dwordx4 {vr(r,4)}, v{vG}, {WSR}, s{sTmp} offen offset:2048
        s_nop 0
        """)

    def poison():
        a(f"""
        v_mov_b32 v{vNeg}, -1
        s_xor_b32 s{sTmp2}, s{sMBw}, 0x2000
        buffer_store_dword v{vNeg}, v{vMBst}, {WSR}, s{sMBw} offen
        buffer_store_dword v{vNeg}, v{vMBst}, {WSR}, s{sTmp2} offen
        """)
        if not pl_ate:
            pa_init(20)
    if opt.get("mark0"):
        a("s_memrealtime s[96:97]\ns_waitcnt lgkmcnt(0)\ns_mov_b32 s94, s96")
        a(f"s_waitcnt vmcnt({opt['mark0']-1})\ns_memrealtime s[96:97]\ns_waitcnt lgkmcnt(0)\ns_mov_b32 s95, s96")
    pz = opt.get("pz", -1)
    hinit = opt.get("hinit") and not opt.get("r_only")
    if pz < 0 and not hinit:
        poison()
    for c in range(8):
        a("\n".join(dma_chunk(w, c)))
    a(f"""
    s_mov_b32 s72, s{P_MEM0}
    s_mov_b32 s73, s{P_MEM0+1}
    s_mov_b32 s74, 8192
    s_mov_b32 s75, 0x20000
    s_and_b32 s{sTmp}, s{sH}, 3
    s_lshl_b32 s{sTmp}, s{sTmp}, 11
    s_lshr_b32 s{sTmp2}, s{sH}, 3
    s_lshl_b32 s{sTmp2}, s{sTmp2}, 8
    s_add_u32 s{sTmp}, s{sTmp}, s{sTmp2}
    s_and_b32 s{sTmp2}, s{sH}, 4
    s_lshl_b32 s{sTmp2}, s{sTmp2}, 2
    s_add_u32 s{sTmp}, s{sTmp}, s{sTmp2}
    v_and_b32 v28, 1, v13
    v_lshlrev_b32 v28, 10, v28
    v_lshl_add_u32 v28, v17, 2, v28
    v_lshrrev_b32 v29, 1, v13
    v_lshl_add_u32 v28, v29, 5, v28
    buffer_load_dword v{vPub}, v28, s[72:75], s{sTmp} offen offset:{64 * w}
    s_lshl_b32 s{sFL}, s{sH}, 10
    s_add_u32 s{sFL}, s{sFL}, {WS_FL_KV + 4 * w}
    s_add_u32 s{sNeed}, s{sFL}, {62 * 16}
    s_add_u32 s{sFL}, s{sFL}, {16 * opt.get('first', 0)}
    """)
    def mk(c):
        for k, x in enumerate(opt.get("markr", [])):
            if x == c:
                a(f"s_memrealtime s[96:97]\ns_waitcnt lgkmcnt(0)\ns_mov_b32 s{94 + k}, s96")
    mk(-1)
    for c in range(24):
        a(f"WAITV c{c}\ns_barrier")
        mk(c)
        th = opt.get("thr")
        if th and th[0] <= c <= th[1]:
            a(f"s_and_b32 s{sTmp}, s{sH}, 3\ns_cmp_eq_u32 s{sTmp}, 1\ns_cbranch_scc1 R{w}_th{c}\nTHR {th[2]}\nR{w}_th{c}:")
        if 1 <= c and c + 7 < 32:
            a("\n".join(dma_chunk(w, c + 7)))
        zl = f"global_load_dword v{vFlag}, v16, s[{P_DBG}:{P_DBG+1}] sc1"
        if c == opt.get('goc', (12, 20))[0] and not opt.get("r_only"):
            a(f"v_mov_b32 v16, {DBG_GO}\n" + zl)
        if c == opt.get('goc', (12, 20))[1] and not opt.get("r_only"):
            a(f"v_cmp_eq_u32 vcc, 0, v{vFlag}\ns_cbranch_vccnz R{w}_reg\nR{w}_regok:")
            X(f"R{w}_reg:")
            spin(X, f"R{w}_reg2", zl, f"v_cmp_eq_u32 vcc, 0, v{vFlag}", "s_cbranch_vccz")
            X(f"s_branch R{w}_regok")
        fl = f"buffer_load_dword v17, off, {WSR}, s{sFL} offset:16 sc1\nbuffer_load_dword v16, off, {WSR}, s{sFL} sc1"
        tl = f"global_load_dword v14, v12, s[{P_DBG}:{P_DBG+1}] sc1"
        if c == opt.get("flc", 21):
            a(("" if hinit else f"v_mov_b32 v12, {DBG_TEAM}\n" + tl + "\n") + fl + " ; @fl")
        if c in opt.get("pfc2", []):
            a(f"""
            s_getpc_b64 s[80:81]
            R{w}_pc{c}:
            v_lshlrev_b32 v20, 3, v{vL16}
            v_add_u32 v20, {opt.get("pfc2o", 2048)}, v20
            v_min_u32 v20, L_LAST-R{w}_pc{c}, v20
            global_load_dword v21, v20, s[80:81]
            """)
        if c == pz:
            poison()
        if c == (1 if pz < 0 else pz + 9) and w == 0 and not hinit:
            a(f"s_mov_b32 s78, 1\ns_atomic_add s78, s[{P_DBG}:{P_DBG+1}], {DBG_TEAM}")
        a(f"v_add_u32 v28, {L_W + (c % 8) * 16384}, v26\nv_xor_b32 v29, 32, v28")
        for t in range(2):
            f = inv[("KVQ"[c >> 3], c & 7, t)]
            if f in pl.reg:
                dst = pl.reg[f]
            else:
                dst = ("v", temps.pop(0))
                pending.append((f, dst[1]))
            for u in range(4):
                z, y = u >> 1, u & 1
                a(f"ds_read_b64_tr_b16 {vr((dst[0], dst[1] + 2 * u), 2)}, v{28 + t} offset:{(32 * z + 2 * y) * 256}")
        a("s_waitcnt lgkmcnt(0)")
    a("s_barrier")
    a("\n".join(dma_chunk(w, 31)))
    if hinit and opt.get("pub0") and not opt.get("first"):
        a(f"v_min_u32 v{vPub}, -2, v{vPub}\nbuffer_store_dword v{vPub}, v{vMBst}, {WSR}, s{sMBw} offen{opt.get('st', '')}")
    a(f"""
    s_add_u32 s{sTmp}, s{sMBw}, 0x2000
    buffer_load_dword v15, v{vMBst}, {WSR}, s{sMBw} offen sc1
    buffer_load_dword v15, v{vMBst}, {WSR}, s{sTmp} offen sc1
    """)
    if opt.get("touch2"):
        a(f"""
        s_add_u32 s{sTmp}, s{sMBw}, 0x4000
        buffer_load_dword v15, v{vMBst}, {WSR}, s{sTmp} offen sc1
        s_add_u32 s{sTmp}, s{sMBw}, 0x6000
        buffer_load_dword v15, v{vMBst}, {WSR}, s{sTmp} offen sc1
        buffer_load_dword v15, v{vMBst}, {WSR}, s{sMX} offen sc1
        """)
    t3 = f"""
        s_xor_b32 s{sTmp}, s{sPAr}, 0x40000
        buffer_load_dword v15, v{vG}, {WSR}, s{sTmp} offen sc1
        buffer_load_dword v15, v{vG}, {WSR}, s{sTmp} offen offset:2048 sc1
        buffer_load_dword v15, v{vG}, {WSR}, s{sPAr} offen sc1
        buffer_load_dword v15, v{vG}, {WSR}, s{sPAr} offen offset:2048 sc1
        """
    if opt.get("pa1"):
        t3 = "\n".join(t3.strip().split("\n")[3:])
    if opt.get("touch3") == 1:
        a(t3)
    if pl_ate == 1:
        pa_init(20)
    nslot = 0
    for kap in range(4):
        ml = f"buffer_load_dword v{vPub}, v{vMBst}, {WSR}, s{sMX} offen sc1"
        if kap == 3 and opt.get("first"):
            a(ml)
        mk(24 + 2 * kap)
        a(f"WAITV c{25 + 2 * kap}")
        mk(25 + 2 * kap)
        if kap == pl_ate - 2:
            pa_init(20)
        if kap == 2:
            a(f"WAITV fl\nv_cmp_eq_u32 vcc, 0, v16\ns_cbranch_vccnz R{w}_kv0\nR{w}_kv0ok:")
            X(f"R{w}_kv0:")
            spin(X, f"R{w}_kv02", fl, "v_cmp_eq_u32 vcc, 0, v16", "s_cbranch_vccz")
            X(f"s_branch R{w}_kv0ok")
            a(f"""
            s_add_u32 s{sFL}, s{sFL}, 16
            s_add_u32 s{sKV2}, s{sKV}, 0x2000
            s_mov_b32 m0, s{sM0}
            v_mov_b32 v{vFlag}, v17
            buffer_load_dwordx4 v{vL16}, {WSR}, s{sKV} offen sc1 lds
            buffer_load_dwordx4 v{vL16}, {WSR}, s{sKV} offen offset:1024 sc1 lds
            buffer_load_dwordx4 {vr(vVX,4)}, v{vL16}, {WSR}, s{sKV2} offen sc1
            buffer_load_dwordx4 {vr(vVX+4,4)}, v{vL16}, {WSR}, s{sKV2} offen offset:1024 sc1
            s_add_u32 s{sKV}, s{sKV}, 0x4000
            s_add_u32 s{sKV2}, s{sKV}, 0x2000
            s_xor_b32 s{sM0}, s{sM0}, 0x2000
            """)
            if opt.get("touch3") == 2:
                a(t3)
        for sl in range(4):
            f = inv[("O", kap, sl)]
            if f in pl.reg:
                dst = pl.reg[f]
            else:
                dst = ("v", temps.pop(0))
                pending.append((f, dst[1]))
            a(f"v_xor_b32 v28, {sl * 64}, v31\nv_add_u32 v28, {L_W + 2 * kap * 16384}, v28")
            for u in range(4):
                z, y = u >> 1, u & 1
                a(f"ds_read_b64_tr_b16 {vr((dst[0], dst[1] + 2 * u), 2)}, v28 offset:{(8 * z + 2 * y) * 256}")
        a("s_waitcnt lgkmcnt(0)")
        while pending and nslot < 4 * kap + 4:
            f, r = pending.pop(0)
            pl.ldsn[f] = nslot
            off = L_W + (nslot >> 1) * 16384 + w * 4096 + (nslot & 1) * 2048
            for hlf in range(2):
                o = off + hlf * 1024
                a(f"ds_write_b128 v{[vL16, vL16b, vL16c][o >> 16]}, {vr(r + 4 * hlf, 4)} offset:{o & 0xffff}")
            temps.append(r)
            nslot += 1
        a("s_waitcnt lgkmcnt(0)")
    assert not pending and nslot == 16
    a(f"""
    {"" if opt.get("first") else f"v_min_u32 v{vPub}, -2, v{vPub}"}
    s_waitcnt vmcnt(0)
    {f"v_cmp_eq_u32 vcc, -1, v{vPub}" if opt.get("first") else "v_cmp_ne_u32 vcc, 32, v14"}
    s_mov_b32 m0, {L_MEM + w*1024 + (4096 if opt.get('dmaL') else 0)}
    """)
    for k in range(0, 8, 2):
        a(f"v_mov_b64 {vr(vVXn+k,2)}, {vr(vVX+k,2)}")
    mk(32)
    if not hinit:
        a(f"s_cbranch_vccnz R{w}_team\nR{w}_teamok:")
        X(f"R{w}_team:")
        spin(X, f"R{w}_team2", tl, "v_cmp_ne_u32 vcc, 32, v14", "s_cbranch_vccz")
        X(f"s_branch R{w}_teamok")
    if opt.get("first"):
        assert hinit
        a(f"s_cbranch_vccnz R{w}_m0\nR{w}_m0ok:")
        X(f"R{w}_m0:")
        spin(X, f"R{w}_m02", ml, f"v_cmp_eq_u32 vcc, -1, v{vPub}", "s_cbranch_vccz")
        X(f"s_branch R{w}_m0ok")
    pl.side = X.lines
    return [re.sub(r"^THR (\d+)", r"s_waitcnt vmcnt(\1)", x) for x in resolve_waits(a.lines)]


def check8(r, t0, t1):
    return [f"v_max3_u32 v{t0}, v{r}, v{r+1}, v{r+2}", f"v_max3_u32 v{t1}, v{r+3}, v{r+4}, v{r+5}",
            f"v_max3_u32 v{t0}, v{t0}, v{r+6}, v{r+7}", f"v_max_u32 v{t0}, v{t0}, v{t1}",
            f"v_cmp_eq_u32 vcc, -1, v{t0}"]


def nops(n):
    out = []
    while n > 0:
        k = min(n, 16)
        out.append(f"s_nop {k-1}")
        n -= k
    return out


def stamp(opt, k):
    if opt.get("stamps"):
        return [f"s_memtime s[{72+2*k}:{73+2*k}]"]
    return []


def r_loop(w, pl, opt):
    WSR = f"s[{sWS}:{sWS+3}]"
    L = []
    X = []
    n = f"R{w}"
    acc = {("K", 0): aK0, ("Q", 0): aQ0, ("K", 1): aK1, ("Q", 1): aQ1, ("V", 0): aV0, ("V", 1): aV1}
    cnt = lambda r, k=1: [f"s_add_u32 s{r}, s{r}, {k}"] if opt.get("stamps") and not opt.get("raw") else []
    bail = lambda lab: [f"s_add_u32 s{sTO}, s{sTO}, 1", f"s_cmp_lt_u32 s{sTO}, {SPIN_MAX}", f"s_cbranch_scc1 {lab}", "s_branch L_END"]
    par = lambda name, dflt: opt.get(name, dflt)[w]

    def sm(d, aop, b):
        return f"{SM} {vr(d,4)}, {vr(aop,4)}, {vr(b,8)}, v{vIdx}"

    def cv(d, r):
        return f"v_cvt_pk_bf16_f32 v{d}, v{r}, v{r+1}"

    def add(r):
        return f"v_add_f32 v{r}, v{r}, v{r+2}"

    def zero(r):
        return f"v_mov_b64 {vr(r,2)}, 0"

    def take(lst, k):
        out = []
        while k > 0 and lst:
            out.append(lst.pop(0))
            k -= 0 if out[-1].endswith(":") else 1
        return out + [x + " ; back-off" for x in nops(k)]

    memE, memL = vMemA, vMemA + 16
    Pa, Sel, Rd, C0, C1, C2 = 40, 12, 64, 16, (17 if not opt.get('trace') else 63), 18
    wacc = [116, 120, 80, 124]
    hold = par("hold", [0, 0, 0, 0])
    assert hold <= 2
    st2 = lambda sl: f"buffer_store_dwordx2 {vr(wacc[sl],2)}, v{vPAst}, {WSR}, s{sP[sl]} offen{opt.get('st', '')}"
    held = [st2(sl) for sl in range(4 - hold, 4)]
    iv = [zero(aK0 + k) for k in range(0, 24, 2) if aK0 + k != 80] + [zero(126)]
    idle2 = [f"s_xor_b32 s{sP[2]}, s{sP[2]}, 0x40000", f"s_xor_b32 s{sP[3]}, s{sP[3]}, 0x40000", zero(80), zero(124)]
    il = [f"ds_read_b128 {vr(Sel,4)}, v{vL16} offset:{L_SEL}"]
    for k in range(4):
        il += pl.lds_read(pl.qk[k], vSt + 8 * k, f"st{k}")
    isc = [f"s_xor_b32 s{sP[k]}, s{sP[k]}, 0x40000" for k in range(2)]
    isc += [f"s_add_u32 s{sMX}, s{sMX}, 0x2000", f"s_add_u32 s{sKV}, s{sKV}, 0x4000", f"s_add_u32 s{sKV2}, s{sKV}, 0x2000",
            f"s_xor_b32 s{sM0}, s{sM0}, 0x2000", f"s_mov_b32 m0, {L_MEM + w*1024 + (4096 if opt.get('dmaL') else 0)}"]
    idle = []
    if opt.get("idg"):
        for k, x in enumerate(iv):
            idle += [x] + isc[k:k + 1]
        for k in range(4):
            idle[4 + 6 * k:4 + 6 * k] = il[1 + 2 * k:3 + 2 * k]
        idle.insert(0, il[0] + " ; @sel")
    else:
        for k, x in enumerate(il + isc):
            idle += [x] + iv[k:k + 1]
    if opt.get("stept"):
        idle += ["s_memrealtime s[76:77]"]
    idle += ["s_waitcnt lgkmcnt(0)"]
    for k, x in enumerate(opt.get("stept", [])):
        idle += [f"s_cmp_eq_u32 s{sStep}, {x}", f"s_cselect_b32 s{94+k}, s76, s{94+k}"]
    if opt.get("raw"):
        idle += [f"s_cmp_eq_u32 s26, {opt['raw']}", "s_cselect_b32 s36, s92, s36", "s_cselect_b32 s37, s90, s37"]
        for k in range(9):
            idle += [f"s_cselect_b32 s{38+k}, s{72+2*k}, s{38+k}"]
        idle += ["s_mov_b32 s92, s88"]
    elif opt.get("trace"):
        idle += [f"v_writelane_b32 v17, s{72+2*k}, {k}" for k in range(10)]
        idle += [f"s_lshl_b32 s67, s{sH}, 2", f"s_add_u32 s67, s67, {w}", "s_lshl_b32 s67, s67, 6", f"s_add_u32 s67, s67, s{sStep}",
                 "s_lshl_b32 s67, s67, 10", f"s_add_u32 s67, s67, {WS_ACT}", "s_mov_b32 s36, s67"]
    elif opt.get("stamps"):
        idle += ["s_sub_u32 s67, s72, s90", "s_add_u32 s36, s36, s67"]
        for k in range(8):
            idle += [f"s_sub_u32 s67, s{74+2*k}, s{72+2*k}", f"s_add_u32 s{37+k}, s{37+k}, s67"]
        idle += ["s_sub_u32 s67, s90, s92", "s_cmp_gt_u32 s26, 1", "s_cselect_b32 s67, s67, 0", "s_add_u32 s45, s45, s67", "s_mov_b32 s92, s88"]
    pollA = lambda k: [f"buffer_load_dwordx4 {vr(Pa+8*k,4)}, v{vG}, {WSR}, s{sPAr} offen sc1 ; @pa{k}0",
                       f"buffer_load_dwordx4 {vr(Pa+8*k+4,4)}, v{vG}, {WSR}, s{sPAr} offen offset:2048 sc1 ; @pa{k}1"]
    pollE = [f"buffer_load_dwordx4 {vr(memE,4)}, v{vG}, {WSR}, s{sMBr} offen sc1 ; @pe"]
    pollL = [f"buffer_load_dwordx4 {vr(memL,4)}, v{vG}, {WSR}, s{sMBl} offen sc1 ; @pl"]
    depA = par("depA", [1, 1, 1, 1])
    early = par("earlyE", [0, 0, 0, 0])
    L += [f"{n}_loop:"] + (["s_barrier"] if opt.get("barS", 1) else []) + (["s_waitcnt vmcnt(0)"] if opt.get("ackA") else [])
    hafter = 1 if hold and w < opt.get("hsplit", 2) else 0
    if not hafter:
        L += (take(idle, par("dH", [0, 0, 0, 0])) if hold else []) + held
        idle[0:0] = idle2
    hpos = min(opt.get("hpos", 9), depA - 1)
    for k in range(depA):
        L += take(idle, par("gapA", [16, 16, 16, 16]) if k else par("dA", [0, 0, 0, 0])) + pollA(k)
        if hafter and k == hpos:
            L += take(idle, par("dH", [0, 0, 0, 0])) + held
            idle[0:0] = idle2
    if early:
        L += take(idle, par("dE", [0, 0, 0, 0])) + pollE
    idn = par("idn", [99, 99, 99, 99])
    keep = lambda x: x.startswith("s_") and not x.startswith("s_waitcnt")
    L += idle[:idn] + [x for x in idle[idn:] if keep(x)]
    after = [x for x in idle[idn:] if not keep(x)]
    if after:
        assert opt.get("idg") and not any("@sel" in x for x in after) and not opt.get("stamps")
        L += ["WAITL sel"]
    ne = lambda d, r: f"v_bitop3_b32 v{d}, v{r}, v{r+1}, s{sTag} bitop3:0x7e"

    def rung(k, young):
        P = Pa + 8 * k
        out = [f"s_waitcnt vmcnt({young+1})", f"{D32} {vr(Rd,4)}, {vr(Sel,4)}, {vr(P,4)}, 0", ne(C0, P), ne(C1, P + 2),
               f"s_waitcnt vmcnt({young})"] + stamp(opt, 9)
        out += [f"{D32} {vr(Rd,4)}, {vr(Sel,4)}, {vr(P+4,4)}, {vr(Rd,4)}", ne(C2, P + 4), f"v_or3_b32 v{C0}, v{C0}, v{C1}, v{C2}",
                ne(C1, P + 6), f"v_bitop3_b32 v{C0}, v{C0}, v{C1}, 1 bitop3:0xa8", f"v_cmp_ne_u32 vcc, 0, v{C0}", "s_nop 1"]
        for rot in (4, 8):
            for q in range(2):
                out.append(f"v_add_f32_dpp v{Rd+q}, v{Rd+q}, v{Rd+q} row_ror:{rot} row_mask:0xf bank_mask:0xf")
            if rot == 4:
                out.append("s_nop 0")
        return out + [cv(vPub, Rd)]
    L += rung(0, 2 * (depA - 1) + early + hafter * hold) + [f"s_cbranch_vccnz {n}_pa1", f"{n}_pub:", f"buffer_store_dword v{vPub}, v{vMBst}, {WSR}, s{sMBw} offen{opt.get('st', '')}", f"{n}_pub2:"] + stamp(opt, 0)
    X += [f"{n}_pa1:"]
    for k in range(1, depA):
        X += cnt(46, 0x10000) + pollA(k - 1) + rung(k, 2 * (depA - 1) + early + (hafter * hold if k <= hpos else 0)) + [f"s_cbranch_vccz {n}_pub"]
    X += [f"{n}_par:"]
    for k in range(depA):
        X += cnt(46) + pollA((k - 1) % depA) + rung(k, 2 * (depA - 1)) + [f"s_cbranch_vccz {n}_pub"]
    X += bail(f"{n}_par")
    HX = check_hazards(rung(0, 0) + rung(0, 0), name=n)
    assert not HX, HX
    mx = f"buffer_store_dword v{vPub}, v{vMBst}, {WSR}, s{sMX} offen sc1"
    X += [f"{n}_last:", mx, "s_branch R_DONE"]
    top = [f"s_cmp_eq_u32 s{sStep}, {opt.get('last', 63)}", f"s_cbranch_scc1 {n}_last", f"v_cmp_eq_u32 vcc, 0, v{vFlag}"]
    top += [f"v_mov_b64 {vr(vVX+k,2)}, {vr(vVXn+k,2)}" for k in range(0, 8, 2)]
    top += [f"s_xor_b32 s{sMBp}, s{sMBw}, 0x4000", f"s_add_u32 s{sMBw}, s{sMBw}, 0x2000", f"s_bitset0_b32 s{sMBw}, 15", f"s_xor_b32 s{sPAr}, s{sPAr}, 0x40000", f"s_mov_b32 s{sTO}, 0",
            f"s_cbranch_vccnz {n}_flag", f"{n}_flagok:",
            f"s_add_u32 s{sTmp}, s{sStep}, {(2 - opt.get('first', 0)) % 4}", f"s_lshr_b32 s{sTag}, s{sTmp}, 1",
            f"s_add_u32 s{sFL}, s{sFL}, 16", f"s_min_u32 s{sFL}, s{sFL}, s{sNeed}", f"s_add_u32 s{sStep}, s{sStep}, 1"]
    top += after
    X += [f"{n}_flag:"] + (["s_add_u32 s92, s92, 1"] if opt.get("dbgout") else []) + [f"buffer_load_dword v{vFlag}, off, {WSR}, s{sFL} sc1", "s_waitcnt vmcnt(0)",
          f"v_cmp_eq_u32 vcc, 0, v{vFlag}", f"s_cbranch_vccz {n}_flagok"] + bail(f"{n}_flag")
    ck4 = lambda r: [f"v_max3_u32 v{C0}, v{r}, v{r+1}, v{r+2}", f"v_max_u32 v{C0}, v{C0}, v{r+3}", f"v_cmp_eq_u32 vcc, -1, v{C0}"]
    we = f"ds_write_b128 v{vL16}, {vr(memE,4)} offset:{L_MEM + w*1024}"
    dep = par("dep", [3, 3, 3, 3])
    dual = par("dual", [0, 0, 0, 0])
    gapE = par("gapE", [16, 16, 16, 16])
    nl = 2 if dual else 1
    look = pollE + ([f"buffer_load_dwordx4 v{vG}, {WSR}, s{sMBr} offen sc1 lds"] if dual else [])
    assert not (dual and early)
    L += take(top, par("dE", [0, 0, 0, 0]) if not early else par("dL", [0, 0, 0, 0]))
    to = [f"s_add_u32 s{sTO}, s{sTO}, 1", f"s_cmp_ge_u32 s{sTO}, {SPIN_MAX}", "s_cbranch_scc1 L_END"]

    def attempt(k):
        return [f"s_waitcnt vmcnt({k + nl - 1})"] + stamp(opt, 1) + ck4(memE) + ([f"s_waitcnt vmcnt({k})"] if dual else [we])
    preL = par("preL", [0, 0, 0, 0])
    if opt.get("dmaL"):
        assert not dual
        pollL = pollL + [f"buffer_load_dwordx4 v{vG}, {WSR}, s{sMBl} offen sc1 lds ; @pm"]
    wf = par("wfirst", [0, 0, 0, 0])
    if wf:
        assert not (dual or early or preL) and depA <= 2 and dep >= 2
        R1 = 56
        look1 = [f"buffer_load_dwordx4 {vr(R1,4)}, v{vG}, {WSR}, s{sMBr} offen sc1"]
        for k in range(dep):
            L += (look1 if k else look) + (take(top, gapE) if k < dep - 1 else top)
        L += [f"s_waitcnt vmcnt({dep-1})"] + stamp(opt, 1) + [we] + ck4(memE) + [f"{n}_peok:"]
        again = [f"s_waitcnt vmcnt({dep-1})"] + stamp(opt, 1) + ck4(R1) + [we.replace(vr(memE, 4), vr(R1, 4)),
                 f"v_mov_b64 {vr(memE,2)}, {vr(R1,2)}", f"v_mov_b64 {vr(memE+2,2)}, {vr(R1+2,2)}", "s_nop 0", f"s_cbranch_vccz {n}_peok"]
        X += [f"{n}_pe1:"] + cnt(47) + look1 + again[:-4] + ["s_nop 0"] * (wf == 1) + [zero(aK0 + 2 * k) for k in range(2 * wf)] + again[-4:]
        for k in range(2, dep):
            X += cnt(47) + look1 + again
        X += [f"{n}_pe2:"] + cnt(47) + look1 + to + again + [f"s_branch {n}_pe2"]
    elif opt.get("ladder"):
        npost = dep - (1 if early else 0)
        for k in range(npost):
            L += look + (take(top, gapE) if k < npost - 1 else [])
        nL = len(pollL) if preL else 0
        L += (take(top, preL) + pollL if preL else []) + top
        L += attempt(nl * (dep - 1) + (1 if early else 0) + nL) + [f"s_cbranch_vccnz {n}_pe1", f"{n}_peok:"]
        ok = f"{n}_peok2" if preL else f"{n}_peok"
        X += [f"{n}_pe1:"]
        for k in range(1, dep):
            X += cnt(47) + look + attempt(nl * (dep - 1) + nL) + [f"s_cbranch_vccz {ok}"]
        X += [f"{n}_pe2:"] + cnt(47) + look + to + attempt(nl * (dep - 1)) + [f"s_cbranch_vccz {ok}", f"s_branch {n}_pe2"]
        if preL:
            X += [f"{ok}:"] + pollL + [f"s_branch {n}_peok"]
    else:
        for k in range(dep - 1 - (1 if early else 0)):
            L += look + take(top, gapE)
        L += top
        if early:
            L += look + attempt(dep) + [f"s_cbranch_vccz {n}_peok"]
        L += [f"{n}_pe:"] + look + cnt(47) + to + attempt(nl * (dep - 1)) + [f"s_cbranch_vccnz {n}_pe", f"{n}_peok:"]
    V = [sm(acc[("V", f[2])], vMemA + 4 * f[1], pl.reg[f]) for f in pl.v]
    main = []
    for p, f in enumerate(pl.qk):
        b = pl.reg[f] if f in pl.reg else vSt + 8 * (pl.qk_lds_pos.index(p) % 4)
        main.append(sm(acc[(f[0], f[2])], vMemA + 4 * f[1], b))
    vf = opt.get("vfill", 0)
    assert 0 <= vf <= 5
    main[16:16] = V[2:2 + vf]
    main[4:4] = V[:2]
    V = V[:2] + V[2 + vf:] + ["NOP"] * vf
    fm = {p: [] for p in range(-1, 34 + vf)}
    fv = {p: [] for p in range(-1, 34 + vf)}
    pos = lambda q: q + 2 + (vf if q >= 16 else 0)
    pa_ = par("barA", [2, 2, 2, 2])
    pl_ = par("posL", [11, 11, 11, 11])
    pb_ = opt.get("barB", 16)
    dmaL = opt.get("dmaL", 0)
    fm[pa_] += ["s_waitcnt lgkmcnt(0)", "s_barrier"] + stamp(opt, 2)
    for b in (1, 2, 3):
        fm[pa_ + (b - 1) // 2].append(f"ds_read_b128 {vr(vMemA+4*b,4)}, v{vL16} offset:{L_MEM + ((w+b)%4)*1024} ; @ma{b}")
    rdl = lambda b: f"ds_read_b128 {vr(vMemA+4*b,4)}, v{vL16} offset:{L_MEM + 4096 + ((w+b)%4)*1024} ; @ma{b}"
    pp_ = par("posP", [0, 0, 0, 0])
    assert 0 <= pa_ <= 3 and pa_ < pl_ and pl_ + 3 - dmaL < pb_ <= 17 + vf and pp_ < pl_
    if not preL:
        fm[pp_][0:0] = pollL
    if wf:
        assert pp_ >= wf - 1 and pa_ >= wf - 1
        fm[wf - 1].insert(0, f"s_cbranch_vccnz {n}_pe1")
    free = [p for p in range(4, 15) if p != pl_ and p != pp_]
    for k in range(4):
        rd = pl.lds_read(pl.qk[pl.qk_lds_pos[4 + k]], vSt + 8 * k, f"su{k}")
        fm[free[2 * k]].append(rd[0])
        fm[free[2 * k + 1]].append(rd[1])
    for b in (1, 2, 3):
        fm[1 + 4 * b].append(f"WAITL ma{b}")
    ck = ck4(memL)
    wl = [] if dmaL else [f"ds_write_b128 v{vL16}, {vr(memL,4)} offset:{L_MEM + 4096 + w*1024} ; @lw"]
    fm[pl_] += ["WAITV pl"] + wl
    for k in range(3):
        fv[pl_ + 1 - dmaL + k].append(ck[k])
    if dmaL:
        fm[pb_ - 1] += ["WAITV pm"] + (["WAITL su3"] if pb_ >= 16 else [])
    fm[pb_] += [f"s_cbranch_vccnz {n}_plr", f"{n}_plok:"] + ([] if dmaL else ["WAITL lw"]) + ["s_barrier", rdl(5)]
    mL = f"s_mov_b32 m0, {L_MEM + 4096 + w*1024}"
    X += [f"{n}_plr:", mL, "s_nop 0"] + pollL + cnt(47, 0x10000) + [f"s_mov_b32 m0, s{sM0}", "s_waitcnt vmcnt(0)"] + wl + ck + ["s_waitcnt lgkmcnt(0)", f"s_cbranch_vccz {n}_plok"] + bail(f"{n}_plr")
    fm[pb_ + 1] += [rdl(6), rdl(7)]
    fm[pp_ + 1].insert(0, f"s_mov_b32 m0, s{sM0}")
    for k in range(4):
        fm[pos(pl.qk_lds_pos[4 + k]) - 1].append(f"WAITL su{k}")
    kvl = [f"buffer_load_dwordx4 v{vL16}, {WSR}, s{sKV} offen sc1 lds",
           f"buffer_load_dwordx4 v{vL16}, {WSR}, s{sKV} offen offset:1024 sc1 lds",
           f"buffer_load_dwordx4 {vr(vVXn,4)}, v{vL16}, {WSR}, s{sKV2} offen sc1",
           f"buffer_load_dwordx4 {vr(vVXn+4,4)}, v{vL16}, {WSR}, s{sKV2} offen offset:1024 sc1",
           f"buffer_load_dword v{vFlag}, off, {WSR}, s{sFL} sc1",
           f"buffer_store_dword v{vNeg}, v{vMBst}, {WSR}, s{sMBp} offen{opt.get('st', '')}", mx]
    if opt.get("nokv"):
        kvl[0:4] = ["s_nop 0"] * 4
    if opt.get("trace"):
        kvl[6] = f"buffer_store_dword v17, v{vL16}, {WSR}, s36 offen"
    kvp = [x + par("kvoff", [0, 0, 0, 0]) for x in opt.get("kvpos", [20, 22, 25, 28, 21, 23, 31])]
    if opt.get("kvw"):
        kvp = opt["kvw"][w]
    later = {}
    for k, g in enumerate(kvl):
        assert kvp[k] + vf > max(3, max(opt.get("posP", [0])) + 1) and kvp[k] < 48
        if kvp[k] < 34:
            fm[kvp[k] + vf].insert(0, g)
        else:
            later.setdefault(kvp[k] + vf, []).append(g)
    for b in (5, 6, 7):
        fm[16 + vf + b].append(f"WAITL ma{b}")
    Tq = 92
    kx = {(0, 0): 104, (1, 0): 108, (0, 1): 112, (1, 1): 116, (0, 2): 120, (0, 3): 80, (1, 2): 104, (1, 3): 108}

    def kxr(t, i):
        return f"ds_read_b128 {vr(kx[(t,i)],4)}, v{vKX} offset:{L_KX + ((w+i)%4)*2048 + t*1024} ; @kx{t}{i}"
    for p, (t, i) in zip([24, 26, 27, 29, 30], [(0, 0), (1, 0), (0, 1), (1, 1), (0, 2)]):
        fm[p + vf].append(kxr(t, i))
    for k, x in enumerate([add(aK0), add(aK0 + 1), cv(Tq, aK0), add(aQ0), add(aQ0 + 1), cv(Tq + 1, aQ0), add(aK1), add(aK1 + 1)]):
        fv[26 + vf + k].append(x)
    fm[32 + vf].append(f"ds_write_b64 v{vQKw}, {vr(Tq,2)} offset:{L_QK + w*1088}")
    L += weave(main, {p: fm[p] + fv[p] for p in fm}) + stamp(opt, 3)
    qk = [vQKown, 92, 96, 100]

    def qkr(i, y):
        return f"ds_read_b64_tr_b16 {vr(qk[i]+2*y,2)}, v{vQKr} offset:{L_QK + ((w+i)%4)*1088 + y*272} ; @qk{i}"
    L += [V[2], f"s_add_u32 s{sMBr}, s{sMBr}, 0x2000", f"s_bitset0_b32 s{sMBr}, 15", cv(Tq + 2, aK1), f"s_add_u32 s{sMBl}, s{sMBr}, 0x1000",
          add(aQ1), add(aQ1 + 1), cv(Tq + 3, aQ1),
          f"ds_write_b64 v{vQKw}, {vr(Tq+2,2)} offset:{L_QK + w*1088 + 544} ; @qw",
          qkr(0, 0), qkr(0, 1), V[3]] + ([] if opt.get("kxlate") else [kxr(0, 3)]) + [V[4], V[5]]
    e1 = opt.get("e1", 1)
    assert 0 <= e1 <= 2
    L += V[6:6 + e1] + ["WAITL qw", "s_barrier"] + stamp(opt, 4) + [qkr(1, 0), qkr(1, 1)] + V[6 + e1:8] + [qkr(2, 0)]
    Sx0, Sx1, Sm = 68, 72, 76
    T0, T1, T2 = 78, 79, 96

    def smm(d, aop, i):
        return f"{D32} {vr(d,4)}, {vr(aop,4)}, {vr(qk[i],4)}, " + ("0" if i == 0 else vr(d, 4))
    Px, Pm, One, Oa, La = 104, 108, 112, 92, 100
    Op, oA = 84, [88, 68, 72, 76]
    L += ["WAITL qk0", smm(Sm, qk[0], 0), qkr(2, 1), qkr(3, 0), smm(Sx0, kx[(0, 0)], 0), qkr(3, 1), kxr(1, 2), smm(Sx1, kx[(1, 0)], 0),
          kxr(0, 3) if opt.get("kxlate") else kxr(1, 3), "WAITL qk1", smm(Sm, qk[1], 1), kxr(1, 3) if opt.get("kxlate") else "SO", smm(Sx0, kx[(0, 1)], 1),
          f"v_mov_b64 {vr(One,2)}, s[{s01}:{s01+1}]" if opt.get("pack", 0) else f"v_mov_b64 {vr(One,2)}, s[{sOnes}:{sOnes+1}]",
          f"v_mov_b64 {vr(One+2,2)}, s[{sOnes}:{sOnes+1}]",
          smm(Sx1, kx[(1, 1)], 1), "WAITL qk3", zero(wacc[0]), zero(wacc[0] + 2),
          ]
    merge = lambda d, r: f"v_cndmask_b32_dpp v{d}, v{r}, v{d}, vcc quad_perm:[2,3,2,3] row_mask:0xf bank_mask:0xf"
    ml_ = opt.get("mlast", 0)
    Tx = vQKown
    if ml_:
        assert opt.get("pack") and not opt.get("kxlate")
        L += [smm(Sx0, kx[(0, 2)], 2), f"s_mov_b64 vcc, s[{sMaskQ}:{sMaskQ+1}]", zero(wacc[1]), zero(wacc[1] + 2),
              smm(Sx0, kx[(0, 3)], 3), "WAITL kx13", zero(wacc[2]), zero(wacc[2] + 2),
              smm(Sx1, kx[(1, 2)], 2), f"v_xor_b32 v{vKX}, 0x2000, v{vKX}", f"v_mov_b32 v{vVMh}, s{sC}",
              smm(Sx1, kx[(1, 3)], 3), f"v_max3_f32 v{Tx}, v{Sx0}, v{Sx0+1}, v{Sx0+2}", f"v_mov_b32 v{Pm+1}, 0",
              smm(Sm, qk[2], 2), f"v_max_f32 v{Tx}, v{Tx}, v{Sx0+3}", f"v_mov_b32 v{Pm+2}, 0",
              smm(Sm, qk[3], 3)] + stamp(opt, 5)
    else:
        L += [
              smm(Sm, qk[2], 2), "SO", f"v_xor_b32 v{vKX}, 0x2000, v{vKX}", smm(Sm, qk[3], 3), "SO", f"v_mov_b32 v{vVMh}, s{sC}" if opt.get("pack", 0) else "NOP2",
              smm(Sx0, kx[(0, 2)], 2), "WAITL kx03", zero(wacc[1]), zero(wacc[1] + 2),
              smm(Sx0, kx[(0, 3)], 3), "WAITL kx13", zero(wacc[2]), zero(wacc[2] + 2),
              smm(Sx1, kx[(1, 2)], 2)]
        if opt.get("pack", 0):
            L += [f"s_mov_b64 vcc, s[{sMaskQ}:{sMaskQ+1}]", f"v_max_f32 v{T0}, v{Sm}, v{Sm+1}", merge(Sm, Sm + 1)]
        else:
            L += ["SO", f"v_max_f32 v{T0}, v{Sm}, v{Sm+1}"]
        L += [smm(Sx1, kx[(1, 3)], 3)] + stamp(opt, 5)
    so = []
    for k in range(4):
        so += pl.lds_read(pl.o[k], vMemA + 8 * k, f"so{k}")

    def fma(r):
        return f"v_fma_f32 v{r}, v{r}, s{sC}, -v{T0}"

    def ex(r):
        return f"v_exp_f32 v{r}, v{r}"
    if ml_:
        L += [f"v_max3_f32 v{Tx}, v{Tx}, v{Sx1}, v{Sx1+1}", f"v_max3_f32 v{Tx}, v{Tx}, v{Sx1+2}, v{Sx1+3}",
              V[8], "SO", merge(Sx0, Sx1), merge(Sx0 + 1, Sx1 + 1),
              f"v_max3_f32 v{T1}, v{Tx}, v{Sm}, v{Sm+1}", f"v_max3_f32 v{T2}, v{Tx}, v{Sm}, v{Sm+1}"]
    else:
        L += [f"v_max3_f32 v{T0}, v{T0}, v{Sx0}, v{Sx0+1}", f"v_max3_f32 v{T0}, v{T0}, v{Sx0+2}, v{Sx0+3}",
              V[8], "SO", f"v_mov_b32 v{Pm+1}, 0", f"v_mov_b32 v{Pm+2}, 0",
              f"v_max3_f32 v{T0}, v{T0}, v{Sx1}, v{Sx1+1}",
              f"v_max3_f32 v{T1}, v{T0}, v{Sx1+2}, v{Sx1+3}", f"v_max3_f32 v{T2}, v{T0}, v{Sx1+2}, v{Sx1+3}"]
    L += [V[9], "SO", f"v_permlane16_swap_b32 v{T1}, v{T2}",
          f"v_max_f32 v{T0}, v{T1}, v{T2}", f"v_max_f32 v{T1}, v{T1}, v{T2}",
          V[10], "SO", f"v_permlane32_swap_b32 v{T0}, v{T1}", f"v_max_f32 v{T0}, v{T0}, v{T1}",
          V[11], "SO"]
    pk = opt.get("pack", 0)
    vepi = [add(aV0), add(aV0 + 1), add(aV1), add(aV1 + 1), cv(vVMh, aV0), cv(vVMh + 1, aV1)]
    if not pk:
        L += [f"v_mul_f32 v{T0}, s{sC}, v{T0}",
              V[12], "SO", fma(Sm), V[13], "SO", fma(Sm + 1), V[14], "SO", fma(Sx0), V[15], "SO", fma(Sx0 + 1),
              ex(Sm), ex(Sm + 1), fma(Sx0 + 2), fma(Sx0 + 3), cv(Pm, Sm), cv(Pm + 3, Sm)] + vepi
    dn = opt.get("dnorm", 0)

    def mul(r, q=0):
        return f"v_mul_f32 v{r}, v{La+q}, v{r}"

    def pmul(r):
        return f"v_pk_mul_f32 {vr(r,2)}, {vr(r,2)}, {vr(La,2)} op_sel_hi:[1,0]"
    ow = [f"s_mov_b64 exec, s[{sMaskQ}:{sMaskQ+1}]", f"ds_write_b128 v{vO}, {vr(Op,4)} offset:{L_O + w*512} ; @ow", "s_mov_b64 exec, -1"]
    dup = [f"v_mov_b32_dpp v{oA[0]+q}, v{Op+q} quad_perm:[2,3,2,3] row_mask:0xf bank_mask:0xf" for q in range(4)]
    if pk:
        assert not dn
        back = lambda d, r: f"v_mov_b32_dpp v{d}, v{r} quad_perm:[0,1,0,1] row_mask:0xf bank_mask:0xf"
        padd = lambda r: f"v_pk_add_f32 {vr(r,2)}, {vr(r,2)}, {vr(r+2,2)}"
        pfma = lambda r: f"v_pk_fma_f32 {vr(r,2)}, {vr(r,2)}, s[{sC2}:{sC2+1}], {vr(T0,2)} op_sel_hi:[1,1,0] neg_lo:[0,0,1] neg_hi:[0,0,1]"
        La = Sx1
        L += [f"v_mul_f32_dpp v{T0}, v{T0}, v{vVMh} quad_perm:[2,3,2,3] row_mask:0xf bank_mask:0xf",
              ]
        if ml_:
            L += [V[12], "SO", merge(Sm, Sm + 1), V[13], "SO", merge(Sx0 + 2, Sx1 + 2), V[14], "SO", merge(Sx0 + 3, Sx1 + 3), V[15], "SO"]
        else:
            L += [V[12], "SO", merge(Sx0, Sx1), V[13], "SO", merge(Sx0 + 1, Sx1 + 1), V[14], "SO", merge(Sx0 + 2, Sx1 + 2),
                  V[15], "SO", merge(Sx0 + 3, Sx1 + 3)]
        L += [fma(Sm), ex(Sm), pfma(Sx0), pfma(Sx0 + 2), back(Sm + 1, Sm), padd(aV0), padd(aV1),
              cv(Pm, Sm), cv(Pm + 3, Sm)] + vepi[4:]
        L += [ex(Sx0), ex(Sx0 + 1), f"{D16} {vr(Oa,4)}, {vr(vVMh,2)}, {vr(Pm,2)}, 0", cv(Px, Sx0), ex(Sx0 + 2),
              f"{D16} {vr(Oa+4,4)}, {vr(vVMh,2)}, {vr(Pm+2,2)}, 0", ex(Sx0 + 3), f"v_cvt_pk_bf16_f32 v{Px-1}, v{Sm}, 0",
              cv(Px + 1, Sx0 + 2), back(Px + 2, Px), "s_nop 0",
              f"{D32} {vr(La,4)}, {vr(One,4)}, {vr(Px-2,4)}, 0", back(Px + 3, Px + 1), "s_nop 1",
              f"{D32} {vr(Oa,4)}, {vr(vVX,4)}, {vr(Px,4)}, {vr(Oa,4)}", "SO", "SO",
              f"{D32} {vr(Oa+4,4)}, {vr(vVX+4,4)}, {vr(Px,4)}, {vr(Oa+4,4)}"] + stamp(opt, 6)
        L += [f"v_add_f32_dpp v{La}, v{La}, v{La} quad_perm:[2,3,0,1] row_mask:0xf bank_mask:0xf", f"v_rcp_f32 v{La}, v{La}"]
        if opt.get("osplit", 0) == 1:
            L += [ow[0], mul(Oa), mul(Oa + 1), mul(Oa + 2), mul(Oa + 3), cv(Op, Oa), cv(Op + 1, Oa + 2),
                  f"ds_write_b64 v{vO}, {vr(Op,2)} offset:{L_O + w*512}", pmul(Oa + 4), pmul(Oa + 6), cv(Op + 2, Oa + 4), cv(Op + 3, Oa + 6),
                  f"ds_write_b64 v{vO}, {vr(Op+2,2)} offset:{L_O + w*512 + 8} ; @ow", ow[2]]
        elif opt.get("osplit", 0) == 2:
            L += ["s_nop 4"] + [merge(Oa + q, Oa + 4 + q) for q in range(4)] + [pmul(Oa), pmul(Oa + 2), cv(Op, Oa), cv(Op + 1, Oa + 2),
                  f"ds_write_b64 v{vVMh+1}, {vr(Op,2)} offset:{L_O + w*512} ; @ow"]
            dup = [f"v_mov_b32_dpp v{oA[0]+q}, v{Op+(q&1)} quad_perm:[{'2,3,2,3' if q < 2 else '0,1,0,1'}] row_mask:0xf bank_mask:0xf" for q in range(4)]
            L[L.index("s_nop 4")] = f"v_cndmask_b32 v{vVMh+1}, 8, {0}, vcc".replace(", 0, vcc", f", v{Pm+1}, vcc")
            L.insert(L.index(merge(Oa, Oa + 4)), f"v_add_u32 v{vVMh+1}, v{vVMh+1}, v{vO}")
            L.insert(L.index(merge(Oa, Oa + 4)), "s_nop 1")
        else:
            L += ["s_nop 0", mul(Oa), mul(Oa + 1), mul(Oa + 2), mul(Oa + 3), pmul(Oa + 4), pmul(Oa + 6),
                  cv(Op, Oa), cv(Op + 1, Oa + 2), cv(Op + 2, Oa + 4), cv(Op + 3, Oa + 6)] + ow
        L += dup + ["WAITL so3", "s_nop 0"]
    elif not dn:
        L += [f"{D16} {vr(La,4)}, {vr(One,2)}, {vr(Pm,2)}, 0", ex(Sx0), fma(Sx1),
              f"{D16} {vr(Oa,4)}, {vr(vVMh,2)}, {vr(Pm,2)}, 0", ex(Sx0 + 1), fma(Sx1 + 1),
              f"{D16} {vr(Oa+4,4)}, {vr(vVMh,2)}, {vr(Pm+2,2)}, 0", fma(Sx1 + 2), fma(Sx1 + 3),
              ex(Sx0 + 2), ex(Sx0 + 3), ex(Sx1), ex(Sx1 + 1), ex(Sx1 + 2), ex(Sx1 + 3),
              cv(Px, Sx0), cv(Px + 1, Sx0 + 2), cv(Px + 2, Sx1), cv(Px + 3, Sx1 + 2), "s_nop 1",
              f"{D32} {vr(La,4)}, {vr(One,4)}, {vr(Px,4)}, {vr(La,4)}", "SO", "SO",
              f"{D32} {vr(Oa,4)}, {vr(vVX,4)}, {vr(Px,4)}, {vr(Oa,4)}", "SO", "SO",
              f"{D32} {vr(Oa+4,4)}, {vr(vVX+4,4)}, {vr(Px,4)}, {vr(Oa+4,4)}"] + stamp(opt, 6)
        L += [f"v_rcp_f32 v{La}, v{La}", "s_nop 1", mul(Oa), mul(Oa + 1), mul(Oa + 2), mul(Oa + 3), pmul(Oa + 4), pmul(Oa + 6),
              cv(Op, Oa), cv(Op + 1, Oa + 2), cv(Op + 2, Oa + 4), cv(Op + 3, Oa + 6)] + ow + dup + ["WAITL so3", "s_nop 0"]
    else:
        L += [ex(Sx0), fma(Sx1), f"{D16} {vr(Oa,4)}, {vr(vVMh,2)}, {vr(Pm,2)}, 0", ex(Sx0 + 1), fma(Sx1 + 1),
              f"{D16} {vr(Oa+4,4)}, {vr(vVMh,2)}, {vr(Pm+2,2)}, 0", fma(Sx1 + 2), fma(Sx1 + 3),
              ex(Sx0 + 2), ex(Sx0 + 3), ex(Sx1), ex(Sx1 + 1), ex(Sx1 + 2), ex(Sx1 + 3),
              cv(Px, Sx0), cv(Px + 1, Sx0 + 2), cv(Px + 2, Sx1), cv(Px + 3, Sx1 + 2), "s_nop 1",
              f"{D32} {vr(Oa,4)}, {vr(vVX,4)}, {vr(Px,4)}, {vr(Oa,4)}", "SO", "SO",
              f"{D32} {vr(Oa+4,4)}, {vr(vVX+4,4)}, {vr(Px,4)}, {vr(Oa+4,4)}"] + stamp(opt, 6)
        L += ["SO", "SO", f"{D16} {vr(La,4)}, {vr(Pm,2)}, {vr(One,2)}, 0", cv(Op, Oa), cv(Op + 1, Oa + 2), "s_nop 1",
              cv(Op + 2, Oa + 4), cv(Op + 3, Oa + 6)] + ow + [f"{D32} {vr(La,4)}, {vr(Px,4)}, {vr(One,4)}, {vr(La,4)}"] + dup + ["WAITL so3", "s_nop 0"]
    for i, x in enumerate(L):
        if x == "SO":
            r = vMemA + 4 * (8 - len(so))
            busy = not so or L[i - 1] == "NOP" or any(y.startswith(SM) and f", {vr(r,4)}, " in y for y in L[i:])
            L[i] = "NOP2" if busy else so.pop(0)
    assert not so
    main = []
    for p, f in enumerate(pl.o):
        b = pl.reg[f] if f in pl.reg else vMemA + 8 * (pl.o_lds_pos.index(p) % 4)
        main.append(sm(wacc[f[2]], oA[f[1]], b))
    fill = {p: [] for p in range(-1, 16)}
    po = opt.get("barpos2", 0)
    assert 0 <= po <= 2
    fill[po] += ["WAITL ow", "s_barrier"] + stamp(opt, 7)
    for i in (1, 2, 3):
        fill[po].append(f"ds_read_b128 {vr(oA[i],4)}, v{vO} offset:{L_O + ((w+i)%4)*512} ; @oa{i}")
    for k in range(4):
        rd = pl.lds_read(pl.o[pl.o_lds_pos[4 + k]], vMemA + 8 * k, f"sp{k}")
        fill[[1, 3, 5, 6][k]].append(rd[0])
        fill[[2, 4, 6, 7][k]].append(rd[1])
    fill[10].append("WAITL sp3")
    for i in (1, 2, 3):
        fill[2 + i].append(f"WAITL oa{i}")

    def out(sl):
        r = wacc[sl]
        sc = [] if not dn else [mul(r + q, 2 + (q & 1)) for q in range(4)] if sl < 3 else \
            [f"v_pk_mul_f32 {vr(r+q,2)}, {vr(r+q,2)}, {vr(La+2,2)}" for q in (0, 2)]
        return sc + [cv(r, r), cv(r + 1, r + 2), f"v_bfi_b32 v{r}, 1, s{sTag}, v{r}", f"v_bfi_b32 v{r+1}, 1, s{sTag}, v{r+1}",
                     st2(sl) if sl < 4 - hold else "s_nop 0"]
    if dn:
        fill[1].append(f"v_rcp_f32 v{La+2}, v{La+2}")
        fill[2].append(f"v_rcp_f32 v{La+3}, v{La+3}")
    wp = opt.get("wpos", [8, 8, 8, 8, 9, 11, 11, 11, 11, 12, 14, 14, 14, 14, 15])
    tail = []
    for sl in range(3):
        o = out(sl)
        p = wp[5 * sl:5 * sl + 5]
        assert p == sorted(p) and p[0] >= 7 + 3 * sl and p[4] <= 16
        if p[0] == 7 + 3 * sl:
            fill[p[0]] += nops(4 - len([x for x in fill[p[0]] if not x.startswith("WAIT")]))
        fill[min(p[0], 15)] += o[:-5]
        for q, x in zip(p, o[-5:]):
            if q == 16:
                tail.append(x)
            elif x.startswith("v_") or q == p[3]:
                fill[q].append(x)
            else:
                fill[q].insert(0, x)
    body = weave(main, fill) + tail
    for k in range(8):
        if not check_hazards([x for x in body[-24:] if not x.startswith("WAIT")] + nops(k) + out(3)):
            break
    L += body + nops(k) + out(3) + stamp(opt, 8) + [f"s_branch {n}_loop"]
    if opt.get("pa1"):
        L = ["s_nop 0" if x.endswith(", 0x40000") else x for x in L]
        k = L.index(f"s_lshr_b32 s{sTag}, s{sTmp}, 1")
        L[k - 1:k + 1] = [f"s_add_u32 s{sTag}, s{sStep}, {(1 - opt.get('first', 0)) % 2}", "s_nop 0"] if L[k - 1].startswith(f"s_add_u32 s{sTmp}") else None
    L = [x for x in L if x not in ("NOP", "NOP2")]
    i0 = L.index(f"{n}_peok:")
    mf = [i for i in range(i0, len(L)) if L[i].startswith("v_smfmac") or L[i].startswith("v_mfma")]
    for p in sorted(later, reverse=True):
        L[mf[p] + 1:mf[p] + 1] = later[p]
    if opt.get("fine"):
        L = [x for x in L if not any(x == stamp(opt, k)[0] for k in range(3, 8))]
        i0 = L.index(f"{n}_peok:")
        mf = [i for i in range(i0, len(L)) if L[i].startswith("v_smfmac") or L[i].startswith("v_mfma")]
        for k, p in reversed(list(enumerate(opt["fine"]))):
            L.insert(mf[p] + 1, stamp(opt, 3 + k)[0])
    if opt.get("nocheck"):
        L = [x for x in L if not (x.startswith("s_cbranch_vccnz") and ("_pa1" in x or "_pe1" in x or "_plr" in x))]
    for pat in opt.get("drop", []):
        L = [x for x in L if x.startswith("s_") or x.endswith(":") or not re.search(pat, x)]
    assert f"s_cbranch_scc1 {n}_last" in L and f"s_add_u32 s{sStep}, s{sStep}, 1" in L and f"s_cmp_eq_u32 s{sStep}, {opt.get('last', 63)}" in L
    L = resolve_waits(L)
    if opt.get("al8"):
        L = align8(L)
    errs = check_hazards(L + L[:60], name=n) if not (opt.get("nocheck") or opt.get("drop")) else []
    for e in errs:
        print("HAZARD", e)
    assert not errs
    return L, X, iv + idle2[2:] + il + [f"v_mov_b64 {vr(memE,2)}, -1", f"v_mov_b64 {vr(memE+2,2)}, -1", f"v_mov_b32 v{vNeg}, -1"]


sMaskQ, sOnes, sTag, sMBp, sC2, s01 = 14, 16, 18, 19, 12, 20
sP = [sPAw, 8, 9, 10]
sG = [50, 52, 54]


SLOW = dict(st=" sc1", mb=WS_MB2, pa=WS_PA2, first=0, touch2=0, touch3=0, pfc2=[], hold=[0] * 4, dH=[0] * 4, depA=[1] * 4, dep=[1] * 4,
            dA=[40] * 4, dE=[20] * 4, idg=0, idn=[99] * 4, diag=0, stamps=0, markr=[], stept=[], dbgout=0, ackA=1, flc=23, goc=(14, 22))


def role_s(a, opt):
    o = dict(opt)
    o.update(SLOW)
    o.update(opt.get("slow", {}))
    o["last"] = opt["first"]
    b = Asm()
    role_r(b, o)
    assert b.lines.pop() == "s_branch L_END"
    a.label("ROLE_S0")
    a(f"""
    s_mov_b32 s84, s{sH}
    s_sub_u32 s{sTmp}, s{sXCC}, 1
    s_lshl_b32 s{sTmp}, s{sTmp}, 3
    s_and_b32 s{sH}, s{sH}, 7
    s_add_u32 s{sH}, s{sH}, s{sTmp}
    """)
    a.lines += [re.sub(r"\bR([0-3]_|_DONE)", r"S\1", x).replace("ROLE_R", "ROLE_S") for x in b.lines]
    if opt.get("diag") and opt.get("marks"):
        a("s_memrealtime s[96:97]\ns_waitcnt lgkmcnt(0)\ns_mov_b32 s91, s96")
    a(f"""
    s_waitcnt vmcnt(0) lgkmcnt(0)
    s_barrier
    s_mov_b32 s{sH}, s84
    v_lshrrev_b32 v0, 4, v{vL16}
    s_branch ROLE_FU
    """)


def role_r(a, opt):
    a.label("ROLE_R")
    r_setup(a, opt)
    for w in (1, 2, 3):
        a(f"s_cmp_eq_u32 s{sW}, {w}\ns_cbranch_scc1 R{w}_start")
    for w in range(4):
        pl = Plan(w)
        a.label(f"R{w}_start")
        st = r_startup(w, pl, opt)
        for e in check_hazards(st, timeaware=False, name=f"R{w}start"):
            print("HAZARD", e)
        a.lines += st
        a(f"""
        s_add_u32 s{sP[1]}, s{sPAw}, 0x1000
        s_add_u32 s{sP[2]}, s{sPAw}, 0x2000
        s_add_u32 s{sP[3]}, s{sPAw}, 0x3000
        s_mov_b32 s{s01}, 0
        s_mov_b32 s{s01+1}, 0x3f803f80
        s_mov_b32 s{sC2}, s{sC}
        s_mov_b32 s{sC2+1}, s{sC}
        s_mov_b32 s{sMaskQ}, 0xcccccccc
        s_mov_b32 s{sMaskQ+1}, 0xcccccccc
        s_mov_b32 s{sOnes}, 0x3f803f80
        s_mov_b32 s{sOnes+1}, 0x3f803f80
        """)
        if opt.get("dbgout"):
            a("s_mov_b32 s92, 0")
        if opt.get('stamps'):
            for k in range(36, 50):
                a(f's_mov_b32 s{k}, 0')
            a('s_memtime s[90:91]')
            if opt.get("trace"):
                a(f"s_mov_b32 s36, {WS_XN + 0x180000}")
        if opt.get("diag"):
            a("s_memtime s[96:97]\ns_memrealtime s[98:99]\ns_waitcnt lgkmcnt(0)")
        L, X, idle = r_loop(w, pl, opt)
        a.lines += idle
        done0 = opt.get("hinit") and opt.get("pub0") and not opt.get("r_only") and not opt.get("first")
        a(f"s_waitcnt lgkmcnt(0)\ns_branch R{w}_pub{'2' if done0 else ''}")
        a(".p2align 6")
        a.lines += ["s_nop 0"] * (2 * opt.get("shift", [0] * 4)[w])
        if opt.get("alx"):
            for lab in ("pa1", "pe1"):
                X.insert(X.index(f"R{w}_{lab}:"), ".p2align 5")
        a.lines += L + X + pl.side
    a.label("R_DONE")
    if opt.get("wb"):
        a(f"s_cmp_lg_u32 s{sW}, 0\ns_cbranch_scc1 R_NOWB\ns_cmp_lg_u32 s{sH}, 0\ns_cbranch_scc1 R_NOWB\ns_waitcnt vmcnt(0)\nbuffer_wbl2 sc1\ns_waitcnt vmcnt(0)")
        a.label("R_NOWB")
    if opt.get("diag"):
        a(f"""
        s_memtime s[72:73]
        s_memrealtime s[74:75]
        s_waitcnt lgkmcnt(0)
        s_mov_b32 s49, s72
        s_sub_u32 s72, s72, s96
        s_mov_b32 s93, s72
        v_mov_b32 v20, s72
        v_mov_b32 v21, s100
        v_mov_b32 v22, s98
        v_mov_b32 v23, s74
        s_lshl_b32 s72, s{sH}, 2
        s_add_u32 s72, s72, s{sW}
        s_lshl_b32 s72, s72, 6
        s_add_u32 s72, s72, {WS_DIAG}
        buffer_store_dwordx4 v[20:23], off, s[{sWS}:{sWS+3}], s72
        """)
        if opt.get("raw"):
            a("s_mov_b32 s47, s49")
        for k in range(12):
            a(f"v_mov_b32 v{24+k}, s{36+k}")
        for k in range(3):
            a(f"buffer_store_dwordx4 v[{24+4*k}:{27+4*k}], off, s[{sWS}:{sWS+3}], s72 offset:{16+16*k}")
        if opt.get("raw") or opt.get("trace"):
            a("s_sleep 40\ns_add_u32 s72, s72, 0x2000")
            for k in range(8):
                a(f"s_memtime s[{36+4*k}:{37+4*k}]\ns_memrealtime s[{38+4*k}:{39+4*k}]")
            a("s_waitcnt lgkmcnt(0)")
            for k in range(16):
                a(f"v_mov_b32 v{40+k}, s{36+2*k}")
            for k in range(4):
                a(f"buffer_store_dwordx4 v[{40+4*k}:{43+4*k}], off, s[{sWS}:{sWS+3}], s72 offset:{16*k}")
    a("s_branch L_END")
```

```python
from asmlib import *
from layout import *

M32 = "v_mfma_f32_32x32x16_bf16"
M8 = "v_mfma_f32_32x32x8_bf16"
D32 = "v_mfma_f32_16x16x32_bf16"
WSR = f"s[{sWS}:{sWS+3}]"
sTO, sT0, sT1, sT2 = 35, 67, 68, 69


def cv(d, r):
    return f"v_cvt_pk_bf16_f32 v{d}, v{r}, v{r+1}"


def srd(a, s, p, nbytes):
    a(f"s_mov_b32 s{s}, s{p}\ns_mov_b32 s{s+1}, s{p+1}\ns_mov_b32 s{s+2}, {hex(nbytes)}\ns_mov_b32 s{s+3}, 0x20000")


def spin(a, name, load, chk, sleep=1):
    a(f"s_mov_b32 s{sTO}, 0")
    a.label(name)
    a(load)
    a("s_waitcnt vmcnt(0)")
    a(chk)
    a(f"s_cbranch_vccz {name}_ok")
    if sleep:
        a(f"s_sleep {sleep}")
    a(f"""
    s_add_u32 s{sTO}, s{sTO}, 1
    s_cmp_lt_u32 s{sTO}, {SPIN_MAX}
    s_cbranch_scc1 {name}
    s_branch L_END
    """)
    a.label(name + "_ok")


def mark(a, opt, k):
    if opt.get("diag"):
        a(f"s_memrealtime s[96:97]\ns_waitcnt lgkmcnt(0)\ns_mov_b32 s{94 + k}, s96")


def wacc(a, opt, sign, which=1):
    if opt.get("waitacc") == which:
        a(f"s_{'memtime' if opt.get('wcyc') else 'memrealtime'} s[96:97]\ns_waitcnt lgkmcnt(0)\ns_{'add' if sign > 0 else 'sub'}_u32 s93, s93, s96")
        if sign > 0:
            a("s_add_u32 s94, s93, s100")


def count_cleared(a, name):
    a(f"s_cmp_lg_u32 s{sW}, 1\ns_cbranch_scc1 {name}")
    a.lines += cleared(name)


def load_proj_weights(a, mats, rowbytes, scol, opt, name, hooks={}, base=0, R=8):
    L = Asm()
    L(f"""
    v_lshrrev_b32 v2, 4, v0
    v_and_b32 v3, 15, v0
    v_lshlrev_b32 v4, 2, v2
    v_xor_b32 v4, v4, v3
    v_lshlrev_b32 v4, 4, v4
    s_lshl_b32 s{sT0}, s{sW}, 4
    v_add_u32 v5, s{sT0}, v2
    v_mul_u32_u24 v5, {rowbytes}, v5
    v_add_u32 v4, v4, v5
    v_add_u32 v4, s{scol}, v4
    v_bfe_u32 v5, v0, 2, 2
    v_lshrrev_b32 v6, 5, v0
    v_lshl_add_u32 v6, v6, 3, v5
    v_lshlrev_b32 v6, 8, v6
    v_xor_b32 v5, s{sW}, v5
    v_lshl_add_u32 v6, v5, 6, v6
    v_bfe_u32 v5, v0, 4, 1
    v_lshl_add_u32 v6, v5, 5, v6
    v_and_b32 v5, 3, v0
    v_lshl_add_u32 v6, v5, 3, v6
    v_add_u32 v7, 0x10000, v6
    s_lshl_b32 s{sT2}, s{sW}, 12
    """)
    n = 8 * len(mats)

    def dma(c):
        s = mats[c >> 3][0]
        for i in range(4):
            L(f"""
            s_add_u32 m0, s{sT2}, {base + (c % R) * 16384 + i * 1024}
            s_mov_b32 s{sT0}, {(64 * (c & 7) + 4 * i) * rowbytes}
            buffer_load_dwordx4 v4, s[{s}:{s+3}], s{sT0} offen lds ; @c{c}
            """)
    for c in range(R):
        dma(c)
    for c in range(n):
        L(f"WAITV c{c}\ns_barrier")
        if opt.get("markc") == c:
            mark(L, opt, 1)
        if c >= 1 and c + R - 1 < n:
            dma(c + R - 1)
        L.lines += hooks.get(c, [])
        f, rb = mats[c >> 3][1]
        for kk in range(4):
            for y in range(2):
                o = base + (c % R) * 16384 + (16 * kk + 4 * y) * 256
                L(f"ds_read_b64_tr_b16 {vr((f, rb + 16 * (c & 7) + 4 * kk + 2 * y), 2)}, v{6 + (o >> 16)} offset:{o & 0xffff}")
        L("s_waitcnt lgkmcnt(0)")
        L.lines += hooks.get(c + 0.5, [])
    L("s_barrier")
    a.lines += resolve_waits(L.lines)


def xn_dma(a, sseg, sbuf):
    a(f"""
    s_lshl_b32 s{sT0}, s{sseg}, 15
    s_lshl_b32 s{sT1}, s{sW}, 13
    s_add_u32 s{sT0}, s{sT0}, s{sT1}
    s_add_u32 s{sT0}, s{sT0}, {WS_XN}
    s_add_u32 s{sT1}, s{sT1}, s{sbuf}
    """)
    for k in range(2):
        a(f"s_mov_b32 m0, s{sT1}\ns_nop 0")
        for i in range(4):
            a(f"buffer_load_dwordx4 v1, {WSR}, s{sT0} offen offset:{1024 * i} sc1 lds")
        if k == 0:
            a(f"s_add_u32 s{sT0}, s{sT0}, 0x1000\ns_add_u32 s{sT1}, s{sT1}, 0x1000")


def xn_weave(slots, first, step, sseg, sbuf):
    x = Asm()
    xn_dma(x, sseg, sbuf)
    k = first
    for ln in x.lines:
        slots[k].append(ln)
        if ln.startswith("buffer_load") or ln.startswith(f"s_add_u32 s{sT1}"):
            k += step if ln.startswith("buffer_load") else 1


def proj_gemm(a, vaddr, offs, frag, prods):
    L = []
    rd = lambda k: f"ds_read_b128 {vr(frag + 4 * (k % 4), 4)}, v{vaddr} offset:{offs(k)} ; @x{k}"
    for k in range(3):
        L.append(rd(k))
    for k in range(32):
        L.append(f"WAITL x{k}")
        for q, (acc, wb, isA) in enumerate(prods):
            wv, xv = vr((wb[0], wb[1] + 4 * k), 4), vr(frag + 4 * (k % 4), 4)
            aa, bb = (wv, xv) if isA else (xv, wv)
            L.append(f"{M32} {vr(acc,16)}, {aa}, {bb}, " + ("0" if k == 0 else vr(acc, 16)))
            if q == 0 and k + 3 < 32:
                L.append(rd(k + 3))
    a.lines += resolve_waits(L)


GOSLEEP = [4]


def wait_xn(a, name):
    a(f"v_mov_b32 v3, {DBG_GO}")
    spin(a, name, f"global_load_dword v4, v3, s[{P_DBG}:{P_DBG+1}] sc1", "v_cmp_eq_u32 vcc, 0, v4", sleep=GOSLEEP[0])


QL_XN, QL_ST, QL_MEM, QL_MASK, QL_SX = 0, 65536, 65536 + 73728, 65536 + 73728 + 8192, 65536 + 73728 + 8192 + 4096
QL_ZERO = QL_SX + 4096
NREP = 3


def flag_store(soff, vone):
    return ["s_mov_b64 exec, 1", f"buffer_store_dword v{vone}, off, {WSR}, s{soff} sc1", "s_mov_b64 exec, -1"]


def gemm_list(vaddr, offs, frag, prods, tag):
    rd = lambda k: f"ds_read_b128 {vr(frag + 4 * (k % 4), 4)}, v{vaddr} offset:{offs(k)} ; @{tag}{k}"
    slots = []
    for k in range(32):
        for q, (acc, wb, isA) in enumerate(prods):
            wv, xv = vr((wb[0], wb[1] + 4 * k), 4), vr(frag + 4 * (k % 4), 4)
            aa, bb = (wv, xv) if isA else (xv, wv)
            sl = [f"WAITL {tag}{k}"] if q == 0 else []
            sl.append(f"{M32} {vr(acc,16)}, {aa}, {bb}, " + ("0" if k == 0 else vr(acc, 16)))
            if q == 0 and k + 3 < 32:
                sl.append(rd(k + 3))
            slots.append(sl)
    return [rd(k) for k in range(3)], slots


def role_qa(a, opt):
    sHead, sRep, sSa, sSb, sBuf, sSegN, sSta, sStb, sKV, sFkv, sFo, sAct, sMx, sCn = 26, 27, 28, 29, 30, 31, 32, 33, 34, 64, 65, 66, 70, 71
    sPend, sCp = 72, 74
    vXa, vSt, vKst, vVst, vOst, vMa, vHi, vOne, vKw, vKr = 10, 11, 12, 13, 14, 15, 16, 17, 18, 19
    aK, aV, aQ, Fr, Pk = 32, 48, 64, 80, 96
    WK, WV, WQ = ("a", 0), ("a", 128), ("v", 128)
    GOSLEEP[0] = opt.get("gosleep", 4)
    a.label("ROLE_QA")
    srd(a, 8, P_WK, 0x400000)
    srd(a, 12, P_WV, 0x400000)
    srd(a, 16, P_WQ, 0x400000)
    ek = opt.get("earlykv", 0)
    qp = opt.get("qpf", -1) if ek else -1

    def band(sd):
        out = []
        for c in range(8):
            out += [f"s_mov_b32 s{sT0}, {(256 * (c & 1) + 32 * (c >> 1)) * 8192}", f"buffer_load_dwordx4 v[124:127], v31, s[{sd}:{sd+3}], s{sT0} offen"]
        return out
    a("v_mov_b32 v31, v13")
    for sd in [12, 16][:opt.get("pfq", 3) - 1]:
        if sd == 16 and qp >= 0:
            a(f"s_cmp_lt_u32 s{sH}, {8 * NREP}\ns_cbranch_scc1 QA_nopf")
        a(f"s_waitcnt vmcnt({opt.get('pfk', 2)})")
        a.lines += band(sd)
    a.label("QA_nopf")
    a(f"""
    s_cmp_ge_u32 s{sH}, {8 * NREP}
    s_cbranch_scc1 {"ROLE_S0" if opt.get("first") else "ROLE_FU"}
    s_sub_u32 s{sHead}, s{sXCC}, 1
    s_lshl_b32 s{sHead}, s{sHead}, 3
    s_and_b32 s{sT0}, s{sH}, 7
    s_add_u32 s{sHead}, s{sHead}, s{sT0}
    s_lshr_b32 s{sRep}, s{sH}, 3
    v_lshlrev_b32 v1, 4, v0
    """)
    a(f"""
    v_lshrrev_b32 v2, 5, v0
    v_and_b32 v3, 31, v0
    v_lshlrev_b32 v4, 8, v2
    v_bfe_u32 v5, v3, 3, 1
    v_lshl_add_u32 v5, v5, 10, v4
    v_lshrrev_b32 v6, 4, v3
    v_lshl_add_u32 v5, v6, 7, v5
    v_and_b32 v7, 7, v3
    v_lshl_add_u32 v{vKst}, v7, 4, v5
    v_and_b32 v8, 15, v3
    v_lshl_add_u32 v5, v8, 4, v4
    v_lshl_add_u32 v{vVst}, v6, 10, v5
    v_mul_u32_u24 v6, {ACT_UNIT}, v6
    v_add_u32 v{vOst}, v5, v6
    v_bfe_u32 v5, v0, 3, 1
    v_lshl_add_u32 v5, v5, 7, v4
    v_bfe_u32 v6, v0, 1, 1
    v_lshl_add_u32 v5, v6, 6, v5
    v_and_b32 v6, 1, v0
    v_lshl_add_u32 v5, v6, 4, v5
    v_add_u32 v5, {QL_MEM}, v5
    v_lshrrev_b32 v6, 2, v0
    v_xor_b32 v6, v6, v0
    v_and_b32 v6, 4, v6
    v_mov_b32 v9, {QL_ZERO + 32}
    v_cmp_eq_u32 vcc, 0, v6
    s_lshl_b32 s{sT0}, s{sW}, 10
    s_add_u32 s{sT0}, s{sT0}, {QL_SX}
    v_cndmask_b32 v{vMa}, v9, v5, vcc
    v_bfe_u32 v5, v0, 2, 1
    v_lshlrev_b32 v5, 8, v5
    v_bfe_u32 v6, v0, 4, 1
    v_lshl_add_u32 v5, v6, 7, v5
    v_bfe_u32 v6, v0, 3, 1
    v_lshl_add_u32 v5, v6, 6, v5
    v_and_b32 v6, 3, v0
    v_lshl_add_u32 v5, v6, 4, v5
    v_lshl_add_u32 v5, v2, 3, v5
    v_add_u32 v{vKw}, s{sT0}, v5
    v_lshlrev_b32 v5, 7, v2
    v_lshl_add_u32 v5, v7, 4, v5
    v_add_u32 v{vKr}, s{sT0}, v5
    v_add_u32 v{vHi}, {QL_MEM}, v1
    v_mov_b32 v{vOne}, 1
    v_lshlrev_b32 v2, 2, v2
    v_sub_u32 v2, v3, v2
    v_mov_b32 v3, 0xf149f2ca
    """)
    for r in range(16):
        a(f"v_cmp_gt_i32 vcc, {(r & 3) + 8 * (r >> 2)}, v2\ns_nop 1\nv_cndmask_b32 v{aK + r}, 0, v3, vcc")
    for q in range(4):
        a(f"ds_write_b128 v{vHi}, {vr(aK + 4 * q, 4)} offset:{QL_MASK - QL_MEM + 1024 * q}")
    a("v_mov_b64 v[4:5], 0\nv_mov_b64 v[6:7], 0")
    for q in range(8):
        a(f"ds_write_b128 v{vHi}, v[4:7] offset:{QL_ZERO - QL_MEM + 1024 * q}")
    a(f"""
    s_mul_i32 s{sKV}, s{sHead}, {KV_HEAD}
    s_lshl_b32 s{sT0}, s{sRep}, 14
    s_lshl_b32 s{sT1}, s{sW}, 11
    s_add_u32 s{sKV}, s{sKV}, s{sT0}
    s_add_u32 s{sKV}, s{sKV}, s{sT1}
    s_add_u32 s{sKV}, s{sKV}, {WS_KV}
    s_lshl_b32 s{sMx}, s{sRep}, 13
    s_add_u32 s{sMx}, s{sMx}, s{sT1}
    s_add_u32 s{sMx}, s{sMx}, {WS_MEMX}
    s_lshl_b32 s{sFkv}, s{sHead}, 10
    s_lshl_b32 s{sT0}, s{sRep}, 4
    s_add_u32 s{sFkv}, s{sFkv}, s{sT0}
    s_lshl_b32 s{sT0}, s{sW}, 2
    s_add_u32 s{sFkv}, s{sFkv}, s{sT0}
    s_add_u32 s{sFo}, s{sFkv}, {WS_FL_O}
    s_add_u32 s{sFkv}, s{sFkv}, {WS_FL_KV}
    s_mul_i32 s{sAct}, s{sRep}, {2 * ACT_UNIT}
    s_lshl_b32 s{sT0}, s{sHead}, 12
    s_lshl_b32 s{sT1}, s{sW}, 10
    s_add_u32 s{sAct}, s{sAct}, s{sT0}
    s_add_u32 s{sAct}, s{sAct}, s{sT1}
    s_add_u32 s{sAct}, s{sAct}, {WS_ACT}
    s_mov_b32 s{sCn}, {hex(C_EXP)}
    s_mov_b32 s{sCp}, s{sCn}
    s_mov_b32 s{sCp+1}, s{sCn}
    s_mov_b32 s{sSa}, s{sRep}
    s_mov_b32 s{sSb}, s{sRep}
    s_mov_b32 s{sSta}, {QL_ST}
    s_mov_b32 s{sStb}, {QL_ST}
    s_mov_b32 s{sBuf}, 0
    s_mov_b32 s{sSegN}, s{sRep}
    s_add_u32 s{sPend}, s{sFkv}, 0x18000
    """)
    a(f"s_lshl_b32 s73, s{sHead}, 8\nv_mov_b32 v8, {DBG_GO}")
    if opt.get("qtouch", 0):
        a(f"buffer_load_dword v20, off, {WSR}, s{sKV} sc1\nbuffer_load_dword v20, off, {WSR}, s{sAct} sc1")
    gl = f"global_load_dword v9, v8, s[{P_DBG}:{P_DBG+1}] sc1"
    X = Asm()
    X.label("QA_go")
    spin(X, "QA_go2", gl, "v_cmp_eq_u32 vcc, 0, v9", sleep=4)
    X("s_branch QA_gook")
    x = Asm()
    xn_dma(x, sSegN, sBuf)
    gock = ["WAITV go", "v_cmp_eq_u32 vcc, 0, v9", "s_cbranch_vccnz QA_go", "QA_gook:"]
    adv = [f"v_add_u32 v{vXa}, s{sBuf}, v1", f"s_xor_b32 s{sBuf}, s{sBuf}, 0x8000", f"s_add_u32 s{sSegN}, s{sSegN}, {NREP}", f"s_min_u32 s{sSegN}, s{sSegN}, 63"]
    kvout = [cv(Pk + q, aK + 2 * q) for q in range(8)]
    kvout += [f"buffer_store_dwordx4 {vr(Pk + 4 * j, 4)}, v{vKst}, {WSR}, s{sKV} offen offset:{512 * j} sc1" for j in range(2)]
    kvout += [cv(Pk + 8 + q, aV + 2 * q) for q in range(8)]
    kvout += [f"buffer_store_dwordx4 {vr(Pk + 8 + 4 * j, 4)}, v{vVst}, {WSR}, s{sT1} offen offset:{512 * j} sc1" for j in range(2)]
    stadr = [f"s_lshl_b32 s{sT0}, s{sW}, 11", f"s_add_u32 s{sT0}, s{sT0}, s{sSta}", f"v_add_u32 v{vSt}, s{sT0}, v1"]
    if not ek:
        qg = opt.get("qgo", 10)
        load_proj_weights(a, [(8, WK), (12, WV), (16, WQ)], 8192, 73, opt, "QA", {qg: [gl + " ; @go"], max(18, qg + 8): gock + x.lines})
        mark(a, opt, 0)
        a("s_waitcnt vmcnt(0) lgkmcnt(0)\ns_barrier")
    else:
        qg = opt.get("qgo", 4)
        x.lines[-1] += " ; @xn"
        pro, slots = gemm_list(vXa, lambda k: 1024 * k, Fr, [(aK, WK, True), (aV, WV, False)], "e")
        hooks = {qg: [gl + " ; @go"], qg + 6: gock + x.lines}
        assert qg + 6 <= 15
        hooks[15.5] = ["WAITV xn", "s_barrier"] + adv + pro + sum(slots, []) + [f"s_add_u32 s{sT1}, s{sKV}, 0x2000", f"s_mov_b32 s{sPend}, s{sFkv}", "s_nop 2"] + kvout
        if qp >= 0:
            hooks[qp] = hooks.get(qp, []) + band(16)
        load_proj_weights(a, [(8, WK), (12, WV), (16, WQ)], 8192, 73, opt, "QA", hooks, 32768, 6)
        mark(a, opt, 0)
        pro, slots = gemm_list(vXa, lambda k: 1024 * k, Fr, [(aQ, WQ, True)], "f")
        xn_weave(slots, 1, 1, sSegN, sBuf)
        a.lines += resolve_waits(flag_store(sPend, vOne) + pro + sum(slots, []) + stadr
                                 + [f"ds_write_b128 v{vSt}, {vr(Pk + 4 * q, 4)} offset:{8192 * (q >> 1) + 1024 * (q & 1)}" for q in range(4)]
                                 + ["s_waitcnt vmcnt(0)", "s_nop 3", "s_branch QA_A2"])
    a.label("QA_A")
    wacc(a, opt, -1, 2)
    wacc(a, opt, -1, 3)
    a.lines += adv
    Mp = 120
    ml = [f"buffer_load_dwordx4 {vr(Mp,4)}, v1, {WSR}, s{sMx} offen sc1", f"buffer_load_dwordx4 {vr(Mp+4,4)}, v1, {WSR}, s{sMx} offen offset:1024 sc1"]
    slots = []
    for tg, pr_ in (("x", (aK, WK, True)), ("y", (aV, WV, False)), ("z", (aQ, WQ, True))):
        p_, sl_ = gemm_list(vXa, lambda k: 1024 * k, Fr, [pr_], tg)
        if slots:
            for q in range(3):
                slots[-3 + q].append(p_[q])
        else:
            pro = p_
        slots += sl_
    stw = lambda m: [f"ds_write_b128 v{vSt}, {vr(Pk + 8 * m + 4 * j, 4)} offset:{8192 * m + 1024 * j}" for j in range(2)]
    qf = opt.get("qflag", 24)
    slots[1] += stadr
    slots[qf] += ["s_waitcnt vmcnt(0)"] + flag_store(sPend, vOne) + [f"s_mov_b32 s{sPend}, s{sFkv}"]
    xn_weave(slots, qf + 1, 2, sSegN, sBuf)
    slots[60].append(f"s_add_u32 s{sT1}, s{sKV}, 0x2000")
    for p0, m in ((qf + 22, 0), (66, 1)):
        part = kvout[10 * m:10 * m + 10]
        for q in range(8):
            slots[p0 + q // 3].append(part[q])
        for q, x in enumerate(part[8:] + stw(m)):
            slots[p0 + 3 + 2 * q].append(x)
    slots[92].append(ml[0])
    slots[94].append(ml[1])
    wb = Asm()
    wacc(wb, opt, 1, 3)
    A = pro + sum(slots, []) + wb.lines + ["s_waitcnt vmcnt(6)", "s_nop 7", "s_nop 2", "QA_A2:"]
    A += [cv(Pk + 16 + q, aQ + 2 * q) for q in range(8)] + stw(2)
    A += [f"s_add_u32 s{sKV}, s{sKV}, {NREP * 0x4000}", f"s_add_u32 s{sSa}, s{sSa}, {NREP}", f"s_add_u32 s{sFkv}, s{sFkv}, {NREP * 16}",
          f"s_add_u32 s{sSta}, s{sSta}, 24576", f"s_cmp_eq_u32 s{sSta}, {QL_ST + 73728}", f"s_cselect_b32 s{sSta}, {QL_ST}, s{sSta}",
          "s_waitcnt lgkmcnt(0)", "s_barrier"]
    wb = Asm()
    wacc(wb, opt, 1, 2)
    A += wb.lines + [f"s_cmp_lt_u32 s{sSa}, {3 * NREP}", "s_cbranch_scc1 QA_A"]
    a.lines += resolve_waits(A)
    a.label("QA_B")
    wacc(a, opt, -1, 4)
    S, Oa, Sp, Km, Vm = 32, 48, 32, 64, 68
    Qo, Vx, Sm, Kp, Px, Pm, Vmp = 96, 104, 112, 72, 20, 28, 30
    B = [f"v_add_u32 v{vSt}, s{sStb}, v1", f"s_lshl_b32 s{sT0}, s{sW}, 11", f"v_add_u32 v2, s{sT0}, v{vSt}", f"v_add_u32 v3, s{sT0}, v{vHi}"]
    B += [f"ds_read_b128 {vr(S + 4 * q, 4)}, v{vHi} offset:{QL_MASK - QL_MEM + 1024 * q}" for q in range(4)]
    kq = lambda k: [f"ds_read_b128 {vr(48 + 8 * (k % 4), 4)}, v{vSt} offset:{1024 * k}",
                    f"ds_read_b128 {vr(52 + 8 * (k % 4), 4)}, v{vSt} offset:{16384 + 1024 * k} ; @s{k}"]
    for k in range(3):
        B += kq(k)
    for k in range(8):
        B += [f"WAITL s{k}", f"{M32} {vr(S,16)}, {vr(48 + 8 * (k % 4), 4)}, {vr(52 + 8 * (k % 4), 4)}, {vr(S,16)}"]
        if k + 3 < 8:
            B += kq(k + 3)
    B += [f"ds_read_b128 {vr(Qo + 4 * j, 4)}, v2 offset:{16384 + 1024 * j}" for j in range(2)]
    B += [f"ds_read_b128 {vr(Vx + 4 * j, 4)}, v2 offset:{8192 + 1024 * j} ; @vx" for j in range(2)]
    B += [f"s_lshl_b32 s{sT0}, s{sW}, 10", f"v_add_u32 v2, s{sT0}, v{vHi}", "s_nop 5",
          f"v_max3_f32 v4, v{S}, v{S+1}, v{S+2}"] + [f"v_max3_f32 v4, v4, v{S+3+2*q}, v{S+4+2*q}" for q in range(6)]
    B += [f"v_max_f32 v5, v4, v{S+15}", f"v_max_f32 v4, v4, v{S+15}", "s_nop 1", "v_permlane32_swap_b32 v4, v5", "v_max_f32 v4, v4, v5", f"v_mul_f32 v6, s{sCn}, v4"]
    B += [f"v_pk_fma_f32 {vr(S+q,2)}, {vr(S+q,2)}, s[{sCp}:{sCp+1}], v[6:7] op_sel_hi:[1,1,0] neg_lo:[0,0,1] neg_hi:[0,0,1]" for q in range(0, 16, 2)]
    B += [f"v_exp_f32 v{S+q}, v{S+q}" for q in range(16)]
    B += [cv(Px + q, S + 2 * q) for q in range(8)]
    B += [f"v_pk_add_f32 {vr(S+q,2)}, {vr(S+q,2)}, {vr(S+q+8,2)}" for q in range(0, 8, 2)]
    B += [f"v_pk_add_f32 {vr(S+q,2)}, {vr(S+q,2)}, {vr(S+q+4,2)}" for q in (0, 2)] + [f"v_pk_add_f32 {vr(S,2)}, {vr(S,2)}, {vr(S+2,2)}", f"v_add_f32 v7, v{S}, v{S+1}"]
    B += ["WAITL vx", f"{M32} {vr(Oa,16)}, {vr(Vx,4)}, {vr(Px,4)}, 0", f"{M32} {vr(Oa,16)}, {vr(Vx+4,4)}, {vr(Px+4,4)}, {vr(Oa,16)}"]
    mc = [f"v_max3_u32 v4, v{Mp}, v{Mp+1}, v{Mp+2}", f"v_max3_u32 v5, v{Mp+3}, v{Mp+4}, v{Mp+5}", f"v_max3_u32 v4, v4, v{Mp+6}, v{Mp+7}",
          "v_max_u32 v4, v4, v5", "v_cmp_eq_u32 vcc, -1, v4"]
    wa = Asm()
    wacc(wa, opt, -1)
    wacc(wa, opt, 1, 4)
    B += wa.lines + ["s_waitcnt vmcnt(0)"] + flag_store(sPend, vOne) + mc + [f"s_mov_b32 s{sPend}, s{sFo}", "s_cbranch_vccz QA_m_ok"]
    a.lines += resolve_waits(B)
    qd = opt.get("qdep", 1)
    if qd == 1:
        spin(a, "QA_m", "\n".join(ml), "\n".join(mc), sleep=opt.get("qsleep", 2))
    else:
        for k in range(qd - 1):
            a.lines += ml + [f"s_sleep {opt.get('qsleep', 2)}"]
        a.lines += [f"s_mov_b32 s{sTO}, 0", "QA_m:"] + ml + [f"s_waitcnt vmcnt({2 * (qd - 1)})"] + mc + ["s_cbranch_vccz QA_m_ok",
                    f"s_sleep {opt.get('qsleep', 2)}", f"s_add_u32 s{sTO}, s{sTO}, 1", f"s_cmp_lt_u32 s{sTO}, {SPIN_MAX}", "s_cbranch_scc1 QA_m", "s_branch L_END", "QA_m_ok:"]
    wacc(a, opt, 1)
    wacc(a, opt, -1, 5)
    if opt.get("markc") is None:
        mark(a, opt, 1)
    B = [f"ds_write_b128 v3, {vr(Mp,4)}", f"ds_write_b128 v3, {vr(Mp+4,4)} offset:1024", "s_waitcnt lgkmcnt(0)", "s_barrier"]
    moff = lambda k: ((k >> 1) & 3) * 2048 + (k >> 4) * 1024 + ((k >> 3) & 1) * 512 + (k & 1) * 32
    NF, J = 6, opt.get("qjoint", 12)
    fb = [80, 84, 88, 92, 104, 108]
    rd = lambda k, r, tg: f"ds_read_b128 {vr(r, 4)}, v{vMa} offset:{moff(k)} ; @{tg}{k}"
    kmm = lambda k, r: f"{D32} {vr(Km,4)}, {vr(('a', 4 * k), 4)}, {vr(r, 4)}, " + ("0" if k == 0 else vr(Km, 4))
    joint = [k for k in range(32) if (k * J) // 32 != ((k - 1) * J) // 32 or (k == 0 and J)]
    first_v = [True]

    def vmm(k, r):
        c = "0" if first_v[0] else vr(Vm, 4)
        first_v[0] = False
        return f"{D32} {vr(Vm,4)}, {vr(r, 4)}, {vr(('a', 128 + 4 * k), 4)}, {c}"
    seq = [("m", k) for k in range(32)] + [("n", k) for k in range(32) if k not in joint]
    B += [rd(k, fb[q], tg) for q, (tg, k) in enumerate(seq[:NF - 1])]
    slots = []
    for q, (tg, k) in enumerate(seq):
        r = fb[q % NF]
        nx = [rd(seq[q + NF - 1][1], fb[(q + NF - 1) % NF], seq[q + NF - 1][0])] if q + NF - 1 < len(seq) else []
        sl = [f"WAITL {tg}{k}", kmm(k, r) if tg == "m" else vmm(k, r)] + nx
        if tg == "m" and k in joint:
            sl.append(vmm(k, r))
        slots.append(sl)
    s2 = slots[32:]
    s2[1] += [cv(Km, Km), cv(Km + 1, Km + 2), f"ds_write_b64 v{vKw}, {vr(Km,2)}"] + [f"ds_read_b128 {vr(Kp + 4*j, 4)}, v{vKr} offset:{256*j} ; @kp" for j in range(2)]
    s2[6] += ["WAITL kp", f"{M32} {vr(Sp,16)}, {vr(Kp,4)}, {vr(Qo,4)}, 0", f"{M32} {vr(Sp,16)}, {vr(Kp+4,4)}, {vr(Qo+4,4)}, {vr(Sp,16)}"]
    s2[9] += [f"ds_write_b128 v2, {vr(Sp,4)} offset:{QL_SX - QL_MEM} ; @sx"]
    s2[13] += (["s_waitcnt vmcnt(0)"] if qd > 1 else []) + ["WAITL sx", "s_barrier"]
    s2[13] += [f"ds_read_b128 {vr(Sm + 4 * q, 4)}, v{vHi} offset:{QL_SX - QL_MEM + 1024 * q} ; @sr" for q in range(4)]
    s2[14] += [f"s_add_u32 s{sMx}, s{sMx}, {NREP * 0x2000}", f"s_add_u32 s{sSb}, s{sSb}, {NREP}"]
    s2[15] += [f"s_add_u32 s{sFo}, s{sFo}, {NREP * 16}", f"s_add_u32 s{sStb}, s{sStb}, 24576"]
    s2[16] += [f"s_cmp_eq_u32 s{sStb}, {QL_ST + 73728}", f"s_cselect_b32 s{sStb}, {QL_ST}, s{sStb}"]
    assert len(s2) >= 17
    pa = lambda d, x, y: f"v_pk_add_f32 {vr(d,2)}, {vr(x,2)}, {vr(y,2)}"
    B += sum(slots, []) + ["WAITL sr"]
    B += [pa(Sm, Sm, Sm + 4), pa(Sm + 2, Sm + 2, Sm + 6), pa(Sm + 8, Sm + 8, Sm + 12), pa(Sm + 10, Sm + 10, Sm + 14), pa(Sm, Sm, Sm + 8), pa(Sm + 2, Sm + 2, Sm + 10),
          f"v_max_f32 v4, v{Sm}, v{Sm+1}", f"v_max3_f32 v5, v4, v{Sm+2}, v{Sm+3}", f"v_max3_f32 v4, v4, v{Sm+2}, v{Sm+3}",
          cv(Vmp, Vm), cv(Vmp + 1, Vm + 2), "v_permlane32_swap_b32 v4, v5", "v_max_f32 v4, v4, v5", f"v_mul_f32 v4, s{sCn}, v4", "v_max_f32 v4, v4, v6",
          "v_sub_f32 v6, v6, v4"]
    B += [f"v_pk_fma_f32 {vr(Sm+q,2)}, {vr(Sm+q,2)}, s[{sCp}:{sCp+1}], v[4:5] op_sel_hi:[1,1,0] neg_lo:[0,0,1] neg_hi:[0,0,1]" for q in (0, 2)]
    B += ["v_exp_f32 v6, v6"] + [f"v_exp_f32 v{Sm+q}, v{Sm+q}" for q in range(4)]
    B += [f"v_fma_f32 v7, v7, v6, v{Sm}", cv(Pm, Sm), cv(Pm + 1, Sm + 2), f"v_add_f32 v7, v7, v{Sm+1}", f"v_add_f32 v5, v{Sm+2}, v{Sm+3}",
          f"{M8} {vr(Sp,16)}, {vr(Vmp,2)}, {vr(Pm,2)}, 0", "v_add_f32 v4, v7, v5", "v_add_f32 v5, v7, v5", "s_nop 1",
          "v_permlane32_swap_b32 v4, v5", "v_add_f32 v4, v4, v5", "v_rcp_f32 v4, v4", "s_nop 3"]
    for j in range(2):
        B += [f"v_pk_fma_f32 {vr(Oa + 8*j + q, 2)}, {vr(Oa + 8*j + q, 2)}, v[6:7], {vr(Sp + 8*j + q, 2)} op_sel_hi:[1,0,1]" for q in range(0, 8, 2)]
        B += [f"v_pk_mul_f32 {vr(Oa + 8*j + q, 2)}, {vr(Oa + 8*j + q, 2)}, v[4:5] op_sel_hi:[1,0]" for q in range(0, 8, 2)]
        B += [cv(Px + 4 * j + q, Oa + 8 * j + 2 * q) for q in range(4)]
        B += [f"buffer_store_dwordx4 {vr(Px + 4 * j, 4)}, v{vOst}, {WSR}, s{sAct} offen offset:{512 * j} sc1"]
    wb = Asm()
    wacc(wb, opt, 1, 5)
    B += wb.lines + [f"s_add_u32 s{sAct}, s{sAct}, {NREP * 2 * ACT_UNIT}", f"s_cmp_lt_u32 s{sSa}, 64", "s_cbranch_scc1 QA_A",
          "s_waitcnt vmcnt(0)"] + flag_store(sPend, vOne) + [f"v_mov_b32 v{Mp}, -1", "s_barrier", f"s_cmp_lt_u32 s{sSb}, 64", "s_cbranch_scc1 QA_B", "s_branch L_END"]
    a.lines += resolve_waits(B) + X.lines


def role_fu(a, opt):
    sCu, sRep, sI, sBuf, sSegN, sAct, sFl, sCn, sPend = 26, 27, 28, 30, 31, 32, 33, 34, 29
    vXa, vOst, vOne = 10, 11, 12
    aG, aU, Fr, Pk = 32, 48, 64, 80
    W1, W3 = ("a", 0), ("a", 128)
    a.label("ROLE_FU")
    a(f"""
    s_sub_u32 s{sT0}, s{sH}, {8 * NREP}
    s_and_b32 s{sRep}, s{sT0}, 1
    s_lshr_b32 s{sT0}, s{sT0}, 1
    s_lshl_b32 s{sT0}, s{sT0}, 2
    s_add_u32 s{sCu}, s{sT0}, s{sXCC}
    s_sub_u32 s{sCu}, s{sCu}, 1
    s_cmp_ge_u32 s{sCu}, 11
    s_cbranch_scc1 L_END
    s_lshl_b32 s{sBuf}, s{sCu}, 8
    v_lshlrev_b32 v1, 4, v0
    """)
    srd(a, 8, P_W1, 512 * 2752)
    srd(a, 12, P_W3, 512 * 2752)
    wait_xn(a, "FU_w")
    if not opt.get("slow"):
        mark(a, opt, 1)
    load_proj_weights(a, [(8, W1), (12, W3)], 2752, sBuf, opt, "FU")
    a(f"""
    v_lshrrev_b32 v2, 5, v0
    v_lshlrev_b32 v4, 8, v2
    v_and_b32 v8, 15, v0
    v_lshl_add_u32 v5, v8, 4, v4
    v_bfe_u32 v6, v0, 4, 1
    v_mul_u32_u24 v6, {ACT_UNIT}, v6
    v_add_u32 v{vOst}, v5, v6
    v_mov_b32 v{vOne}, 1
    s_lshl_b32 s{sT0}, s{sCu}, 2
    s_add_u32 s{sT0}, s{sT0}, s{sW}
    s_lshl_b32 s{sFl}, s{sT0}, 2
    s_lshl_b32 s{sT0}, s{sT0}, 10
    s_mul_i32 s{sAct}, s{sRep}, {2 * ACT_UNIT}
    s_add_u32 s{sAct}, s{sAct}, s{sT0}
    s_add_u32 s{sAct}, s{sAct}, {WS_ACT + 128 * 1024}
    s_lshl_b32 s{sT0}, s{sRep}, 8
    s_add_u32 s{sFl}, s{sFl}, s{sT0}
    s_add_u32 s{sFl}, s{sFl}, {WS_FL_HF}
    s_mov_b32 s{sCn}, 0xbfb8aa3b
    s_mov_b32 s{sI}, 0
    s_mov_b32 s{sBuf}, 0
    s_mov_b32 s{sSegN}, s{sRep}
    s_lshl_b32 s{sPend}, s{sFl}, 4
    s_and_b32 s{sPend}, s{sPend}, 0x3fff
    s_add_u32 s{sPend}, s{sPend}, 0x14000
    """)
    if not opt.get("slow"):
        mark(a, opt, 0)
    xn_dma(a, sSegN, sBuf)
    a("s_waitcnt vmcnt(0)\ns_barrier")
    a.label("FU_A")
    a(f"""
    v_add_u32 v{vXa}, s{sBuf}, v1
    s_xor_b32 s{sBuf}, s{sBuf}, 0x8000
    s_add_u32 s{sSegN}, s{sSegN}, 2
    s_min_u32 s{sSegN}, s{sSegN}, 63
    """)
    pro, slots = gemm_list(vXa, lambda k: 1024 * k, Fr, [(aG, W1, True), (aU, W3, True)], "x")
    xn_weave(slots, 24, 2, sSegN, sBuf)
    slots[49] += ["s_waitcnt vmcnt(8)"] + flag_store(sPend, vOne)
    T = 96
    A = pro + sum(slots, []) + [f"s_mov_b32 s{sPend}, s{sFl}", f"s_add_u32 s{sFl}, s{sFl}, 512", "s_nop 1"]
    A += [f"v_mul_f32 v{T+q}, s{sCn}, v{aG+q}" for q in range(16)]
    A += [f"v_exp_f32 v{T+q}, v{T+q}" for q in range(16)]
    A += [f"v_add_f32 v{T+q}, 1.0, v{T+q}" for q in range(16)]
    A += [f"v_rcp_f32 v{T+q}, v{T+q}" for q in range(16)]
    A += [f"v_pk_mul_f32 {vr(aG+q,2)}, {vr(aG+q,2)}, {vr(T+q,2)}" for q in range(0, 16, 2)]
    A += [f"v_pk_mul_f32 {vr(aG+q,2)}, {vr(aG+q,2)}, {vr(aU+q,2)}" for q in range(0, 16, 2)]
    A += [cv(Pk + q, aG + 2 * q) for q in range(8)] + ["s_waitcnt vmcnt(1)", "s_barrier"]
    A += [f"buffer_store_dwordx4 {vr(Pk + 4 * j, 4)}, v{vOst}, {WSR}, s{sAct} offen offset:{512 * j} sc1" for j in range(2)]
    A += [f"s_add_u32 s{sAct}, s{sAct}, {4 * ACT_UNIT}", f"s_add_u32 s{sI}, s{sI}, 1", f"s_cmp_lt_u32 s{sI}, 32", "s_cbranch_scc1 FU_A",
          "s_waitcnt vmcnt(0)"] + flag_store(sPend, vOne) + ["s_branch L_END"]
    a.lines += resolve_waits(A)


def role_h(a, opt):
    a.label("ROLE_H")
    a(f"""
    v_lshlrev_b32 v1, 4, v0
    v_mov_b64 v[4:5], 0
    v_mov_b64 v[6:7], 0
    v_mov_b64 v[8:9], -1
    v_mov_b64 v[10:11], -1
    s_lshl_b32 s{sT0}, s{sH}, 2
    s_add_u32 s{sT0}, s{sT0}, s{sW}
    s_lshl_b32 s{sT0}, s{sT0}, 10
    s_lshl_b32 s{sT1}, s{sT0}, 2
    s_add_u32 s{sT1}, s{sT1}, {WS_MEMX}
    buffer_store_dwordx4 v[4:7], v1, {WSR}, s{sT0} offen sc1
    """)
    for k in range(4):
        a(f"buffer_store_dwordx4 v[8:11], v1, {WSR}, s{sT1} offen offset:{1024 * k} sc1")
    if opt.get("fprobe"):
        a(f"s_mul_i32 s{sT2}, s{sW}, {ACT_UNIT}\ns_lshl_b32 s70, s{sH}, 12\ns_add_u32 s{sT2}, s{sT2}, s70\ns_add_u32 s{sT2}, s{sT2}, {WS_ACT + 124 * ACT_UNIT}")
        for k in range(4):
            a(f"buffer_store_dwordx4 v[8:11], v1, {WSR}, s{sT2} offen offset:{1024 * k} sc1")
    if opt.get("hinit"):
        a(f"s_sub_u32 s{sT1}, s{sT1}, {WS_MEMX - WS_PA}")
        if opt.get("pa1"):
            assert not opt.get("first")
            a(f"s_lshl_b32 s{sT1}, s{sT0}, 1\ns_add_u32 s{sT1}, s{sT1}, {WS_PA}")
        for k in range(2 if opt.get("pa1") else 4):
            a(f"buffer_store_dwordx4 v[4:7], v1, {WSR}, s{sT1} offen offset:{1024 * k} sc1")
        a(f"v_lshlrev_b32 v2, 2, v0\ns_lshr_b32 s{sT0}, s{sT0}, 2\ns_add_u32 s{sT0}, s{sT0}, {WS_MB}\nbuffer_store_dword v8, v2, {WSR}, s{sT0} offen sc1")
        if opt.get("first"):
            a(f"s_add_u32 s{sT1}, s{sT1}, {WS_PA2 - WS_PA}\ns_add_u32 s{sT0}, s{sT0}, {WS_MB2 - WS_MB}")
            for k in range(4):
                a(f"buffer_store_dwordx4 v[4:7], v1, {WSR}, s{sT1} offen offset:{1024 * k} sc1")
            a(f"buffer_store_dword v8, v2, {WSR}, s{sT0} offen sc1")
    a("s_waitcnt vmcnt(0)\ns_barrier")
    count_cleared(a, "H_clr")
    if opt.get("pfo", 1):
        srd(a, 16, P_WO, 0x400000)
        a(f"s_lshl_b32 s{sT0}, s{sH}, 17\ns_lshl_b32 s{sT1}, s{sW}, 12\ns_add_u32 s{sT0}, s{sT0}, s{sT1}\nv_lshlrev_b32 v1, 4, v0\ns_barrier")
        if opt.get("pfo", 1) == 1:
            wait_xn(a, "H_x")
        for c in range(8):
            for k in range(4):
                a(f"buffer_load_dwordx4 v[124:127], v1, s[16:19], s{sT0} offen offset:{1024 * k}")
            a(f"s_add_u32 s{sT0}, s{sT0}, 0x4000")
    a("s_branch L_END")


def layer_norm(a, sF):
    X, Y = 32, 64
    L = Asm()
    L(f"""
    v_and_b32 v2, 7, v0
    v_lshrrev_b32 v3, 3, v0
    s_lshl_b32 s{sT0}, s{sW}, 3
    v_add_u32 v2, s{sT0}, v2
    v_lshlrev_b32 v4, 10, v2
    v_lshl_add_u32 v4, v3, 4, v4
    v_lshlrev_b32 v5, 9, v3
    v_lshl_add_u32 v5, v2, 4, v5
    s_lshl_b32 s{sT0}, s{sF}, 15
    """)
    for i in range(8):
        L(f"buffer_load_dwordx4 {vr(X + 4 * i, 4)}, v4, s[8:11], s{sT0} offen offset:{128 * i}")
    L("s_waitcnt vmcnt(0)")
    for q in range(32):
        L(f"v_lshlrev_b32 v{Y + 2*q}, 16, v{X+q}\nv_and_b32 v{Y + 2*q + 1}, 0xffff0000, v{X+q}")

    def reduce(r):
        L(f"""
        s_nop 1
        v_add_f32_dpp v{r}, v{r}, v{r} row_ror:8 row_mask:0xf bank_mask:0xf
        v_mov_b32 v{r+1}, v{r}
        s_nop 1
        v_permlane16_swap_b32 v{r}, v{r+1}
        v_add_f32 v{r}, v{r}, v{r+1}
        v_mov_b32 v{r+1}, v{r}
        s_nop 1
        v_permlane32_swap_b32 v{r}, v{r+1}
        v_add_f32 v{r}, v{r}, v{r+1}
        v_mul_f32 v{r}, 0x3b000000, v{r}
        """)

    def round_bf16(r):
        L(f"v_cvt_pk_bf16_f32 v{r}, v{r}, v{r}\nv_lshlrev_b32 v{r}, 16, v{r}")
    for q in range(4):
        L(f"v_add_f32 v{6+q}, v{Y+q}, v{Y+4+q}")
    for q in range(8, 64):
        L(f"v_add_f32 v{6 + (q & 3)}, v{6 + (q & 3)}, v{Y+q}")
    L("v_add_f32 v6, v6, v7\nv_add_f32 v8, v8, v9\nv_add_f32 v6, v6, v8")
    reduce(6)
    for q in range(64):
        L(f"v_sub_f32 v{12 + (q & 3)}, v{Y+q}, v6")
        L(f"v_mul_f32 v{8 + q}, v{12 + q}, v{12 + q}" if q < 4 else f"v_fmac_f32 v{8 + (q & 3)}, v{12 + (q & 3)}, v{12 + (q & 3)}")
    L("v_add_f32 v8, v8, v9\nv_add_f32 v10, v10, v11\nv_add_f32 v8, v8, v10")
    reduce(8)
    round_bf16(6)
    round_bf16(8)
    L("v_add_f32 v8, 0x3727c5ac, v8")
    round_bf16(8)
    L("v_sqrt_f32 v8, v8\ns_nop 0")
    round_bf16(8)
    L("v_rcp_f32 v8, v8")
    for q in range(64):
        L(f"v_sub_f32 v{Y+q}, v{Y+q}, v6")
    for q in range(32):
        L(cv(X + q, Y + 2 * q))
    for q in range(32):
        L(f"v_lshlrev_b32 v{Y + 2*q}, 16, v{X+q}\nv_and_b32 v{Y + 2*q + 1}, 0xffff0000, v{X+q}")
    for q in range(64):
        L(f"v_mul_f32 v{Y+q}, v{Y+q}, v8")
    for q in range(32):
        L(cv(X + q, Y + 2 * q))
    L(f"s_add_u32 s{sT0}, s{sT0}, {WS_XN}")
    for i in range(8):
        L(f"buffer_store_dwordx4 {vr(X + 4 * i, 4)}, v5, {WSR}, s{sT0} offen sc1\ns_add_u32 s{sT0}, s{sT0}, 0x1000")
    a.lines += L.lines


def role_f(a, opt):
    sF, sU, sAo, sAh, sAl, sN, sFo, sFh, sXo, sRed, sOne = 26, 27, 28, 29, 30, 31, 32, 33, 34, 64, 65
    vFo, vFh, vX, vRed, vHv, vXr, Acc, Hf, Ob, vOv, vXi = 10, 11, 12, 13, 14, 16, 20, 28, 72, 15, 9
    NB = 24
    a.label("ROLE_F")
    srd(a, 8, P_X, 2048 * 1024)
    srd(a, 12, P_WO, 0x400000)
    srd(a, 16, P_W2, 1376 * 1024)
    srd(a, 20, P_OUT, 2048 * 1024)
    a(f"""
    s_sub_u32 s{sF}, s{sXCC}, 5
    s_lshl_b32 s{sF}, s{sF}, 5
    s_add_u32 s{sF}, s{sF}, s{sH}
    v_lshlrev_b32 v1, 4, v0
    """)
    if opt.get("markf") == 0:
        mark(a, opt, 1)
    layer_norm(a, sF)
    if opt.get("markf") == 1:
        mark(a, opt, 1)
    a("s_waitcnt vmcnt(0)\ns_barrier")
    if opt.get("markf") == 2:
        mark(a, opt, 1)
    count_cleared(a, "F_clr")
    if opt.get("markf") == 3:
        mark(a, opt, 1)
    a(f"""
    s_and_b32 s{sXo}, s{sF}, 15
    s_lshl_b32 s{sXo}, s{sXo}, 6
    v_lshrrev_b32 v2, 2, v0
    v_lshlrev_b32 v2, 10, v2
    v_and_b32 v3, 3, v0
    v_lshl_add_u32 v2, v3, 4, v2
    v_add_u32 v2, s{sXo}, v2
    v_lshrrev_b32 v4, 5, v0
    v_lshlrev_b32 v4, 4, v4
    v_bfe_u32 v5, v0, 2, 3
    v_add_u32 v4, v4, v5
    v_lshlrev_b32 v4, 6, v4
    v_lshl_add_u32 v4, v3, 4, v4
    s_mul_i32 s{sT2}, s{sW}, 40960
    v_add_u32 v4, s{sT2}, v4
    """)
    L = [f"s_lshl_b32 s{sAo}, s{sW}, 20", f"s_mul_i32 s{sAh}, s{sW}, {11 * 32768}"]

    def wdma(k):
        sd, so = (12, sAo) if k < 32 else (16, sAh)
        out = []
        for hh in range(2):
            out += [f"s_add_u32 m0, s{sT2}, {2048 * (k % 20) + 1024 * hh}", "s_nop 0",
                    f"buffer_load_dwordx4 v2, s[{sd}:{sd+3}], s{so} offen lds ; @w{k}", f"s_add_u32 s{so}, s{so}, 0x4000"]
        return out
    for k in range(20):
        L += wdma(k)
    for k in range(43):
        dst = ("a", 8 * k) if k < 32 else ("v", 168 + 8 * (k - 32))
        L.append(f"WAITV w{k}")
        for t in range(2):
            for y in range(2):
                L.append(f"ds_read_b64_tr_b16 {vr((dst[0], dst[1] + 4 * t + 2 * y), 2)}, v4 offset:{2048 * (k % 20) + 512 * y + 8 * t} ; @r{k}")
        if k >= 1 and k + 19 < 43:
            L += [f"WAITL r{k-1}"] + wdma(k + 19)
        elif k % 2:
            L.append(f"WAITL r{k-1}")
    a.lines += resolve_waits(L)
    a(f"""
    s_waitcnt lgkmcnt(0)
    s_barrier
    s_lshr_b32 s{sU}, s{sF}, 4
    {f"s_lshr_b32 s{sU}, s{sH}, 4" if opt.get("fmap") else ""}
    {f"s_lshl_b32 s{sU}, s{sU}, 1" if opt.get("fmap") else ""}
    {f"s_add_u32 s{sU}, s{sU}, s{sXCC}" if opt.get("fmap") else ""}
    {f"s_sub_u32 s{sU}, s{sU}, 5" if opt.get("fmap") else ""}
    v_bfe_u32 v2, v0, 2, 3
    v_lshlrev_b32 v2, 10, v2
    v_and_b32 v3, 3, v0
    v_lshl_add_u32 v2, v3, 2, v2
    s_lshl_b32 s{sT0}, s{sW}, 13
    v_add_u32 v{vFo}, s{sT0}, v2
    v_min_u32 v2, 42, v0
    v_lshlrev_b32 v{vFh}, 2, v2
    v_and_b32 v2, 15, v0
    v_lshrrev_b32 v3, 4, v0
    v_lshlrev_b32 v2, 10, v2
    v_lshl_add_u32 v2, v3, 4, v2
    v_add_u32 v{vX}, s{sXo}, v2
    s_cmp_eq_u32 s{sW}, 0
    s_cselect_b32 s{sT0}, 0, 0x1000000
    v_add_u32 v{vXi}, s{sT0}, v{vX}
    v_mov_b32 v{vHv}, 0
    s_mov_b32 s{sRed}, 0
    s_mov_b32 s{sOne}, 0
    s_mov_b32 s{sN}, s{sU}
    """)
    X = Asm()
    pr = opt.get("fprobe", 0)
    sNy, vPr, vCk = 66, 8, 3
    a(f"""
    v_lshlrev_b32 v2, 9, v0
    s_lshl_b32 s{sT0}, s{sW}, 15
    s_add_u32 s{sT0}, s{sT0}, 508
    v_add_u32 v{vPr}, s{sT0}, v2
    s_mov_b32 s{sNy}, 0
    """)
    hl = f"buffer_load_dword v{vHv}, v{vFh}, {WSR}, s{sFh} offen sc1"
    ol = f"buffer_load_dword v{vOv}, v{vFo}, {WSR}, s{sFo} offen sc1"

    def fetch_next(name):
        out = [f"s_lshr_b32 s{sT0}, s{sN}, 1", f"s_lshl_b32 s{sFh}, s{sT0}, 8", f"s_add_u32 s{sFh}, s{sFh}, {WS_FL_HF}",
               f"s_lshl_b32 s{sFo}, s{sT0}, 4", f"s_add_u32 s{sFo}, s{sFo}, {WS_FL_O}",
               f"v_cmp_eq_u32 vcc, 0, v{vHv}", f"s_mul_i32 s{sAh}, s{sN}, {ACT_UNIT}", f"s_add_u32 s{sAh}, s{sAh}, {WS_ACT + 128 * 1024}",
               f"s_mul_i32 s{sT0}, s{sW}, 11", f"s_add_u32 s{sT1}, s{sT0}, 10", f"s_min_u32 s{sT1}, s{sT1}, 42",
               f"s_lshl_b32 s{sT0}, s{sT0}, 10", f"s_lshl_b32 s{sT1}, s{sT1}, 10",
               f"s_add_u32 s{sAl}, s{sAh}, s{sT1}", f"s_add_u32 s{sAh}, s{sAh}, s{sT0}",
               f"s_cbranch_vccnz {name}", f"{name}_go:"]
        X.label(name)
        spin(X, name + "s", hl, f"v_cmp_eq_u32 vcc, 0, v{vHv}")
        X(f"s_branch {name}_go")
        for k in range(10):
            out.append(f"buffer_load_dwordx4 {vr(Hf + 4 * k, 4)}, v1, {WSR}, s{sAh} offen offset:{1024 * (k & 3)} sc1")
            if k & 3 == 3:
                out.append(f"s_add_u32 s{sAh}, s{sAh}, 0x1000")
        out += [f"buffer_load_dwordx4 {vr(Hf + 40, 4)}, v1, {WSR}, s{sAl} offen sc1", f"s_lshl_b32 s{sT0}, s{sN}, 14",
                f"buffer_load_dwordx4 {vr(vXr,4)}, v{vXi}, s[8:11], s{sT0} offen",
                f"s_add_u32 s{sFh}, s{sFh}, 512", f"s_min_u32 s{sFh}, s{sFh}, {WS_FL_HF + 63 * 256}", hl]
        if pr:
            out += [f"s_mul_i32 s{sT0}, s{sN}, {ACT_UNIT}", f"s_add_u32 s{sT0}, s{sT0}, {WS_ACT}", f"s_cmp_ge_u32 s{sN}, 124",
                    f"s_cselect_b32 s{sFo}, s{sT0}, s{sFo}", f"s_cselect_b32 s{sNy}, -1, 0", f"s_cselect_b64 vcc, -1, 0",
                    f"v_cndmask_b32 v{vFo}, v{vFo}, v{vPr}, vcc"]
        out += [ol]
        return out
    mark(a, opt, 0)
    wait_xn(a, "F_go")
    a.lines += fetch_next("F_h0")
    a.label("F_U0")
    a("s_waitcnt vmcnt(0)")
    a.label("F_U")
    wacc(a, opt, -1)
    a(f"""
    s_mul_i32 s{sAo}, s{sU}, {ACT_UNIT}
    s_lshl_b32 s{sT0}, s{sW}, 15
    s_add_u32 s{sAo}, s{sAo}, s{sT0}
    s_add_u32 s{sAo}, s{sAo}, {WS_ACT}
    s_lshl_b32 s{sXo}, s{sU}, 14
    s_add_u32 s{sU}, s{sU}, 4
    s_mov_b32 s{sN}, s{sU}
    v_cmp_eq_u32 vcc, s{sNy}, v{vOv}
    s_cbranch_vccz F_o_ok
    """)
    fd = opt.get("fdep", 1)
    if fd == 1:
        spin(a, "F_o", ol, f"v_cmp_eq_u32 vcc, s{sNy}, v{vOv}", sleep=opt.get("fsleep", 1))
    else:
        for k in range(fd - 1):
            a.lines += [ol, "s_sleep 1"]
        a.lines += [f"s_mov_b32 s{sTO}, 0", "F_o:", ol, f"s_waitcnt vmcnt({fd - 1})", f"v_cmp_eq_u32 vcc, s{sNy}, v{vOv}", "s_cbranch_vccz F_o_ok"]
        a.lines += ([f"s_sleep {opt['fsleep']}"] if opt.get("fsleep") else [])
        a.lines += [f"s_add_u32 s{sTO}, s{sTO}, 1", f"s_cmp_lt_u32 s{sTO}, {SPIN_MAX}", "s_cbranch_scc1 F_o", "s_branch L_END", "F_o_ok:"]
    wacc(a, opt, 1)
    if opt.get("markf") is None:
        mark(a, opt, 1)
    L = []

    def ld(k):
        out = [f"buffer_load_dwordx4 {vr(Ob + 4 * (k % NB), 4)}, v1, {WSR}, s{sAo} offen offset:{1024 * (k & 3)} sc1 ; @o{k}"]
        if k & 3 == 3:
            out.append(f"s_add_u32 s{sAo}, s{sAo}, 0x1000")
        return out
    for k in range(NB):
        L += ld(k)
    for q in range(4):
        L += [f"v_lshlrev_b32 v{Acc + 2*q}, 16, v{vXr+q}", f"v_and_b32 v{Acc + 1 + 2*q}, 0xffff0000, v{vXr+q}"]
    L += ["s_nop 1"]
    for k in range(11):
        for t in range(2):
            L.append(f"{D32} {vr(Acc + 4 * t, 4)}, {vr(168 + 8 * k + 4 * t, 4)}, {vr(Hf + 4 * k, 4)}, {vr(Acc + 4 * t, 4)}")
    def step(k):
        r = Ob + 4 * (k % NB)
        m = [f"{D32} {vr(Acc + 4 * t, 4)}, {vr(('a', 8 * k + 4 * t), 4)}, {vr(r, 4)}, {vr(Acc + 4 * t, 4)}" for t in range(2)]
        ck = [f"v_max3_u32 v{vCk}, v{vCk}, v{r}, v{r+1}", f"v_max3_u32 v{vCk}, v{vCk}, v{r+2}, v{r+3}"] if pr else []
        return [f"WAITV o{k}", m[0]] + ck + [m[1]] + (ld(k + NB) if k + NB < 32 else [])
    fn = opt.get("fnext", 20) if not pr else 31
    assert fn >= 32 - NB
    if pr:
        L.insert(0, f"v_mov_b32 v{vCk}, 0")
    for k in range(fn + 1):
        L += step(k)
    rest = sum((step(k) for k in range(fn + 1, 32)), [])
    if pr:
        L += [f"v_cmp_eq_u32 vcc, -1, v{vCk}", "s_cbranch_vccnz F_again"]
        X(f"""
        F_again:
        s_sub_u32 s{sAo}, s{sAo}, 0x8000
        s_add_u32 s{sOne}, s{sOne}, 1
        s_cmp_lt_u32 s{sOne}, {SPIN_MAX}
        s_cbranch_scc1 F_o_ok
        s_branch L_END
        """)
        late = [f"s_cmp_ge_u32 s{sU}, 128", "s_cbranch_scc1 F_red"] + fetch_next("F_h1") + ["F_red:"]
    else:
        n0 = len(resolve_waits(L))
        X.lines += ["F_last:"] + resolve_waits(L + rest)[n0:] + ["s_branch F_red"]
        L += [f"s_cmp_ge_u32 s{sU}, 128", "s_cbranch_scc1 F_last"] + fetch_next("F_h1") + rest + ["F_red:"]
        late = []
    a.lines += resolve_waits(L)
    a(f"""
    s_lshl_b32 s{sT0}, s{sW}, 11
    s_add_u32 s{sT0}, s{sT0}, s{sRed}
    v_add_u32 v{vRed}, s{sT0}, v1
    v_add_u32 v2, s{sRed}, v1
    s_xor_b32 s{sRed}, s{sRed}, 0x2000
    s_nop 2
    ds_write_b128 v{vRed}, {vr(Acc,4)}
    ds_write_b128 v{vRed}, {vr(Acc+4,4)} offset:1024
    """)
    a.lines += late
    a(f"""
    s_waitcnt lgkmcnt(0)
    s_barrier
    s_cmp_lg_u32 s{sW}, 0
    s_cbranch_scc1 F_next
    """)
    for q in range(6):
        a(f"ds_read_b128 {vr(Ob + 4 * q, 4)}, v2 offset:{2048 + 1024 * q}")
    a("s_waitcnt lgkmcnt(0)")
    for q in range(8):
        a(f"v_add_f32 v{Ob+q}, v{Ob+q}, v{Ob+8+q}\nv_add_f32 v{Acc+q}, v{Acc+q}, v{Ob+16+q}")
    for q in range(8):
        a(f"v_add_f32 v{Acc+q}, v{Acc+q}, v{Ob+q}")
    for q in range(4):
        a(cv(4 + q, Acc + 2 * q))
    a(f"buffer_store_dwordx4 v[4:7], v{vX}, s[20:23], s{sXo} offen {opt.get('outfl', '')}")
    a(f"s_waitcnt vmcnt(1)\ns_cmp_lt_u32 s{sU}, 128\ns_cbranch_scc1 F_U\ns_branch L_END")
    a.label("F_next")
    a(f"s_cmp_lt_u32 s{sU}, 128\ns_cbranch_scc1 F_U0\ns_branch L_END")
    a.lines += X.lines
```

```python
import sys
from asmlib import *
from layout import *
import role_r, role_w

NAME = "parallel_sum__memory_aug_recurrent_mem_tr__glu_gated_swiglu__prompt"
L_BC = 32000
BEST = {"pack": 1, "mlast": 1, "al8": 1, "alx": 1, "osplit": 1, "dmaL": 1, "ladder": 1, "barS": 0, "depA": [2, 2, 2, 2], "earlyE": [0, 0, 0, 0], "dep": [3, 3, 3, 3],
        "dA": [1, 18, 34, 46], "gapA": [23, 18, 28, 26], "gapE": [15, 17, 21, 19], "dE": [28, 10, 0, 0], "posL": [14, 14, 14, 14],
        "barB": 18, "barA": [2, 2, 2, 2], "posP": [1, 0, 0, 0], "vfill": 1, "dH": [7, 0, 2, 6], "idg": 1, "idn": [0, 0, 99, 99],
        "hold": [1, 1, 1, 1], "hpos": 0, "dL": [0, 0, 0, 0],
        "kvpos": [19, 23, 25, 28, 21, 31, 35], "kvoff": [1, 0, 0, 1], "e1": 0, "barpos2": 0,
        "pfq": 3, "pfk": 0, "pfw": 2, "hinit": 1, "earlykv": 1, "thr": [1, 23, 4], "pub0": 1, "pfc2": [20], "perm": [5, 6, 7, 0, 1, 2, 3, 4], "touch2": 1, "touch3": 2,
        "outfl": "nt", "fnext": 31, "qsleep": 1, "fsleep": 0}
OLD = {"hold": [0, 0, 0, 0], "dH": [0, 0, 0, 0], "dA": [6, 18, 44, 42], "gapA": [24, 28, 32, 28], "gapE": [16, 12, 22, 20], "dE": [30, 34, 0, 2],
       "barA": [2, 2, 2, 2], "posP": [1, 1, 0, 1], "dep": [3, 3, 2, 2], "idg": 0, "idn": [99, 99, 99, 99]}

DOC = """;
"""


def entry(a, opt):
    full = not opt.get("r_only")
    a(f"""
    s_cmp_ge_u32 s2, 256
    s_cbranch_scc1 {"L_END2" if opt.get("diag") and full else "L_END"}
    """)
    if opt.get("diag"):
        a("s_memrealtime s[100:101]\ns_mov_b32 s93, 0")
    a(f"""
    s_load_dwordx4 s[60:63], s[0:1], 96
    s_load_dwordx16 s[36:51], s[0:1], 0
    s_load_dwordx8 s[52:59], s[0:1], 64
    s_getreg_b32 s{sXCC}, hwreg(HW_REG_XCC_ID)
    s_and_b32 s{sXCC}, s{sXCC}, 7
    s_lshl_b32 s{sXCC}, s{sXCC}, 2
    s_lshr_b32 s{sXCC}, {hex(sum(v << (4 * i) for i, v in enumerate(opt.get("perm", range(8)))))}, s{sXCC}
    s_and_b32 s{sXCC}, s{sXCC}, 7
    v_lshrrev_b32 v1, 6, v0
    v_and_b32 v0, 63, v0
    v_readfirstlane_b32 s{sW}, v1
    v_mov_b32 v4, {L_BC}
    v_lshlrev_b32 v12, 7, v0
    s_lshr_b32 s13, s2, 3
    """)
    if opt.get("pfcode", 1):
        a(f"""
        s_cmp_lg_u32 s{sW}, 3
        s_cbranch_scc1 L_NOPF
        s_getpc_b64 s[14:15]
        """)
        a.label("L_PC")
        a(f"""
        s_and_b32 s12, s13, 15
        s_lshl_b32 s12, s12, 13
        v_add_u32 v13, s12, v12
        v_min_u32 v13, L_LAST-L_PC, v13
        global_load_dword v127, v13, s[14:15]
        """)
        a.label("L_NOPF")
    a(f"""
    s_waitcnt lgkmcnt(0)
    s_mov_b32 s{sWS}, s{P_WS}
    s_mov_b32 s{sWS+1}, s{P_WS+1}
    s_mov_b32 s{sWS+2}, {hex(WS_BYTES)}
    s_mov_b32 s{sWS+3}, 0x20000
    s_cmp_lg_u32 s{sW}, 0
    s_cbranch_scc1 L_NOTK
    s_lshl_b32 s8, s{sXCC}, 5
    s_mov_b32 s9, 1
    s_atomic_add s9, s[{P_DBG}:{P_DBG+1}], s8 glc
    """)
    a.label("L_NOTK")
    crow = lambda c: 256 * (c & 1) + 32 * (c >> 1)
    a(f"""
    s_mov_b32 s18, 0x400000
    s_mov_b32 s19, 0x20000
    s_lshr_b32 s11, s{sW}, 1
    s_lshl_b32 s11, s11, 7
    s_add_u32 s11, s11, s13
    s_lshl_b32 s11, s11, 13
    s_and_b32 s12, s{sW}, 1
    v_lshlrev_b32 v13, 4, v0
    s_cmp_lg_u32 s{sXCC}, 0
    s_cbranch_scc1 L_PWQ
    s_mov_b32 s16, s{P_WK}
    s_mov_b32 s17, s{P_WK+1}
    s_lshl_b32 s12, s12, 12
    s_add_u32 s11, s11, s12
    v_add_u32 v13, s11, v13
    """)
    for c in range(opt.get("pfw", 2)):
        a(f"s_mov_b32 s12, {crow(c) * 8192}")
        for k in range(4):
            a(f"buffer_load_dwordx4 v[124:127], v13, s[16:19], s12 offen offset:{1024 * k}")
    a("s_branch L_NOPW")
    a.label("L_PWQ")
    a(f"""
    s_cmp_ge_u32 s{sXCC}, 5
    s_cbranch_scc1 L_PWO
    s_lshl_b32 s12, s12, 10
    s_add_u32 s11, s11, s12
    s_sub_u32 s12, s{sXCC}, 1
    s_lshl_b32 s12, s12, 11
    s_add_u32 s11, s11, s12
    v_add_u32 v13, s11, v13
    """)
    for p in [P_WK] if not opt.get("nopfq") else []:
        a(f"s_mov_b32 s16, s{p}\ns_mov_b32 s17, s{p+1}")
        for c in range(8):
            a(f"s_mov_b32 s12, {crow(c) * 8192}\nbuffer_load_dwordx4 v[124:127], v13, s[16:19], s12 offen")
    a("s_branch L_NOPW")
    a.label("L_PWO")
    if opt.get("pfh"):
        a(f"""
        s_cmp_lg_u32 s{sXCC}, 7
        s_cbranch_scc1 L_NOPW
        s_mov_b32 s16, s{P_WK}
        s_mov_b32 s17, s{P_WK+1}
        s_lshl_b32 s12, s12, 12
        s_add_u32 s11, s11, s12
        v_add_u32 v13, s11, v13
        """)
        for c in opt["pfh"]:
            a(f"s_mov_b32 s12, {crow(c) * 8192}")
            for k in range(4):
                a(f"buffer_load_dwordx4 v[124:127], v13, s[16:19], s12 offen offset:{1024 * k}")
    a.label("L_NOPW")
    a(f"""
    s_cmp_lg_u32 s{sW}, 0
    s_cbranch_scc1 L_RANKED
    s_waitcnt lgkmcnt(0)
    v_mov_b32 v3, s9
    ds_write_b32 v4, v3
    s_waitcnt lgkmcnt(0)
    """)
    a.label("L_RANKED")
    a(f"""
    s_barrier
    ds_read_b32 v3, v4
    s_waitcnt lgkmcnt(0)
    v_readfirstlane_b32 s{sH}, v3
    s_barrier
    """)
    if opt.get("marke"):
        role_w.mark(a, opt, 0)
        role_w.mark(a, opt, 1)
        a("s_branch L_END")
    a(f"""
    s_cmp_ge_u32 s{sH}, 32
    s_cbranch_scc1 L_END
    """)

def build(opt):
    a = Asm()
    entry(a, opt)
    a(f"s_cmp_eq_u32 s{sXCC}, 0\ns_cbranch_scc1 ROLE_R")
    if opt.get("r_only"):
        a("s_branch L_END")
    else:
        a(f"""
        s_cmp_eq_u32 s{sXCC}, 7
        s_cbranch_scc1 ROLE_H
        s_cmp_ge_u32 s{sXCC}, 5
        s_cbranch_scc1 ROLE_F
        """)
        n0 = len(a.lines)
        role_w.role_qa(a, opt)
        role_w.role_fu(a, opt)
        role_w.role_h(a, opt)
        role_w.role_f(a, opt)
        errs = check_hazards(a.lines, name="W")
        for e in errs:
            print("HAZARD", e)
        assert not errs
    if opt.get("r_only"):
        opt = dict(opt, first=0)
    elif opt.get("first"):
        role_r.role_s(a, opt)
    role_r.role_r(a, opt)
    a.label("L_END")
    if opt.get("diag") and not opt.get("r_only"):
        a(f"""
        s_cmp_ge_u32 s2, 256
        s_cbranch_scc1 L_END2
        s_waitcnt vmcnt(0)
        s_memrealtime s[74:75]
        s_waitcnt lgkmcnt(0)
        v_mov_b32 v20, s100
        v_mov_b32 v21, s74
        v_mov_b32 v22, s94
        v_mov_b32 v23, s95
        s_lshl_b32 s72, s{sXCC}, 5
        s_add_u32 s72, s72, s{sH}
        s_lshl_b32 s72, s72, 2
        s_add_u32 s72, s72, s{sW}
        s_lshl_b32 s72, s72, 4
        s_add_u32 s72, s72, {WS_DIAG + 0x4000}
        buffer_store_dwordx4 v[20:23], off, s[{sWS}:{sWS+3}], s72
        """)
        if opt.get("probe") is not None:
            lo, hi, src = opt["probe"]
            a(f"""
            s_cmp_lt_u32 s{sXCC}, {lo}
            s_cbranch_scc1 L_END2
            s_cmp_gt_u32 s{sXCC}, {hi}
            s_cbranch_scc1 L_END2
            s_cmp_ge_u32 s{sH}, 24
            s_cbranch_scc1 L_END2
            s_and_b32 s76, s{sH}, {3 if "pcls" in opt else 0}
            s_cmp_lg_u32 s76, {opt.get("pcls", 0)}
            s_cbranch_scc1 L_END2
            s_add_u32 s76, s{src}, 20000
            s_mov_b32 s77, 0
            """)
            a.label("L_PROBE")
            a(f"""
            s_memrealtime s[78:79]
            s_add_u32 s77, s77, 1
            s_waitcnt lgkmcnt(0)
            s_cmp_gt_u32 s77, 100000
            s_cbranch_scc1 L_END2
            s_sub_u32 s78, s78, s76
            s_cmp_lt_i32 s78, 0
            s_cbranch_scc1 L_PROBE
            """)
        if opt.get("dbgout"):
            a(f"""
            s_cmp_lg_u32 s{sW}, 0
            s_cbranch_scc1 L_END2
            s_load_dwordx2 s[{P_DBG}:{P_DBG+1}], s[0:1], 96
            s_waitcnt lgkmcnt(0)
            s_cmp_eq_u32 s{sXCC}, 7
            s_cbranch_scc1 L_END2
            s_sleep 127
            s_sleep 127
            s_sleep 127
            s_mov_b64 exec, 1
            v_mov_b32 v24, 0
            v_not_b32 v20, v20
            global_atomic_umax v24, v20, s[{P_DBG}:{P_DBG+1}] offset:12
            global_atomic_umax v24, v21, s[{P_DBG}:{P_DBG+1}] offset:28
            s_cmp_lg_u32 s{sXCC}, 0
            s_cbranch_scc1 L_DBG1
            v_mov_b32 v25, s98
            global_atomic_umax v24, v25, s[{P_DBG}:{P_DBG+1}] offset:16
            global_atomic_umax v24, v21, s[{P_DBG}:{P_DBG+1}] offset:20
            global_atomic_umax v24, v22, s[{P_DBG}:{P_DBG+1}] offset:44
            global_atomic_umax v24, v23, s[{P_DBG}:{P_DBG+1}] offset:48
            v_mov_b32 v25, s93
            global_atomic_umax v24, v25, s[{P_DBG}:{P_DBG+1}] offset:52
            v_mov_b32 v25, s92
            global_atomic_add v24, v25, s[{P_DBG}:{P_DBG+1}] offset:8
            s_branch L_END2
            """)
            a.label("L_DBG1")
            a(f"""
            s_cmp_ge_u32 s{sXCC}, 5
            s_cbranch_scc1 L_DBG2
            s_cmp_ge_u32 s{sH}, 24
            s_cbranch_scc1 L_END2
            global_atomic_umax v24, v22, s[{P_DBG}:{P_DBG+1}] offset:24
            global_atomic_umax v24, v23, s[{P_DBG}:{P_DBG+1}] offset:36
            global_atomic_umax v24, v21, s[{P_DBG}:{P_DBG+1}] offset:40
            s_branch L_END2
            """)
            a.label("L_DBG2")
            a(f"""
            global_atomic_umax v24, v23, s[{P_DBG}:{P_DBG+1}] offset:56
            global_atomic_umax v24, v22, s[{P_DBG}:{P_DBG+1}] offset:60
            """)
        a.label("L_END2")
    hdr = open("cdna_kernels/" + NAME + ".s.ref").read().split("; Override launch geometry")[0] if not opt.get("nohdr") else ""
    return hdr + f"""; @launch grid=(256,1,1) block=(256,1,1) lds=163840
{DOC}.amdgcn_target "amdgcn-amd-amdhsa--gfx950"
.text
.globl {NAME}_kernel
.p2align 8
.type {NAME}_kernel,@function
{NAME}_kernel:
""" + a.text() + f"""L_LAST:
    s_endpgm
.section .rodata,"a"
.p2align 6
.amdhsa_kernel {NAME}_kernel
  .amdhsa_next_free_vgpr 512
  .amdhsa_next_free_sgpr 102
  .amdhsa_accum_offset 256
  .amdhsa_group_segment_fixed_size 0
  .amdhsa_kernarg_size 112
  .amdhsa_user_sgpr_count 2
  .amdhsa_user_sgpr_kernarg_segment_ptr 1
  .amdhsa_system_sgpr_workgroup_id_x 1
.end_amdhsa_kernel
"""

if __name__ == "__main__":
    s = build(BEST)
    open("cdna_kernels/" + NAME + ".s", "w").write(s)
```

```python
from asmlib import *
from layout import *

M32 = "v_mfma_f32_32x32x16_bf16"
M8 = "v_mfma_f32_32x32x8_bf16"
D32 = "v_mfma_f32_16x16x32_bf16"
WSR = f"s[{sWS}:{sWS+3}]"
sTO, sT0, sT1, sT2 = 35, 67, 68, 69


def cv(d, r):
    return f"v_cvt_pk_bf16_f32 v{d}, v{r}, v{r+1}"


def srd(a, s, p, nbytes):
    a(f"s_mov_b32 s{s}, s{p}\ns_mov_b32 s{s+1}, s{p+1}\ns_mov_b32 s{s+2}, {hex(nbytes)}\ns_mov_b32 s{s+3}, 0x20000")


def spin(a, name, load, chk, sleep=1):
    a(f"s_mov_b32 s{sTO}, 0")
    a.label(name)
    a(load)
    a("s_waitcnt vmcnt(0)")
    a(chk)
    a(f"s_cbranch_vccz {name}_ok")
    if sleep:
        a(f"s_sleep {sleep}")
    a(f"""
    s_add_u32 s{sTO}, s{sTO}, 1
    s_cmp_lt_u32 s{sTO}, {SPIN_MAX}
    s_cbranch_scc1 {name}
    s_branch L_END
    """)
    a.label(name + "_ok")


def mark(a, opt, k):
    if opt.get("diag"):
        a(f"s_memrealtime s[96:97]\ns_waitcnt lgkmcnt(0)\ns_mov_b32 s{94 + k}, s96")


def wacc(a, opt, sign, which=1):
    if opt.get("waitacc") == which:
        a(f"s_{'memtime' if opt.get('wcyc') else 'memrealtime'} s[96:97]\ns_waitcnt lgkmcnt(0)\ns_{'add' if sign > 0 else 'sub'}_u32 s93, s93, s96")
        if sign > 0:
            a("s_add_u32 s94, s93, s100")


def count_cleared(a, name):
    a(f"s_cmp_lg_u32 s{sW}, 1\ns_cbranch_scc1 {name}")
    a.lines += cleared(name)


def load_proj_weights(a, mats, rowbytes, scol, opt, name, hooks={}, base=0, R=8):
    L = Asm()
    L(f"""
    v_lshrrev_b32 v2, 4, v0
    v_and_b32 v3, 15, v0
    v_lshlrev_b32 v4, 2, v2
    v_xor_b32 v4, v4, v3
    v_lshlrev_b32 v4, 4, v4
    s_lshl_b32 s{sT0}, s{sW}, 4
    v_add_u32 v5, s{sT0}, v2
    v_mul_u32_u24 v5, {rowbytes}, v5
    v_add_u32 v4, v4, v5
    v_add_u32 v4, s{scol}, v4
    v_bfe_u32 v5, v0, 2, 2
    v_lshrrev_b32 v6, 5, v0
    v_lshl_add_u32 v6, v6, 3, v5
    v_lshlrev_b32 v6, 8, v6
    v_xor_b32 v5, s{sW}, v5
    v_lshl_add_u32 v6, v5, 6, v6
    v_bfe_u32 v5, v0, 4, 1
    v_lshl_add_u32 v6, v5, 5, v6
    v_and_b32 v5, 3, v0
    v_lshl_add_u32 v6, v5, 3, v6
    v_add_u32 v7, 0x10000, v6
    s_lshl_b32 s{sT2}, s{sW}, 12
    """)
    n = 8 * len(mats)

    def dma(c):
        s = mats[c >> 3][0]
        for i in range(4):
            L(f"""
            s_add_u32 m0, s{sT2}, {base + (c % R) * 16384 + i * 1024}
            s_mov_b32 s{sT0}, {(64 * (c & 7) + 4 * i) * rowbytes}
            buffer_load_dwordx4 v4, s[{s}:{s+3}], s{sT0} offen lds ; @c{c}
            """)
    for c in range(R):
        dma(c)
    for c in range(n):
        L(f"WAITV c{c}\ns_barrier")
        if opt.get("markc") == c:
            mark(L, opt, 1)
        if c >= 1 and c + R - 1 < n:
            dma(c + R - 1)
        L.lines += hooks.get(c, [])
        f, rb = mats[c >> 3][1]
        for kk in range(4):
            for y in range(2):
                o = base + (c % R) * 16384 + (16 * kk + 4 * y) * 256
                L(f"ds_read_b64_tr_b16 {vr((f, rb + 16 * (c & 7) + 4 * kk + 2 * y), 2)}, v{6 + (o >> 16)} offset:{o & 0xffff}")
        L("s_waitcnt lgkmcnt(0)")
        L.lines += hooks.get(c + 0.5, [])
    L("s_barrier")
    a.lines += resolve_waits(L.lines)


def xn_dma(a, sseg, sbuf):
    a(f"""
    s_lshl_b32 s{sT0}, s{sseg}, 15
    s_lshl_b32 s{sT1}, s{sW}, 13
    s_add_u32 s{sT0}, s{sT0}, s{sT1}
    s_add_u32 s{sT0}, s{sT0}, {WS_XN}
    s_add_u32 s{sT1}, s{sT1}, s{sbuf}
    """)
    for k in range(2):
        a(f"s_mov_b32 m0, s{sT1}\ns_nop 0")
        for i in range(4):
            a(f"buffer_load_dwordx4 v1, {WSR}, s{sT0} offen offset:{1024 * i} sc1 lds")
        if k == 0:
            a(f"s_add_u32 s{sT0}, s{sT0}, 0x1000\ns_add_u32 s{sT1}, s{sT1}, 0x1000")


def xn_weave(slots, first, step, sseg, sbuf):
    x = Asm()
    xn_dma(x, sseg, sbuf)
    k = first
    for ln in x.lines:
        slots[k].append(ln)
        if ln.startswith("buffer_load") or ln.startswith(f"s_add_u32 s{sT1}"):
            k += step if ln.startswith("buffer_load") else 1


def proj_gemm(a, vaddr, offs, frag, prods):
    L = []
    rd = lambda k: f"ds_read_b128 {vr(frag + 4 * (k % 4), 4)}, v{vaddr} offset:{offs(k)} ; @x{k}"
    for k in range(3):
        L.append(rd(k))
    for k in range(32):
        L.append(f"WAITL x{k}")
        for q, (acc, wb, isA) in enumerate(prods):
            wv, xv = vr((wb[0], wb[1] + 4 * k), 4), vr(frag + 4 * (k % 4), 4)
            aa, bb = (wv, xv) if isA else (xv, wv)
            L.append(f"{M32} {vr(acc,16)}, {aa}, {bb}, " + ("0" if k == 0 else vr(acc, 16)))
            if q == 0 and k + 3 < 32:
                L.append(rd(k + 3))
    a.lines += resolve_waits(L)


GOSLEEP = [4]


def wait_xn(a, name):
    a(f"v_mov_b32 v3, {DBG_GO}")
    spin(a, name, f"global_load_dword v4, v3, s[{P_DBG}:{P_DBG+1}] sc1", "v_cmp_eq_u32 vcc, 0, v4", sleep=GOSLEEP[0])


def wait_kv(a, name):
    wait_xn(a, name + "0")
    a(f"s_and_b32 s{sT0}, s{sH}, 31\ns_lshl_b32 s{sT0}, s{sT0}, 10")
    spin(a, name, f"buffer_load_dword v4, off, {WSR}, s{sT0} sc1", "v_cmp_eq_u32 vcc, 0, v4", sleep=8)


QL_XN, QL_ST, QL_MEM, QL_MASK, QL_SX = 0, 65536, 65536 + 73728, 65536 + 73728 + 8192, 65536 + 73728 + 8192 + 4096
QL_ZERO = QL_SX + 4096
NREP = 3


def flag_store(soff, vone):
    return ["s_mov_b64 exec, 1", f"buffer_store_dword v{vone}, off, {WSR}, s{soff} sc1", "s_mov_b64 exec, -1"]


def gemm_list(vaddr, offs, frag, prods, tag):
    rd = lambda k: f"ds_read_b128 {vr(frag + 4 * (k % 4), 4)}, v{vaddr} offset:{offs(k)} ; @{tag}{k}"
    slots = []
    for k in range(32):
        for q, (acc, wb, isA) in enumerate(prods):
            wv, xv = vr((wb[0], wb[1] + 4 * k), 4), vr(frag + 4 * (k % 4), 4)
            aa, bb = (wv, xv) if isA else (xv, wv)
            sl = [f"WAITL {tag}{k}"] if q == 0 else []
            sl.append(f"{M32} {vr(acc,16)}, {aa}, {bb}, " + ("0" if k == 0 else vr(acc, 16)))
            if q == 0 and k + 3 < 32:
                sl.append(rd(k + 3))
            slots.append(sl)
    return [rd(k) for k in range(3)], slots


def role_qa(a, opt):
    sHead, sRep, sSa, sSb, sBuf, sSegN, sSta, sStb, sKV, sFkv, sFo, sAct, sMx, sCn = 26, 27, 28, 29, 30, 31, 32, 33, 34, 64, 65, 66, 70, 71
    sPend, sCp = 72, 74
    vXa, vSt, vKst, vVst, vOst, vMa, vHi, vOne, vKw, vKr = 10, 11, 12, 13, 14, 15, 16, 17, 18, 19
    aK, aV, aQ, Fr, Pk = 32, 48, 64, 80, 96
    WK, WV, WQ = ("a", 0), ("a", 128), ("v", 128)
    GOSLEEP[0] = opt.get("gosleep", 4)
    a.label("ROLE_QA")
    srd(a, 8, P_WK, 0x400000)
    srd(a, 12, P_WV, 0x400000)
    srd(a, 16, P_WQ, 0x400000)
    ek = opt.get("earlykv", 0)
    qp = opt.get("qpf", -1) if ek else -1

    def band(sd, win=None):
        out = []
        for c in range(8):
            out += ([f"s_waitcnt vmcnt({win})"] if win is not None else []) + [f"s_mov_b32 s{sT0}, {(256 * (c & 1) + 32 * (c >> 1)) * 8192}", f"buffer_load_dwordx4 v[124:127], v31, s[{sd}:{sd+3}], s{sT0} offen"]
        return out
    a("v_mov_b32 v31, v13")
    for sd in [12, 16][:opt.get("pfq", 3) - 1]:
        if sd == 16 and qp >= 0:
            a(f"s_cmp_lt_u32 s{sH}, {8 * NREP}\ns_cbranch_scc1 QA_nopf")
        a(f"s_waitcnt vmcnt({opt.get('pfk', 2)})")
        a.lines += band(sd, opt.get("pfwin"))
    a.label("QA_nopf")
    a(f"""
    s_cmp_ge_u32 s{sH}, {8 * NREP}
    s_cbranch_scc1 {"ROLE_S0" if opt.get("first") else "ROLE_FU"}
    s_sub_u32 s{sHead}, s{sXCC}, 1
    s_lshl_b32 s{sHead}, s{sHead}, 3
    s_and_b32 s{sT0}, s{sH}, 7
    s_add_u32 s{sHead}, s{sHead}, s{sT0}
    s_lshr_b32 s{sRep}, s{sH}, 3
    v_lshlrev_b32 v1, 4, v0
    """)
    a(f"""
    v_lshrrev_b32 v2, 5, v0
    v_and_b32 v3, 31, v0
    v_lshlrev_b32 v4, 8, v2
    v_bfe_u32 v5, v3, 3, 1
    v_lshl_add_u32 v5, v5, 10, v4
    v_lshrrev_b32 v6, 4, v3
    v_lshl_add_u32 v5, v6, 7, v5
    v_and_b32 v7, 7, v3
    v_lshl_add_u32 v{vKst}, v7, 4, v5
    v_and_b32 v8, 15, v3
    v_lshl_add_u32 v5, v8, 4, v4
    v_lshl_add_u32 v{vVst}, v6, 10, v5
    v_mul_u32_u24 v6, {ACT_UNIT}, v6
    v_add_u32 v{vOst}, v5, v6
    v_bfe_u32 v5, v0, 3, 1
    v_lshl_add_u32 v5, v5, 7, v4
    v_bfe_u32 v6, v0, 1, 1
    v_lshl_add_u32 v5, v6, 6, v5
    v_and_b32 v6, 1, v0
    v_lshl_add_u32 v5, v6, 4, v5
    v_add_u32 v5, {QL_MEM}, v5
    v_lshrrev_b32 v6, 2, v0
    v_xor_b32 v6, v6, v0
    v_and_b32 v6, 4, v6
    v_mov_b32 v9, {QL_ZERO + 32}
    v_cmp_eq_u32 vcc, 0, v6
    s_lshl_b32 s{sT0}, s{sW}, 10
    s_add_u32 s{sT0}, s{sT0}, {QL_SX}
    v_cndmask_b32 v{vMa}, v9, v5, vcc
    v_bfe_u32 v5, v0, 2, 1
    v_lshlrev_b32 v5, 8, v5
    v_bfe_u32 v6, v0, 4, 1
    v_lshl_add_u32 v5, v6, 7, v5
    v_bfe_u32 v6, v0, 3, 1
    v_lshl_add_u32 v5, v6, 6, v5
    v_and_b32 v6, 3, v0
    v_lshl_add_u32 v5, v6, 4, v5
    v_lshl_add_u32 v5, v2, 3, v5
    v_add_u32 v{vKw}, s{sT0}, v5
    v_lshlrev_b32 v5, 7, v2
    v_lshl_add_u32 v5, v7, 4, v5
    v_add_u32 v{vKr}, s{sT0}, v5
    v_add_u32 v{vHi}, {QL_MEM}, v1
    v_mov_b32 v{vOne}, 1
    v_lshlrev_b32 v2, 2, v2
    v_sub_u32 v2, v3, v2
    v_mov_b32 v3, 0xf149f2ca
    """)
    for r in range(16):
        a(f"v_cmp_gt_i32 vcc, {(r & 3) + 8 * (r >> 2)}, v2\ns_nop 1\nv_cndmask_b32 v{aK + r}, 0, v3, vcc")
    for q in range(4):
        a(f"ds_write_b128 v{vHi}, {vr(aK + 4 * q, 4)} offset:{QL_MASK - QL_MEM + 1024 * q}")
    a("v_mov_b64 v[4:5], 0\nv_mov_b64 v[6:7], 0")
    for q in range(8):
        a(f"ds_write_b128 v{vHi}, v[4:7] offset:{QL_ZERO - QL_MEM + 1024 * q}")
    a(f"""
    s_mul_i32 s{sKV}, s{sHead}, {KV_HEAD}
    s_lshl_b32 s{sT0}, s{sRep}, 14
    s_lshl_b32 s{sT1}, s{sW}, 11
    s_add_u32 s{sKV}, s{sKV}, s{sT0}
    s_add_u32 s{sKV}, s{sKV}, s{sT1}
    s_add_u32 s{sKV}, s{sKV}, {WS_KV}
    s_lshl_b32 s{sMx}, s{sRep}, 13
    s_add_u32 s{sMx}, s{sMx}, s{sT1}
    s_add_u32 s{sMx}, s{sMx}, {WS_MEMX}
    s_lshl_b32 s{sFkv}, s{sHead}, 10
    s_lshl_b32 s{sT0}, s{sRep}, 4
    s_add_u32 s{sFkv}, s{sFkv}, s{sT0}
    s_lshl_b32 s{sT0}, s{sW}, 2
    s_add_u32 s{sFkv}, s{sFkv}, s{sT0}
    s_add_u32 s{sFo}, s{sFkv}, {WS_FL_O}
    s_add_u32 s{sFkv}, s{sFkv}, {WS_FL_KV}
    s_mul_i32 s{sAct}, s{sRep}, {2 * ACT_UNIT}
    s_lshl_b32 s{sT0}, s{sHead}, 12
    s_lshl_b32 s{sT1}, s{sW}, 10
    s_add_u32 s{sAct}, s{sAct}, s{sT0}
    s_add_u32 s{sAct}, s{sAct}, s{sT1}
    s_add_u32 s{sAct}, s{sAct}, {WS_ACT}
    s_mov_b32 s{sCn}, {hex(C_EXP)}
    s_mov_b32 s{sCp}, s{sCn}
    s_mov_b32 s{sCp+1}, s{sCn}
    s_mov_b32 s{sSa}, s{sRep}
    s_mov_b32 s{sSb}, s{sRep}
    s_mov_b32 s{sSta}, {QL_ST}
    s_mov_b32 s{sStb}, {QL_ST}
    s_mov_b32 s{sBuf}, 0
    s_mov_b32 s{sSegN}, s{sRep}
    s_add_u32 s{sPend}, s{sFkv}, 0x18000
    """)
    a(f"s_lshl_b32 s73, s{sHead}, 8\nv_mov_b32 v8, {DBG_GO}")
    if opt.get("qtouch", 0):
        a(f"buffer_load_dword v20, off, {WSR}, s{sKV} sc1\nbuffer_load_dword v20, off, {WSR}, s{sAct} sc1")
    gl = f"global_load_dword v9, v8, s[{P_DBG}:{P_DBG+1}] sc1"
    X = Asm()
    X.label("QA_go")
    spin(X, "QA_go2", gl, "v_cmp_eq_u32 vcc, 0, v9", sleep=4)
    X("s_branch QA_gook")
    x = Asm()
    xn_dma(x, sSegN, sBuf)
    gock = ["WAITV go", "v_cmp_eq_u32 vcc, 0, v9", "s_cbranch_vccnz QA_go", "QA_gook:"]
    adv = [f"v_add_u32 v{vXa}, s{sBuf}, v1", f"s_xor_b32 s{sBuf}, s{sBuf}, 0x8000", f"s_add_u32 s{sSegN}, s{sSegN}, {NREP}", f"s_min_u32 s{sSegN}, s{sSegN}, 63"]
    kvout = [cv(Pk + q, aK + 2 * q) for q in range(8)]
    kvout += [f"buffer_store_dwordx4 {vr(Pk + 4 * j, 4)}, v{vKst}, {WSR}, s{sKV} offen offset:{512 * j} sc1" for j in range(2)]
    kvout += [cv(Pk + 8 + q, aV + 2 * q) for q in range(8)]
    kvout += [f"buffer_store_dwordx4 {vr(Pk + 8 + 4 * j, 4)}, v{vVst}, {WSR}, s{sT1} offen offset:{512 * j} sc1" for j in range(2)]
    stadr = [f"s_lshl_b32 s{sT0}, s{sW}, 11", f"s_add_u32 s{sT0}, s{sT0}, s{sSta}", f"v_add_u32 v{vSt}, s{sT0}, v1"]
    if not ek:
        qg = opt.get("qgo", 10)
        load_proj_weights(a, [(8, WK), (12, WV), (16, WQ)], 8192, 73, opt, "QA", {qg: [gl + " ; @go"], max(18, qg + 8): gock + x.lines})
        mark(a, opt, 0)
        a("s_waitcnt vmcnt(0) lgkmcnt(0)\ns_barrier")
    else:
        qg = opt.get("qgo", 4)
        x.lines[-1] += " ; @xn"
        pro, slots = gemm_list(vXa, lambda k: 1024 * k, Fr, [(aK, WK, True), (aV, WV, False)], "e")
        hooks = {qg: [gl + " ; @go"], qg + 6: gock + x.lines}
        assert qg + 6 <= 15
        hooks[15.5] = ["WAITV xn", "s_barrier"] + adv + pro + sum(slots, []) + [f"s_add_u32 s{sT1}, s{sKV}, 0x2000", f"s_mov_b32 s{sPend}, s{sFkv}", "s_nop 2"] + kvout
        if qp >= 0:
            hooks[qp] = hooks.get(qp, []) + band(16)
        load_proj_weights(a, [(8, WK), (12, WV), (16, WQ)], 8192, 73, opt, "QA", hooks, 32768, 6)
        mark(a, opt, 0)
        pro, slots = gemm_list(vXa, lambda k: 1024 * k, Fr, [(aQ, WQ, True)], "f")
        xn_weave(slots, 1, 1, sSegN, sBuf)
        a.lines += resolve_waits(flag_store(sPend, vOne) + pro + sum(slots, []) + stadr
                                 + [f"ds_write_b128 v{vSt}, {vr(Pk + 4 * q, 4)} offset:{8192 * (q >> 1) + 1024 * (q & 1)}" for q in range(4)]
                                 + ["s_waitcnt vmcnt(0)", "s_nop 3", "s_branch QA_A2"])
    a.label("QA_A")
    wacc(a, opt, -1, 2)
    wacc(a, opt, -1, 3)
    a.lines += adv
    Mp = 120
    ml = [f"buffer_load_dwordx4 {vr(Mp,4)}, v1, {WSR}, s{sMx} offen sc1", f"buffer_load_dwordx4 {vr(Mp+4,4)}, v1, {WSR}, s{sMx} offen offset:1024 sc1"]
    slots = []
    for tg, pr_ in (("x", (aK, WK, True)), ("y", (aV, WV, False)), ("z", (aQ, WQ, True))):
        p_, sl_ = gemm_list(vXa, lambda k: 1024 * k, Fr, [pr_], tg)
        if slots:
            for q in range(3):
                slots[-3 + q].append(p_[q])
        else:
            pro = p_
        slots += sl_
    stw = lambda m: [f"ds_write_b128 v{vSt}, {vr(Pk + 8 * m + 4 * j, 4)} offset:{8192 * m + 1024 * j}" for j in range(2)]
    qf = opt.get("qflag", 24)
    slots[1] += stadr
    slots[qf] += ["s_waitcnt vmcnt(0)"] + flag_store(sPend, vOne) + [f"s_mov_b32 s{sPend}, s{sFkv}"]
    xn_weave(slots, qf + 1, 2, sSegN, sBuf)
    slots[60].append(f"s_add_u32 s{sT1}, s{sKV}, 0x2000")
    for p0, m in ((qf + 22, 0), (66, 1)):
        part = kvout[10 * m:10 * m + 10]
        for q in range(8):
            slots[p0 + q // 3].append(part[q])
        for q, x in enumerate(part[8:] + stw(m)):
            slots[p0 + 3 + 2 * q].append(x)
    slots[92].append(ml[0])
    slots[94].append(ml[1])
    wb = Asm()
    wacc(wb, opt, 1, 3)
    A = pro + sum(slots, []) + wb.lines + ["s_waitcnt vmcnt(6)", "s_nop 7", "s_nop 2", "QA_A2:"]
    A += [cv(Pk + 16 + q, aQ + 2 * q) for q in range(8)] + stw(2)
    A += [f"s_add_u32 s{sKV}, s{sKV}, {NREP * 0x4000}", f"s_add_u32 s{sSa}, s{sSa}, {NREP}", f"s_add_u32 s{sFkv}, s{sFkv}, {NREP * 16}",
          f"s_add_u32 s{sSta}, s{sSta}, 24576", f"s_cmp_eq_u32 s{sSta}, {QL_ST + 73728}", f"s_cselect_b32 s{sSta}, {QL_ST}, s{sSta}",
          "s_waitcnt lgkmcnt(0)", "s_barrier"]
    wb = Asm()
    wacc(wb, opt, 1, 2)
    A += wb.lines + [f"s_cmp_lt_u32 s{sSa}, {3 * NREP}", "s_cbranch_scc1 QA_A"]
    a.lines += resolve_waits(A)
    a.label("QA_B")
    wacc(a, opt, -1, 4)
    S, Oa, Sp, Km, Vm = 32, 48, 32, 64, 68
    Qo, Vx, Sm, Kp, Px, Pm, Vmp = 96, 104, 112, 72, 20, 28, 30
    B = [f"v_add_u32 v{vSt}, s{sStb}, v1", f"s_lshl_b32 s{sT0}, s{sW}, 11", f"v_add_u32 v2, s{sT0}, v{vSt}", f"v_add_u32 v3, s{sT0}, v{vHi}"]
    B += [f"ds_read_b128 {vr(S + 4 * q, 4)}, v{vHi} offset:{QL_MASK - QL_MEM + 1024 * q}" for q in range(4)]
    kq = lambda k: [f"ds_read_b128 {vr(48 + 8 * (k % 4), 4)}, v{vSt} offset:{1024 * k}",
                    f"ds_read_b128 {vr(52 + 8 * (k % 4), 4)}, v{vSt} offset:{16384 + 1024 * k} ; @s{k}"]
    for k in range(3):
        B += kq(k)
    for k in range(8):
        B += [f"WAITL s{k}", f"{M32} {vr(S,16)}, {vr(48 + 8 * (k % 4), 4)}, {vr(52 + 8 * (k % 4), 4)}, {vr(S,16)}"]
        if k + 3 < 8:
            B += kq(k + 3)
    B += [f"ds_read_b128 {vr(Qo + 4 * j, 4)}, v2 offset:{16384 + 1024 * j}" for j in range(2)]
    B += [f"ds_read_b128 {vr(Vx + 4 * j, 4)}, v2 offset:{8192 + 1024 * j} ; @vx" for j in range(2)]
    B += [f"s_lshl_b32 s{sT0}, s{sW}, 10", f"v_add_u32 v2, s{sT0}, v{vHi}", "s_nop 5",
          f"v_max3_f32 v4, v{S}, v{S+1}, v{S+2}"] + [f"v_max3_f32 v4, v4, v{S+3+2*q}, v{S+4+2*q}" for q in range(6)]
    B += [f"v_max_f32 v5, v4, v{S+15}", f"v_max_f32 v4, v4, v{S+15}", "s_nop 1", "v_permlane32_swap_b32 v4, v5", "v_max_f32 v4, v4, v5", f"v_mul_f32 v6, s{sCn}, v4"]
    B += [f"v_pk_fma_f32 {vr(S+q,2)}, {vr(S+q,2)}, s[{sCp}:{sCp+1}], v[6:7] op_sel_hi:[1,1,0] neg_lo:[0,0,1] neg_hi:[0,0,1]" for q in range(0, 16, 2)]
    B += [f"v_exp_f32 v{S+q}, v{S+q}" for q in range(16)]
    B += [cv(Px + q, S + 2 * q) for q in range(8)]
    B += [f"v_pk_add_f32 {vr(S+q,2)}, {vr(S+q,2)}, {vr(S+q+8,2)}" for q in range(0, 8, 2)]
    B += [f"v_pk_add_f32 {vr(S+q,2)}, {vr(S+q,2)}, {vr(S+q+4,2)}" for q in (0, 2)] + [f"v_pk_add_f32 {vr(S,2)}, {vr(S,2)}, {vr(S+2,2)}", f"v_add_f32 v7, v{S}, v{S+1}"]
    B += ["WAITL vx", f"{M32} {vr(Oa,16)}, {vr(Vx,4)}, {vr(Px,4)}, 0", f"{M32} {vr(Oa,16)}, {vr(Vx+4,4)}, {vr(Px+4,4)}, {vr(Oa,16)}"]
    mc = [f"v_max3_u32 v4, v{Mp}, v{Mp+1}, v{Mp+2}", f"v_max3_u32 v5, v{Mp+3}, v{Mp+4}, v{Mp+5}", f"v_max3_u32 v4, v4, v{Mp+6}, v{Mp+7}",
          "v_max_u32 v4, v4, v5", "v_cmp_eq_u32 vcc, -1, v4"]
    wa = Asm()
    wacc(wa, opt, -1)
    wacc(wa, opt, 1, 4)
    B += wa.lines + ["s_waitcnt vmcnt(0)"] + flag_store(sPend, vOne) + mc + [f"s_mov_b32 s{sPend}, s{sFo}", "s_cbranch_vccz QA_m_ok"]
    a.lines += resolve_waits(B)
    qd = opt.get("qdep", 1)
    if qd == 1:
        spin(a, "QA_m", "\n".join(ml), "\n".join(mc), sleep=opt.get("qsleep", 2))
    else:
        for k in range(qd - 1):
            a.lines += ml + [f"s_sleep {opt.get('qsleep', 2)}"]
        a.lines += [f"s_mov_b32 s{sTO}, 0", "QA_m:"] + ml + [f"s_waitcnt vmcnt({2 * (qd - 1)})"] + mc + ["s_cbranch_vccz QA_m_ok",
                    f"s_sleep {opt.get('qsleep', 2)}", f"s_add_u32 s{sTO}, s{sTO}, 1", f"s_cmp_lt_u32 s{sTO}, {SPIN_MAX}", "s_cbranch_scc1 QA_m", "s_branch L_END", "QA_m_ok:"]
    wacc(a, opt, 1)
    wacc(a, opt, -1, 5)
    if opt.get("markc") is None:
        mark(a, opt, 1)
    B = [f"ds_write_b128 v3, {vr(Mp,4)}", f"ds_write_b128 v3, {vr(Mp+4,4)} offset:1024", "s_waitcnt lgkmcnt(0)", "s_barrier"]
    moff = lambda k: ((k >> 1) & 3) * 2048 + (k >> 4) * 1024 + ((k >> 3) & 1) * 512 + (k & 1) * 32
    NF, J = 6, opt.get("qjoint", 12)
    fb = [80, 84, 88, 92, 104, 108]
    rd = lambda k, r, tg: f"ds_read_b128 {vr(r, 4)}, v{vMa} offset:{moff(k)} ; @{tg}{k}"
    kmm = lambda k, r: f"{D32} {vr(Km,4)}, {vr(('a', 4 * k), 4)}, {vr(r, 4)}, " + ("0" if k == 0 else vr(Km, 4))
    joint = [k for k in range(32) if (k * J) // 32 != ((k - 1) * J) // 32 or (k == 0 and J)]
    first_v = [True]

    def vmm(k, r):
        c = "0" if first_v[0] else vr(Vm, 4)
        first_v[0] = False
        return f"{D32} {vr(Vm,4)}, {vr(r, 4)}, {vr(('a', 128 + 4 * k), 4)}, {c}"
    seq = [("m", k) for k in range(32)] + [("n", k) for k in range(32) if k not in joint]
    B += [rd(k, fb[q], tg) for q, (tg, k) in enumerate(seq[:NF - 1])]
    slots = []
    for q, (tg, k) in enumerate(seq):
        r = fb[q % NF]
        nx = [rd(seq[q + NF - 1][1], fb[(q + NF - 1) % NF], seq[q + NF - 1][0])] if q + NF - 1 < len(seq) else []
        sl = [f"WAITL {tg}{k}", kmm(k, r) if tg == "m" else vmm(k, r)] + nx
        if tg == "m" and k in joint:
            sl.append(vmm(k, r))
        slots.append(sl)
    s2 = slots[32:]
    s2[1] += [cv(Km, Km), cv(Km + 1, Km + 2), f"ds_write_b64 v{vKw}, {vr(Km,2)}"] + [f"ds_read_b128 {vr(Kp + 4*j, 4)}, v{vKr} offset:{256*j} ; @kp" for j in range(2)]
    s2[6] += ["WAITL kp", f"{M32} {vr(Sp,16)}, {vr(Kp,4)}, {vr(Qo,4)}, 0", f"{M32} {vr(Sp,16)}, {vr(Kp+4,4)}, {vr(Qo+4,4)}, {vr(Sp,16)}"]
    s2[9] += [f"ds_write_b128 v2, {vr(Sp,4)} offset:{QL_SX - QL_MEM} ; @sx"]
    s2[13] += (["s_waitcnt vmcnt(0)"] if qd > 1 else []) + ["WAITL sx", "s_barrier"]
    s2[13] += [f"ds_read_b128 {vr(Sm + 4 * q, 4)}, v{vHi} offset:{QL_SX - QL_MEM + 1024 * q} ; @sr" for q in range(4)]
    s2[14] += [f"s_add_u32 s{sMx}, s{sMx}, {NREP * 0x2000}", f"s_add_u32 s{sSb}, s{sSb}, {NREP}"]
    s2[15] += [f"s_add_u32 s{sFo}, s{sFo}, {NREP * 16}", f"s_add_u32 s{sStb}, s{sStb}, 24576"]
    s2[16] += [f"s_cmp_eq_u32 s{sStb}, {QL_ST + 73728}", f"s_cselect_b32 s{sStb}, {QL_ST}, s{sStb}"]
    assert len(s2) >= 17
    pa = lambda d, x, y: f"v_pk_add_f32 {vr(d,2)}, {vr(x,2)}, {vr(y,2)}"
    B += sum(slots, []) + ["WAITL sr"]
    B += [pa(Sm, Sm, Sm + 4), pa(Sm + 2, Sm + 2, Sm + 6), pa(Sm + 8, Sm + 8, Sm + 12), pa(Sm + 10, Sm + 10, Sm + 14), pa(Sm, Sm, Sm + 8), pa(Sm + 2, Sm + 2, Sm + 10),
          f"v_max_f32 v4, v{Sm}, v{Sm+1}", f"v_max3_f32 v5, v4, v{Sm+2}, v{Sm+3}", f"v_max3_f32 v4, v4, v{Sm+2}, v{Sm+3}",
          cv(Vmp, Vm), cv(Vmp + 1, Vm + 2), "v_permlane32_swap_b32 v4, v5", "v_max_f32 v4, v4, v5", f"v_mul_f32 v4, s{sCn}, v4", "v_max_f32 v4, v4, v6",
          "v_sub_f32 v6, v6, v4"]
    B += [f"v_pk_fma_f32 {vr(Sm+q,2)}, {vr(Sm+q,2)}, s[{sCp}:{sCp+1}], v[4:5] op_sel_hi:[1,1,0] neg_lo:[0,0,1] neg_hi:[0,0,1]" for q in (0, 2)]
    B += ["v_exp_f32 v6, v6"] + [f"v_exp_f32 v{Sm+q}, v{Sm+q}" for q in range(4)]
    B += [f"v_fma_f32 v7, v7, v6, v{Sm}", cv(Pm, Sm), cv(Pm + 1, Sm + 2), f"v_add_f32 v7, v7, v{Sm+1}", f"v_add_f32 v5, v{Sm+2}, v{Sm+3}",
          f"{M8} {vr(Sp,16)}, {vr(Vmp,2)}, {vr(Pm,2)}, 0", "v_add_f32 v4, v7, v5", "v_add_f32 v5, v7, v5", "s_nop 1",
          "v_permlane32_swap_b32 v4, v5", "v_add_f32 v4, v4, v5", "v_rcp_f32 v4, v4", "s_nop 3"]
    for j in range(2):
        B += [f"v_pk_fma_f32 {vr(Oa + 8*j + q, 2)}, {vr(Oa + 8*j + q, 2)}, v[6:7], {vr(Sp + 8*j + q, 2)} op_sel_hi:[1,0,1]" for q in range(0, 8, 2)]
        B += [f"v_pk_mul_f32 {vr(Oa + 8*j + q, 2)}, {vr(Oa + 8*j + q, 2)}, v[4:5] op_sel_hi:[1,0]" for q in range(0, 8, 2)]
        B += [cv(Px + 4 * j + q, Oa + 8 * j + 2 * q) for q in range(4)]
        B += [f"buffer_store_dwordx4 {vr(Px + 4 * j, 4)}, v{vOst}, {WSR}, s{sAct} offen offset:{512 * j} sc1"]
    wb = Asm()
    wacc(wb, opt, 1, 5)
    B += wb.lines + [f"s_add_u32 s{sAct}, s{sAct}, {NREP * 2 * ACT_UNIT}", f"s_cmp_lt_u32 s{sSa}, 64", "s_cbranch_scc1 QA_A",
          "s_waitcnt vmcnt(0)"] + flag_store(sPend, vOne) + [f"v_mov_b32 v{Mp}, -1", "s_barrier", f"s_cmp_lt_u32 s{sSb}, 64", "s_cbranch_scc1 QA_B", "s_branch L_END"]
    a.lines += resolve_waits(B) + X.lines


def role_fu(a, opt):
    sCu, sRep, sI, sBuf, sSegN, sAct, sFl, sCn, sPend = 26, 27, 28, 30, 31, 32, 33, 34, 29
    vXa, vOst, vOne = 10, 11, 12
    aG, aU, Fr, Pk = 32, 48, 64, 80
    W1, W3 = ("a", 0), ("a", 128)
    a.label("ROLE_FU")
    a(f"""
    s_sub_u32 s{sT0}, s{sH}, {8 * NREP}
    s_and_b32 s{sRep}, s{sT0}, 1
    s_lshr_b32 s{sT0}, s{sT0}, 1
    s_lshl_b32 s{sT0}, s{sT0}, 2
    s_add_u32 s{sCu}, s{sT0}, s{sXCC}
    s_sub_u32 s{sCu}, s{sCu}, 1
    s_cmp_ge_u32 s{sCu}, 11
    s_cbranch_scc1 L_END
    s_lshl_b32 s{sBuf}, s{sCu}, 8
    v_lshlrev_b32 v1, 4, v0
    """)
    srd(a, 8, P_W1, 512 * 2752)
    srd(a, 12, P_W3, 512 * 2752)
    wait_xn(a, "FU_w")
    if not opt.get("slow"):
        mark(a, opt, 1)
    if opt.get("uwait"):
        wait_kv(a, "FU_kv")
    load_proj_weights(a, [(8, W1), (12, W3)], 2752, sBuf, opt, "FU")
    a(f"""
    v_lshrrev_b32 v2, 5, v0
    v_lshlrev_b32 v4, 8, v2
    v_and_b32 v8, 15, v0
    v_lshl_add_u32 v5, v8, 4, v4
    v_bfe_u32 v6, v0, 4, 1
    v_mul_u32_u24 v6, {ACT_UNIT}, v6
    v_add_u32 v{vOst}, v5, v6
    v_mov_b32 v{vOne}, 1
    s_lshl_b32 s{sT0}, s{sCu}, 2
    s_add_u32 s{sT0}, s{sT0}, s{sW}
    s_lshl_b32 s{sFl}, s{sT0}, 2
    s_lshl_b32 s{sT0}, s{sT0}, 10
    s_mul_i32 s{sAct}, s{sRep}, {2 * ACT_UNIT}
    s_add_u32 s{sAct}, s{sAct}, s{sT0}
    s_add_u32 s{sAct}, s{sAct}, {WS_ACT + 128 * 1024}
    s_lshl_b32 s{sT0}, s{sRep}, 8
    s_add_u32 s{sFl}, s{sFl}, s{sT0}
    s_add_u32 s{sFl}, s{sFl}, {WS_FL_HF}
    s_mov_b32 s{sCn}, 0xbfb8aa3b
    s_mov_b32 s{sI}, 0
    s_mov_b32 s{sBuf}, 0
    s_mov_b32 s{sSegN}, s{sRep}
    s_lshl_b32 s{sPend}, s{sFl}, 4
    s_and_b32 s{sPend}, s{sPend}, 0x3fff
    s_add_u32 s{sPend}, s{sPend}, 0x14000
    """)
    if not opt.get("slow"):
        mark(a, opt, 0)
    xn_dma(a, sSegN, sBuf)
    a("s_waitcnt vmcnt(0)\ns_barrier")
    a.label("FU_A")
    a(f"""
    v_add_u32 v{vXa}, s{sBuf}, v1
    s_xor_b32 s{sBuf}, s{sBuf}, 0x8000
    s_add_u32 s{sSegN}, s{sSegN}, 2
    s_min_u32 s{sSegN}, s{sSegN}, 63
    """)
    pro, slots = gemm_list(vXa, lambda k: 1024 * k, Fr, [(aG, W1, True), (aU, W3, True)], "x")
    xn_weave(slots, 24, 2, sSegN, sBuf)
    slots[49] += ["s_waitcnt vmcnt(8)"] + flag_store(sPend, vOne)
    T = 96
    A = pro + sum(slots, []) + [f"s_mov_b32 s{sPend}, s{sFl}", f"s_add_u32 s{sFl}, s{sFl}, 512", "s_nop 1"]
    A += [f"v_mul_f32 v{T+q}, s{sCn}, v{aG+q}" for q in range(16)]
    A += [f"v_exp_f32 v{T+q}, v{T+q}" for q in range(16)]
    A += [f"v_add_f32 v{T+q}, 1.0, v{T+q}" for q in range(16)]
    A += [f"v_rcp_f32 v{T+q}, v{T+q}" for q in range(16)]
    A += [f"v_pk_mul_f32 {vr(aG+q,2)}, {vr(aG+q,2)}, {vr(T+q,2)}" for q in range(0, 16, 2)]
    A += [f"v_pk_mul_f32 {vr(aG+q,2)}, {vr(aG+q,2)}, {vr(aU+q,2)}" for q in range(0, 16, 2)]
    A += [cv(Pk + q, aG + 2 * q) for q in range(8)] + ["s_waitcnt vmcnt(1)", "s_barrier"]
    A += [f"buffer_store_dwordx4 {vr(Pk + 4 * j, 4)}, v{vOst}, {WSR}, s{sAct} offen offset:{512 * j} sc1" for j in range(2)]
    A += [f"s_add_u32 s{sAct}, s{sAct}, {4 * ACT_UNIT}", f"s_add_u32 s{sI}, s{sI}, 1", f"s_cmp_lt_u32 s{sI}, 32", "s_cbranch_scc1 FU_A",
          "s_waitcnt vmcnt(0)"] + flag_store(sPend, vOne) + ["s_branch L_END"]
    a.lines += resolve_waits(A)


def role_h(a, opt):
    a.label("ROLE_H")
    a(f"""
    v_lshlrev_b32 v1, 4, v0
    v_mov_b64 v[4:5], 0
    v_mov_b64 v[6:7], 0
    v_mov_b64 v[8:9], -1
    v_mov_b64 v[10:11], -1
    s_lshl_b32 s{sT0}, s{sH}, 2
    s_add_u32 s{sT0}, s{sT0}, s{sW}
    s_lshl_b32 s{sT0}, s{sT0}, 10
    s_lshl_b32 s{sT1}, s{sT0}, 2
    s_add_u32 s{sT1}, s{sT1}, {WS_MEMX}
    buffer_store_dwordx4 v[4:7], v1, {WSR}, s{sT0} offen sc1
    """)
    for k in range(4):
        a(f"buffer_store_dwordx4 v[8:11], v1, {WSR}, s{sT1} offen offset:{1024 * k} sc1")
    if opt.get("fprobe"):
        a(f"s_mul_i32 s{sT2}, s{sW}, {ACT_UNIT}\ns_lshl_b32 s70, s{sH}, 12\ns_add_u32 s{sT2}, s{sT2}, s70\ns_add_u32 s{sT2}, s{sT2}, {WS_ACT + 124 * ACT_UNIT}")
        for k in range(4):
            a(f"buffer_store_dwordx4 v[8:11], v1, {WSR}, s{sT2} offen offset:{1024 * k} sc1")
    if opt.get("hinit"):
        a(f"s_sub_u32 s{sT1}, s{sT1}, {WS_MEMX - WS_PA}")
        if opt.get("pa1"):
            assert not opt.get("first")
            a(f"s_lshl_b32 s{sT1}, s{sT0}, 1\ns_add_u32 s{sT1}, s{sT1}, {WS_PA}")
        for k in range(2 if opt.get("pa1") else 4):
            a(f"buffer_store_dwordx4 v[4:7], v1, {WSR}, s{sT1} offen offset:{1024 * k} sc1")
        a(f"v_lshlrev_b32 v2, 2, v0\ns_lshr_b32 s{sT0}, s{sT0}, 2\ns_add_u32 s{sT0}, s{sT0}, {WS_MB}\nbuffer_store_dword v8, v2, {WSR}, s{sT0} offen sc1")
        if opt.get("first"):
            a(f"s_add_u32 s{sT1}, s{sT1}, {WS_PA2 - WS_PA}\ns_add_u32 s{sT0}, s{sT0}, {WS_MB2 - WS_MB}")
            for k in range(4):
                a(f"buffer_store_dwordx4 v[4:7], v1, {WSR}, s{sT1} offen offset:{1024 * k} sc1")
            a(f"buffer_store_dword v8, v2, {WSR}, s{sT0} offen sc1")
    a("s_waitcnt vmcnt(0)\ns_barrier")
    count_cleared(a, "H_clr")
    if opt.get("pfo", 1):
        srd(a, 16, P_WO, 0x400000)
        a(f"s_lshl_b32 s{sT0}, s{sH}, 17\ns_lshl_b32 s{sT1}, s{sW}, 12\ns_add_u32 s{sT0}, s{sT0}, s{sT1}\nv_lshlrev_b32 v1, 4, v0\ns_barrier")
        if opt.get("pfo", 1) == 1:
            wait_xn(a, "H_x")
        for c in range(8):
            for k in range(4):
                a(f"buffer_load_dwordx4 v[124:127], v1, s[16:19], s{sT0} offen offset:{1024 * k}")
            a(f"s_add_u32 s{sT0}, s{sT0}, 0x4000")
    a("s_branch L_END")


def layer_norm(a, sF):
    X, Y = 32, 64
    L = Asm()
    L(f"""
    v_and_b32 v2, 7, v0
    v_lshrrev_b32 v3, 3, v0
    s_lshl_b32 s{sT0}, s{sW}, 3
    v_add_u32 v2, s{sT0}, v2
    v_lshlrev_b32 v4, 10, v2
    v_lshl_add_u32 v4, v3, 4, v4
    v_lshlrev_b32 v5, 9, v3
    v_lshl_add_u32 v5, v2, 4, v5
    s_lshl_b32 s{sT0}, s{sF}, 15
    """)
    for i in range(8):
        L(f"buffer_load_dwordx4 {vr(X + 4 * i, 4)}, v4, s[8:11], s{sT0} offen offset:{128 * i}")
    L("s_waitcnt vmcnt(0)")
    for q in range(32):
        L(f"v_lshlrev_b32 v{Y + 2*q}, 16, v{X+q}\nv_and_b32 v{Y + 2*q + 1}, 0xffff0000, v{X+q}")

    def reduce(r):
        L(f"""
        s_nop 1
        v_add_f32_dpp v{r}, v{r}, v{r} row_ror:8 row_mask:0xf bank_mask:0xf
        v_mov_b32 v{r+1}, v{r}
        s_nop 1
        v_permlane16_swap_b32 v{r}, v{r+1}
        v_add_f32 v{r}, v{r}, v{r+1}
        v_mov_b32 v{r+1}, v{r}
        s_nop 1
        v_permlane32_swap_b32 v{r}, v{r+1}
        v_add_f32 v{r}, v{r}, v{r+1}
        v_mul_f32 v{r}, 0x3b000000, v{r}
        """)

    def round_bf16(r):
        L(f"v_cvt_pk_bf16_f32 v{r}, v{r}, v{r}\nv_lshlrev_b32 v{r}, 16, v{r}")
    for q in range(4):
        L(f"v_add_f32 v{6+q}, v{Y+q}, v{Y+4+q}")
    for q in range(8, 64):
        L(f"v_add_f32 v{6 + (q & 3)}, v{6 + (q & 3)}, v{Y+q}")
    L("v_add_f32 v6, v6, v7\nv_add_f32 v8, v8, v9\nv_add_f32 v6, v6, v8")
    reduce(6)
    for q in range(64):
        L(f"v_sub_f32 v{12 + (q & 3)}, v{Y+q}, v6")
        L(f"v_mul_f32 v{8 + q}, v{12 + q}, v{12 + q}" if q < 4 else f"v_fmac_f32 v{8 + (q & 3)}, v{12 + (q & 3)}, v{12 + (q & 3)}")
    L("v_add_f32 v8, v8, v9\nv_add_f32 v10, v10, v11\nv_add_f32 v8, v8, v10")
    reduce(8)
    round_bf16(6)
    round_bf16(8)
    L("v_add_f32 v8, 0x3727c5ac, v8")
    round_bf16(8)
    L("v_sqrt_f32 v8, v8\ns_nop 0")
    round_bf16(8)
    L("v_rcp_f32 v8, v8")
    for q in range(64):
        L(f"v_sub_f32 v{Y+q}, v{Y+q}, v6")
    for q in range(32):
        L(cv(X + q, Y + 2 * q))
    for q in range(32):
        L(f"v_lshlrev_b32 v{Y + 2*q}, 16, v{X+q}\nv_and_b32 v{Y + 2*q + 1}, 0xffff0000, v{X+q}")
    for q in range(64):
        L(f"v_mul_f32 v{Y+q}, v{Y+q}, v8")
    for q in range(32):
        L(cv(X + q, Y + 2 * q))
    L(f"s_add_u32 s{sT0}, s{sT0}, {WS_XN}")
    for i in range(8):
        L(f"buffer_store_dwordx4 {vr(X + 4 * i, 4)}, v5, {WSR}, s{sT0} offen sc1\ns_add_u32 s{sT0}, s{sT0}, 0x1000")
    a.lines += L.lines


def role_f(a, opt):
    sF, sU, sAo, sAh, sAl, sN, sFo, sFh, sXo, sRed, sOne = 26, 27, 28, 29, 30, 31, 32, 33, 34, 64, 65
    vFo, vFh, vX, vRed, vHv, vXr, Acc, Hf, Ob, vOv, vXi = 10, 11, 12, 13, 14, 16, 20, 28, 72, 15, 9
    NB = 24
    a.label("ROLE_F")
    srd(a, 8, P_X, 2048 * 1024)
    srd(a, 12, P_WO, 0x400000)
    srd(a, 16, P_W2, 1376 * 1024)
    srd(a, 20, P_OUT, 2048 * 1024)
    a(f"""
    s_sub_u32 s{sF}, s{sXCC}, 5
    s_lshl_b32 s{sF}, s{sF}, 5
    s_add_u32 s{sF}, s{sF}, s{sH}
    v_lshlrev_b32 v1, 4, v0
    """)
    if opt.get("markf") == 0:
        mark(a, opt, 1)
    layer_norm(a, sF)
    if opt.get("markf") == 1:
        mark(a, opt, 1)
    a("s_waitcnt vmcnt(0)\ns_barrier")
    if opt.get("markf") == 2:
        mark(a, opt, 1)
    count_cleared(a, "F_clr")
    if opt.get("markf") == 3:
        mark(a, opt, 1)
    if opt.get("fwait"):
        wait_kv(a, "F_kv")
    a(f"""
    s_and_b32 s{sXo}, s{sF}, 15
    s_lshl_b32 s{sXo}, s{sXo}, 6
    v_lshrrev_b32 v2, 2, v0
    v_lshlrev_b32 v2, 10, v2
    v_and_b32 v3, 3, v0
    v_lshl_add_u32 v2, v3, 4, v2
    v_add_u32 v2, s{sXo}, v2
    v_lshrrev_b32 v4, 5, v0
    v_lshlrev_b32 v4, 4, v4
    v_bfe_u32 v5, v0, 2, 3
    v_add_u32 v4, v4, v5
    v_lshlrev_b32 v4, 6, v4
    v_lshl_add_u32 v4, v3, 4, v4
    s_mul_i32 s{sT2}, s{sW}, 40960
    v_add_u32 v4, s{sT2}, v4
    """)
    L = [f"s_lshl_b32 s{sAo}, s{sW}, 20", f"s_mul_i32 s{sAh}, s{sW}, {11 * 32768}"]

    def wdma(k):
        sd, so = (12, sAo) if k < 32 else (16, sAh)
        out = []
        for hh in range(2):
            out += [f"s_add_u32 m0, s{sT2}, {2048 * (k % 20) + 1024 * hh}", "s_nop 0",
                    f"buffer_load_dwordx4 v2, s[{sd}:{sd+3}], s{so} offen lds ; @w{k}", f"s_add_u32 s{so}, s{so}, 0x4000"]
        return out
    for k in range(20):
        L += wdma(k)
    for k in range(43):
        dst = ("a", 8 * k) if k < 32 else ("v", 168 + 8 * (k - 32))
        L.append(f"WAITV w{k}")
        for t in range(2):
            for y in range(2):
                L.append(f"ds_read_b64_tr_b16 {vr((dst[0], dst[1] + 4 * t + 2 * y), 2)}, v4 offset:{2048 * (k % 20) + 512 * y + 8 * t} ; @r{k}")
        if k >= 1 and k + 19 < 43:
            L += [f"WAITL r{k-1}"] + wdma(k + 19)
        elif k % 2:
            L.append(f"WAITL r{k-1}")
    a.lines += resolve_waits(L)
    a(f"""
    s_waitcnt lgkmcnt(0)
    s_barrier
    s_lshr_b32 s{sU}, s{sF}, 4
    {f"s_lshr_b32 s{sU}, s{sH}, 4" if opt.get("fmap") else ""}
    {f"s_lshl_b32 s{sU}, s{sU}, 1" if opt.get("fmap") else ""}
    {f"s_add_u32 s{sU}, s{sU}, s{sXCC}" if opt.get("fmap") else ""}
    {f"s_sub_u32 s{sU}, s{sU}, 5" if opt.get("fmap") else ""}
    v_bfe_u32 v2, v0, 2, 3
    v_lshlrev_b32 v2, 10, v2
    v_and_b32 v3, 3, v0
    v_lshl_add_u32 v2, v3, 2, v2
    s_lshl_b32 s{sT0}, s{sW}, 13
    v_add_u32 v{vFo}, s{sT0}, v2
    v_min_u32 v2, 42, v0
    v_lshlrev_b32 v{vFh}, 2, v2
    v_and_b32 v2, 15, v0
    v_lshrrev_b32 v3, 4, v0
    v_lshlrev_b32 v2, 10, v2
    v_lshl_add_u32 v2, v3, 4, v2
    v_add_u32 v{vX}, s{sXo}, v2
    s_cmp_eq_u32 s{sW}, 0
    s_cselect_b32 s{sT0}, 0, 0x1000000
    v_add_u32 v{vXi}, s{sT0}, v{vX}
    v_mov_b32 v{vHv}, 0
    s_mov_b32 s{sRed}, 0
    s_mov_b32 s{sOne}, 0
    s_mov_b32 s{sN}, s{sU}
    """)
    X = Asm()
    pr = opt.get("fprobe", 0)
    sNy, vPr, vCk = 66, 8, 3
    a(f"""
    v_lshlrev_b32 v2, 9, v0
    s_lshl_b32 s{sT0}, s{sW}, 15
    s_add_u32 s{sT0}, s{sT0}, 508
    v_add_u32 v{vPr}, s{sT0}, v2
    s_mov_b32 s{sNy}, 0
    """)
    hl = f"buffer_load_dword v{vHv}, v{vFh}, {WSR}, s{sFh} offen sc1"
    ol = f"buffer_load_dword v{vOv}, v{vFo}, {WSR}, s{sFo} offen sc1"

    def fetch_next(name):
        out = [f"s_lshr_b32 s{sT0}, s{sN}, 1", f"s_lshl_b32 s{sFh}, s{sT0}, 8", f"s_add_u32 s{sFh}, s{sFh}, {WS_FL_HF}",
               f"s_lshl_b32 s{sFo}, s{sT0}, 4", f"s_add_u32 s{sFo}, s{sFo}, {WS_FL_O}",
               f"v_cmp_eq_u32 vcc, 0, v{vHv}", f"s_mul_i32 s{sAh}, s{sN}, {ACT_UNIT}", f"s_add_u32 s{sAh}, s{sAh}, {WS_ACT + 128 * 1024}",
               f"s_mul_i32 s{sT0}, s{sW}, 11", f"s_add_u32 s{sT1}, s{sT0}, 10", f"s_min_u32 s{sT1}, s{sT1}, 42",
               f"s_lshl_b32 s{sT0}, s{sT0}, 10", f"s_lshl_b32 s{sT1}, s{sT1}, 10",
               f"s_add_u32 s{sAl}, s{sAh}, s{sT1}", f"s_add_u32 s{sAh}, s{sAh}, s{sT0}",
               f"s_cbranch_vccnz {name}", f"{name}_go:"]
        X.label(name)
        spin(X, name + "s", hl, f"v_cmp_eq_u32 vcc, 0, v{vHv}")
        X(f"s_branch {name}_go")
        for k in range(10):
            out.append(f"buffer_load_dwordx4 {vr(Hf + 4 * k, 4)}, v1, {WSR}, s{sAh} offen offset:{1024 * (k & 3)} sc1")
            if k & 3 == 3:
                out.append(f"s_add_u32 s{sAh}, s{sAh}, 0x1000")
        out += [f"buffer_load_dwordx4 {vr(Hf + 40, 4)}, v1, {WSR}, s{sAl} offen sc1", f"s_lshl_b32 s{sT0}, s{sN}, 14",
                f"buffer_load_dwordx4 {vr(vXr,4)}, v{vXi}, s[8:11], s{sT0} offen",
                f"s_add_u32 s{sFh}, s{sFh}, 512", f"s_min_u32 s{sFh}, s{sFh}, {WS_FL_HF + 63 * 256}", hl]
        if pr:
            out += [f"s_mul_i32 s{sT0}, s{sN}, {ACT_UNIT}", f"s_add_u32 s{sT0}, s{sT0}, {WS_ACT}", f"s_cmp_ge_u32 s{sN}, 124",
                    f"s_cselect_b32 s{sFo}, s{sT0}, s{sFo}", f"s_cselect_b32 s{sNy}, -1, 0", f"s_cselect_b64 vcc, -1, 0",
                    f"v_cndmask_b32 v{vFo}, v{vFo}, v{vPr}, vcc"]
        out += [ol]
        return out
    mark(a, opt, 0)
    wait_xn(a, "F_go")
    a.lines += fetch_next("F_h0")
    a.label("F_U0")
    a("s_waitcnt vmcnt(0)")
    a.label("F_U")
    wacc(a, opt, -1)
    a(f"""
    s_mul_i32 s{sAo}, s{sU}, {ACT_UNIT}
    s_lshl_b32 s{sT0}, s{sW}, 15
    s_add_u32 s{sAo}, s{sAo}, s{sT0}
    s_add_u32 s{sAo}, s{sAo}, {WS_ACT}
    s_lshl_b32 s{sXo}, s{sU}, 14
    s_add_u32 s{sU}, s{sU}, 4
    s_mov_b32 s{sN}, s{sU}
    v_cmp_eq_u32 vcc, s{sNy}, v{vOv}
    s_cbranch_vccz F_o_ok
    """)
    fd = opt.get("fdep", 1)
    if fd == 1:
        spin(a, "F_o", ol, f"v_cmp_eq_u32 vcc, s{sNy}, v{vOv}", sleep=opt.get("fsleep", 1))
    else:
        for k in range(fd - 1):
            a.lines += [ol, "s_sleep 1"]
        a.lines += [f"s_mov_b32 s{sTO}, 0", "F_o:", ol, f"s_waitcnt vmcnt({fd - 1})", f"v_cmp_eq_u32 vcc, s{sNy}, v{vOv}", "s_cbranch_vccz F_o_ok"]
        a.lines += ([f"s_sleep {opt['fsleep']}"] if opt.get("fsleep") else [])
        a.lines += [f"s_add_u32 s{sTO}, s{sTO}, 1", f"s_cmp_lt_u32 s{sTO}, {SPIN_MAX}", "s_cbranch_scc1 F_o", "s_branch L_END", "F_o_ok:"]
    wacc(a, opt, 1)
    if opt.get("markf") is None:
        mark(a, opt, 1)
    L = []

    def ld(k):
        out = [f"buffer_load_dwordx4 {vr(Ob + 4 * (k % NB), 4)}, v1, {WSR}, s{sAo} offen offset:{1024 * (k & 3)} sc1 ; @o{k}"]
        if k & 3 == 3:
            out.append(f"s_add_u32 s{sAo}, s{sAo}, 0x1000")
        return out
    for k in range(NB):
        L += ld(k)
    for q in range(4):
        L += [f"v_lshlrev_b32 v{Acc + 2*q}, 16, v{vXr+q}", f"v_and_b32 v{Acc + 1 + 2*q}, 0xffff0000, v{vXr+q}"]
    L += ["s_nop 1"]
    for k in range(11):
        for t in range(2):
            L.append(f"{D32} {vr(Acc + 4 * t, 4)}, {vr(168 + 8 * k + 4 * t, 4)}, {vr(Hf + 4 * k, 4)}, {vr(Acc + 4 * t, 4)}")
    def step(k):
        r = Ob + 4 * (k % NB)
        m = [f"{D32} {vr(Acc + 4 * t, 4)}, {vr(('a', 8 * k + 4 * t), 4)}, {vr(r, 4)}, {vr(Acc + 4 * t, 4)}" for t in range(2)]
        ck = [f"v_max3_u32 v{vCk}, v{vCk}, v{r}, v{r+1}", f"v_max3_u32 v{vCk}, v{vCk}, v{r+2}, v{r+3}"] if pr else []
        return [f"WAITV o{k}", m[0]] + ck + [m[1]] + (ld(k + NB) if k + NB < 32 else [])
    fn = opt.get("fnext", 20) if not pr else 31
    assert fn >= 32 - NB
    if pr:
        L.insert(0, f"v_mov_b32 v{vCk}, 0")
    for k in range(fn + 1):
        L += step(k)
    rest = sum((step(k) for k in range(fn + 1, 32)), [])
    if pr:
        L += [f"v_cmp_eq_u32 vcc, -1, v{vCk}", "s_cbranch_vccnz F_again"]
        X(f"""
        F_again:
        s_sub_u32 s{sAo}, s{sAo}, 0x8000
        s_add_u32 s{sOne}, s{sOne}, 1
        s_cmp_lt_u32 s{sOne}, {SPIN_MAX}
        s_cbranch_scc1 F_o_ok
        s_branch L_END
        """)
        late = [f"s_cmp_ge_u32 s{sU}, 128", "s_cbranch_scc1 F_red"] + fetch_next("F_h1") + ["F_red:"]
    else:
        n0 = len(resolve_waits(L))
        X.lines += ["F_last:"] + resolve_waits(L + rest)[n0:] + ["s_branch F_red"]
        L += [f"s_cmp_ge_u32 s{sU}, 128", "s_cbranch_scc1 F_last"] + fetch_next("F_h1") + rest + ["F_red:"]
        late = []
    a.lines += resolve_waits(L)
    a(f"""
    s_lshl_b32 s{sT0}, s{sW}, 11
    s_add_u32 s{sT0}, s{sT0}, s{sRed}
    v_add_u32 v{vRed}, s{sT0}, v1
    v_add_u32 v2, s{sRed}, v1
    s_xor_b32 s{sRed}, s{sRed}, 0x2000
    s_nop 2
    ds_write_b128 v{vRed}, {vr(Acc,4)}
    ds_write_b128 v{vRed}, {vr(Acc+4,4)} offset:1024
    """)
    a.lines += late
    a(f"""
    s_waitcnt lgkmcnt(0)
    s_barrier
    s_cmp_lg_u32 s{sW}, 0
    s_cbranch_scc1 F_next
    """)
    for q in range(6):
        a(f"ds_read_b128 {vr(Ob + 4 * q, 4)}, v2 offset:{2048 + 1024 * q}")
    a("s_waitcnt lgkmcnt(0)")
    for q in range(8):
        a(f"v_add_f32 v{Ob+q}, v{Ob+q}, v{Ob+8+q}\nv_add_f32 v{Acc+q}, v{Acc+q}, v{Ob+16+q}")
    for q in range(8):
        a(f"v_add_f32 v{Acc+q}, v{Acc+q}, v{Ob+q}")
    for q in range(4):
        a(cv(4 + q, Acc + 2 * q))
    a(f"buffer_store_dwordx4 v[4:7], v{vX}, s[20:23], s{sXo} offen {opt.get('outfl', '')}")
    a(f"s_waitcnt vmcnt(1)\ns_cmp_lt_u32 s{sU}, 128\ns_cbranch_scc1 F_U\ns_branch L_END")
    a.label("F_next")
    a(f"s_cmp_lt_u32 s{sU}, 128\ns_cbranch_scc1 F_U0\ns_branch L_END")
    a.lines += X.lines
```

```python
import sys
from asmlib import *
from layout import *
import role_r, role_w

NAME = "parallel_sum__memory_aug_recurrent_mem_tr__glu_gated_swiglu__prompt"
L_BC = 32000
BEST = {"pack": 1, "mlast": 1, "al8": 1, "alx": 1, "osplit": 1, "dmaL": 1, "ladder": 1, "barS": 0, "depA": [2, 2, 2, 2], "earlyE": [0, 0, 0, 0], "dep": [3, 3, 3, 3],
        "dA": [1, 18, 34, 46], "gapA": [23, 18, 28, 26], "gapE": [15, 17, 21, 19], "dE": [28, 10, 0, 0], "posL": [14, 14, 14, 14],
        "barB": 18, "barA": [2, 2, 2, 2], "posP": [1, 0, 0, 0], "vfill": 1, "dH": [7, 0, 2, 6], "idg": 1, "idn": [0, 0, 99, 99],
        "hold": [1, 1, 1, 1], "hpos": 0, "dL": [0, 0, 0, 0],
        "kvpos": [19, 23, 25, 28, 21, 31, 35], "kvoff": [1, 0, 0, 1], "e1": 0, "barpos2": 0,
        "pfq": 3, "pfk": 0, "pfw": 1, "hinit": 1, "pfwin": 4, "fwait": 1, "earlykv": 1, "thr": [1, 23, 4], "pub0": 1, "pfc2": [20], "perm": [7, 0, 5, 6, 1, 2, 3, 4], "touch2": 1, "touch3": 2,
        "outfl": "nt", "fnext": 10, "qone": 1, "qsleep": 1, "fsleep": 0}
OLD = {"hold": [0, 0, 0, 0], "dH": [0, 0, 0, 0], "dA": [6, 18, 44, 42], "gapA": [24, 28, 32, 28], "gapE": [16, 12, 22, 20], "dE": [30, 34, 0, 2],
       "barA": [2, 2, 2, 2], "posP": [1, 1, 0, 1], "dep": [3, 3, 2, 2], "idg": 0, "idn": [99, 99, 99, 99]}

DOC = """;
"""


def entry(a, opt):
    full = not opt.get("r_only")
    a(f"""
    s_cmp_ge_u32 s2, 256
    s_cbranch_scc1 {"L_END2" if opt.get("diag") and full else "L_END"}
    """)
    if opt.get("diag"):
        a("s_memrealtime s[100:101]\ns_mov_b32 s93, 0")
    a(f"""
    s_load_dwordx4 s[60:63], s[0:1], 96
    s_load_dwordx16 s[36:51], s[0:1], 0
    s_load_dwordx8 s[52:59], s[0:1], 64
    s_getreg_b32 s{sXCC}, hwreg(HW_REG_XCC_ID)
    s_and_b32 s{sXCC}, s{sXCC}, 7
    s_lshl_b32 s{sXCC}, s{sXCC}, 2
    s_lshr_b32 s{sXCC}, {hex(sum(v << (4 * i) for i, v in enumerate(opt.get("perm", range(8)))))}, s{sXCC}
    s_and_b32 s{sXCC}, s{sXCC}, 7
    v_lshrrev_b32 v1, 6, v0
    v_and_b32 v0, 63, v0
    v_readfirstlane_b32 s{sW}, v1
    v_mov_b32 v4, {L_BC}
    v_lshlrev_b32 v12, 7, v0
    s_lshr_b32 s13, s2, 3
    """)
    if opt.get("pfcode", 1):
        a(f"""
        s_cmp_lg_u32 s{sW}, 3
        s_cbranch_scc1 L_NOPF
        s_getpc_b64 s[14:15]
        """)
        a.label("L_PC")
        a(f"""
        s_and_b32 s12, s13, 15
        s_lshl_b32 s12, s12, 13
        v_add_u32 v13, s12, v12
        v_min_u32 v13, L_LAST-L_PC, v13
        global_load_dword v127, v13, s[14:15]
        """)
        a.label("L_NOPF")
    a(f"""
    s_waitcnt lgkmcnt(0)
    s_mov_b32 s{sWS}, s{P_WS}
    s_mov_b32 s{sWS+1}, s{P_WS+1}
    s_mov_b32 s{sWS+2}, {hex(WS_BYTES)}
    s_mov_b32 s{sWS+3}, 0x20000
    s_cmp_lg_u32 s{sW}, 0
    s_cbranch_scc1 L_NOTK
    s_lshl_b32 s8, s{sXCC}, 5
    s_mov_b32 s9, 1
    s_atomic_add s9, s[{P_DBG}:{P_DBG+1}], s8 glc
    """)
    a.label("L_NOTK")
    crow = lambda c: 256 * (c & 1) + 32 * (c >> 1)
    a(f"""
    s_mov_b32 s18, 0x400000
    s_mov_b32 s19, 0x20000
    s_lshr_b32 s11, s{sW}, 1
    s_lshl_b32 s11, s11, 7
    s_add_u32 s11, s11, s13
    s_lshl_b32 s11, s11, 13
    s_and_b32 s12, s{sW}, 1
    v_lshlrev_b32 v13, 4, v0
    s_cmp_lg_u32 s{sXCC}, 0
    s_cbranch_scc1 L_PWQ
    s_mov_b32 s16, s{P_WK}
    s_mov_b32 s17, s{P_WK+1}
    s_lshl_b32 s12, s12, 12
    s_add_u32 s11, s11, s12
    v_add_u32 v13, s11, v13
    """)
    for c in range(opt.get("pfw", 2)):
        a(f"s_mov_b32 s12, {crow(c) * 8192}")
        for k in range(4):
            a(f"buffer_load_dwordx4 v[124:127], v13, s[16:19], s12 offen offset:{1024 * k}")
    a("s_branch L_NOPW")
    a.label("L_PWQ")
    a(f"""
    s_cmp_ge_u32 s{sXCC}, 5
    s_cbranch_scc1 L_PWO
    s_lshl_b32 s12, s12, 10
    s_add_u32 s11, s11, s12
    s_sub_u32 s12, s{sXCC}, 1
    s_lshl_b32 s12, s12, 11
    s_add_u32 s11, s11, s12
    v_add_u32 v13, s11, v13
    """)
    for p in [P_WK] if not opt.get("nopfq") else []:
        a(f"s_mov_b32 s16, s{p}\ns_mov_b32 s17, s{p+1}")
        for c in range(8):
            a(f"s_mov_b32 s12, {crow(c) * 8192}\nbuffer_load_dwordx4 v[124:127], v13, s[16:19], s12 offen")
    a("s_branch L_NOPW")
    a.label("L_PWO")
    if opt.get("pfh"):
        a(f"""
        s_mov_b32 s16, s{P_WK}
        s_mov_b32 s17, s{P_WK+1}
        s_lshl_b32 s12, s12, 12
        s_add_u32 s11, s11, s12
        v_add_u32 v13, s11, v13
        """)
        for x, cs in enumerate(opt["pfh"]):
            a(f"s_cmp_lg_u32 s{sXCC}, {5 + x}\ns_cbranch_scc1 L_PH{x}")
            for c in cs:
                a(f"s_mov_b32 s12, {crow(c) * 8192}")
                for k in range(4):
                    a(f"buffer_load_dwordx4 v[124:127], v13, s[16:19], s12 offen offset:{1024 * k}")
            a.label(f"L_PH{x}")
        a("s_waitcnt vmcnt(0)")
    a.label("L_NOPW")
    a(f"""
    s_cmp_lg_u32 s{sW}, 0
    s_cbranch_scc1 L_RANKED
    s_waitcnt lgkmcnt(0)
    v_mov_b32 v3, s9
    ds_write_b32 v4, v3
    s_waitcnt lgkmcnt(0)
    """)
    a.label("L_RANKED")
    a(f"""
    s_barrier
    ds_read_b32 v3, v4
    s_waitcnt lgkmcnt(0)
    v_readfirstlane_b32 s{sH}, v3
    s_barrier
    """)
    if opt.get("marke"):
        role_w.mark(a, opt, 0)
        role_w.mark(a, opt, 1)
        a("s_branch L_END")
    a(f"""
    s_cmp_ge_u32 s{sH}, 32
    s_cbranch_scc1 L_END
    """)

def build(opt):
    a = Asm()
    entry(a, opt)
    a(f"s_cmp_eq_u32 s{sXCC}, 0\ns_cbranch_scc1 ROLE_R")
    if opt.get("r_only"):
        a("s_branch L_END")
    else:
        a(f"""
        s_cmp_eq_u32 s{sXCC}, 7
        s_cbranch_scc1 ROLE_H
        s_cmp_ge_u32 s{sXCC}, 5
        s_cbranch_scc1 ROLE_F
        """)
        n0 = len(a.lines)
        role_w.role_qa(a, opt)
        role_w.role_fu(a, opt)
        role_w.role_h(a, opt)
        role_w.role_f(a, opt)
        errs = check_hazards(a.lines, name="W")
        for e in errs:
            print("HAZARD", e)
        assert not errs
    if opt.get("r_only"):
        opt = dict(opt, first=0)
    elif opt.get("first"):
        role_r.role_s(a, opt)
    role_r.role_r(a, opt)
    a.label("L_END")
    if opt.get("diag") and not opt.get("r_only"):
        a(f"""
        s_cmp_ge_u32 s2, 256
        s_cbranch_scc1 L_END2
        s_waitcnt vmcnt(0)
        s_memrealtime s[74:75]
        s_waitcnt lgkmcnt(0)
        v_mov_b32 v20, s100
        v_mov_b32 v21, s74
        v_mov_b32 v22, s94
        v_mov_b32 v23, s95
        s_lshl_b32 s72, s{sXCC}, 5
        s_add_u32 s72, s72, s{sH}
        s_lshl_b32 s72, s72, 2
        s_add_u32 s72, s72, s{sW}
        s_lshl_b32 s72, s72, 4
        s_add_u32 s72, s72, {WS_DIAG + 0x4000}
        buffer_store_dwordx4 v[20:23], off, s[{sWS}:{sWS+3}], s72
        """)
        if opt.get("probe") is not None:
            lo, hi, src = opt["probe"]
            a(f"""
            s_cmp_lt_u32 s{sXCC}, {lo}
            s_cbranch_scc1 L_END2
            s_cmp_gt_u32 s{sXCC}, {hi}
            s_cbranch_scc1 L_END2
            s_cmp_ge_u32 s{sH}, 24
            s_cbranch_scc1 L_END2
            s_and_b32 s76, s{sH}, {3 if "pcls" in opt else 0}
            s_cmp_lg_u32 s76, {opt.get("pcls", 0)}
            s_cbranch_scc1 L_END2
            s_lshr_b32 s80, s93, 4
            s_add_u32 s80, s80, s100
            s_sub_u32 s81, s95, s94
            s_add_u32 s81, s81, s100
            s_add_u32 s76, s{src}, 20000
            s_mov_b32 s77, 0
            """)
            a.label("L_PROBE")
            a(f"""
            s_memrealtime s[78:79]
            s_add_u32 s77, s77, 1
            s_waitcnt lgkmcnt(0)
            s_cmp_gt_u32 s77, 100000
            s_cbranch_scc1 L_END2
            s_sub_u32 s78, s78, s76
            s_cmp_lt_i32 s78, 0
            s_cbranch_scc1 L_PROBE
            """)
        if opt.get("dbgout"):
            a(f"""
            s_cmp_lg_u32 s{sW}, 0
            s_cbranch_scc1 L_END2
            s_load_dwordx2 s[{P_DBG}:{P_DBG+1}], s[0:1], 96
            s_waitcnt lgkmcnt(0)
            s_cmp_eq_u32 s{sXCC}, 7
            s_cbranch_scc1 L_END2
            s_sleep 127
            s_sleep 127
            s_sleep 127
            s_mov_b64 exec, 1
            v_mov_b32 v24, 0
            v_not_b32 v20, v20
            global_atomic_umax v24, v20, s[{P_DBG}:{P_DBG+1}] offset:12
            global_atomic_umax v24, v21, s[{P_DBG}:{P_DBG+1}] offset:28
            s_cmp_lg_u32 s{sXCC}, 0
            s_cbranch_scc1 L_DBG1
            v_mov_b32 v25, s98
            global_atomic_umax v24, v25, s[{P_DBG}:{P_DBG+1}] offset:16
            global_atomic_umax v24, v21, s[{P_DBG}:{P_DBG+1}] offset:20
            global_atomic_umax v24, v22, s[{P_DBG}:{P_DBG+1}] offset:44
            global_atomic_umax v24, v23, s[{P_DBG}:{P_DBG+1}] offset:48
            v_mov_b32 v25, s93
            global_atomic_umax v24, v25, s[{P_DBG}:{P_DBG+1}] offset:52
            v_mov_b32 v25, s92
            global_atomic_add v24, v25, s[{P_DBG}:{P_DBG+1}] offset:8
            s_branch L_END2
            """)
            a.label("L_DBG1")
            a(f"""
            s_cmp_ge_u32 s{sXCC}, 5
            s_cbranch_scc1 L_DBG2
            s_cmp_ge_u32 s{sH}, 24
            s_cbranch_scc1 L_END2
            global_atomic_umax v24, v22, s[{P_DBG}:{P_DBG+1}] offset:24
            global_atomic_umax v24, v23, s[{P_DBG}:{P_DBG+1}] offset:36
            global_atomic_umax v24, v21, s[{P_DBG}:{P_DBG+1}] offset:40
            s_branch L_END2
            """)
            a.label("L_DBG2")
            a(f"""
            global_atomic_umax v24, v23, s[{P_DBG}:{P_DBG+1}] offset:56
            global_atomic_umax v24, v22, s[{P_DBG}:{P_DBG+1}] offset:60
            """)
        a.label("L_END2")
    hdr = open("cdna_kernels/" + NAME + ".s.ref").read().split("; Override launch geometry")[0] if not opt.get("nohdr") else ""
    return hdr + f"""; @launch grid=(256,1,1) block=(256,1,1) lds=163840
{DOC}.amdgcn_target "amdgcn-amd-amdhsa--gfx950"
.text
.globl {NAME}_kernel
.p2align 8
.type {NAME}_kernel,@function
{NAME}_kernel:
""" + a.text() + f"""L_LAST:
    s_endpgm
.section .rodata,"a"
.p2align 6
.amdhsa_kernel {NAME}_kernel
  .amdhsa_next_free_vgpr 512
  .amdhsa_next_free_sgpr 102
  .amdhsa_accum_offset 256
  .amdhsa_group_segment_fixed_size 0
  .amdhsa_kernarg_size 112
  .amdhsa_user_sgpr_count 2
  .amdhsa_user_sgpr_kernarg_segment_ptr 1
  .amdhsa_system_sgpr_workgroup_id_x 1
.end_amdhsa_kernel
"""

if __name__ == "__main__":
    s = build(BEST)
    open("cdna_kernels/" + NAME + ".s", "w").write(s)
```

```python
import re
from asmlib import *
from layout import *

SM = "v_smfmac_f32_16x16x64_bf16"
D32 = "v_mfma_f32_16x16x32_bf16"
D16 = "v_mfma_f32_16x16x16_bf16"

L_KX, L_MEM, L_QK, L_O, L_SEL, L_W = 0, 16384, 24576, 28928, 30976, 32768

vL16, vL16b, vL16c, vIdx, vPAst, vMBst, vQKw, vQKr, vO, vKX, vVM, vFlag = range(12)
vQKown, vVMh, vPub, vVX, vVXn, vMemA = 12, 16, 18, 20, 28, 36
aK0, aQ0, aK1, aQ1, aV0, aV1 = 68, 72, 76, 80, 84, 88
vNeg, vG = 19, 10
vSt = 92
vT = 124

sWv, sWq, sWk, sWo = 8, 12, 16, 20
sStep, sMBw, sMBr, sPAw, sPAr, sKV, sMX, sFL, sNeed, sTO = 26, 27, 28, 29, 30, 31, 32, 33, 34, 35
sC, sM0, sTmp, sTmp2, sMBl, sKV2, sHUw, sHUr = 64, 66, 67, 68, 69, 70, 71, 65


def own_blocks(w):
    a = w ^ 2
    return [a, a + 4]


class Plan:
    def __init__(self, w):
        self.w = w
        self.blocks = [own_blocks((w + i) % 4)[k] for k in range(2) for i in range(4)]
        seq = []
        for b in range(5):
            seq += [("K", b, 0), ("Q", b, 0), ("K", b, 1), ("Q", b, 1)]
        for t in range(2):
            for m in "KQ":
                seq += [(m, b, t) for b in (5, 6, 7)]
        self.qk = seq
        self.v = [("V", b, t) for b in range(8) for t in range(2)]
        self.o = [("O", 0, sl) for sl in range(4)]
        self.o += [("O", i, sl) for sl in range(4) for i in (1, 2, 3)]
        self.qk_lds_pos = [0, 1, 2, 3, 12, 14, 16, 18]
        self.o_lds_pos = [0, 1, 2, 3, 12, 13, 14, 15]
        lds = [self.qk[p] for p in self.qk_lds_pos] + [self.o[p] for p in self.o_lds_pos]
        self.reg = {}
        free = [("a", 8 * i) for i in range(32)] + [("v", 128 + 8 * i) for i in range(16)]
        for f in self.qk + self.v + self.o:
            if f not in lds:
                self.reg[f] = free.pop(0)
        assert not free
        self.ldsn = {}

    def name_abs(self, f):
        m, i, t = f
        return (m, self.blocks[i] if m != "O" else (self.w + i) % 4, t)

    def lds_read(self, f, dst, tag=""):
        n = self.ldsn[f]
        off = L_W + (n >> 1) * 16384 + self.w * 4096 + (n & 1) * 2048
        out = []
        for hlf in range(2):
            o = off + hlf * 1024
            base = [vL16, vL16b, vL16c][o >> 16]
            out.append(f"ds_read_b128 {vr(dst + 4 * hlf, 4)}, v{base} offset:{o & 0xffff} ; @{tag}")
        return out


def r_setup(a, opt):
    for s, p in ((sWv, P_WV), (sWq, P_WQ), (sWk, P_WK), (sWo, P_WO)):
        a(f"""
        s_mov_b32 s{s}, s{p}
        s_mov_b32 s{s+1}, s{p+1}
        s_mov_b32 s{s+2}, 0x400000
        s_mov_b32 s{s+3}, 0x20000
        """)
    a(f"""
    v_mov_b32 v12, v0
    v_lshrrev_b32 v13, 4, v12
    v_and_b32 v14, 15, v12
    v_lshlrev_b32 v{vL16}, 4, v12
    v_add_u32 v{vL16b}, 0x10000, v{vL16}
    v_add_u32 v{vL16c}, 0x20000, v{vL16}
    v_mov_b32 v{vKX}, v{vL16}
    v_bfe_u32 v15, v12, 1, 1
    v_mul_u32_u24 v15, 0xaaaa, v15
    v_add_u32 v{vIdx}, 0x4444, v15
    ; (c>>3)*32768 + (g>>1)*16384 + ((h>>1) ^ 8(g&1))*256 + (g&1)*128 + (c&7)*8
    v_and_b32 v15, 7, v14
    v_lshlrev_b32 v15, 3, v15
    v_lshrrev_b32 v16, 1, v13
    v_lshl_add_u32 v15, v16, 14, v15
    v_lshrrev_b32 v16, 3, v14
    v_lshl_add_u32 v15, v16, 15, v15
    v_and_b32 v16, 1, v13
    v_lshl_add_u32 v15, v16, 7, v15
    v_lshlrev_b32 v16, 3, v16
    s_lshr_b32 s{sTmp}, s{sH}, 1
    v_xor_b32 v16, s{sTmp}, v16
    v_lshl_add_u32 v{vPAst}, v16, 8, v15
    v_and_b32 v17, 3, v12
    v_lshlrev_b32 v15, 2, v17
    v_lshl_add_u32 v{vMBst}, v13, 4, v15
    v_lshrrev_b32 v15, 2, v14
    v_mul_u32_u24 v15, 136, v15
    v_lshl_add_u32 v15, v13, 3, v15
    v_lshl_add_u32 v{vQKw}, v17, 5, v15
    v_lshrrev_b32 v15, 1, v13
    v_mul_u32_u24 v15, 544, v15
    v_and_b32 v16, 1, v13
    v_mul_u32_u24 v16, 136, v16
    v_add_u32 v15, v15, v16
    v_lshl_add_u32 v{vQKr}, v14, 3, v15
    v_lshrrev_b32 v15, 2, v14
    v_and_b32 v16, 1, v14
    v_lshl_add_u32 v15, v15, 1, v16
    v_lshlrev_b32 v15, 4, v15
    v_lshl_add_u32 v{vO}, v13, 7, v15
    v_lshrrev_b32 v15, 3, v12
    v_and_b32 v16, 7, v12
    v_lshlrev_b32 v16, 4, v16
    v_lshl_add_u32 v{vG}, v15, 8, v16
    """)
    a(f"""
    v_mov_b32 v16, 0x3f80
    v_bfe_u32 v15, v14, 2, 1
    v_lshlrev_b32 v15, 4, v15
    v_lshlrev_b32 v16, v15, v16
    v_and_b32 v15, 11, v14
    """)
    for q in range(4):
        a(f"""
        v_cmp_eq_u32 vcc, {8 * (q & 1) + (q >> 1)}, v15
        s_nop 1
        v_cndmask_b32 v{20+q}, 0, v16, vcc
        """)
    a(f"ds_write_b128 v{vL16}, v[20:23] offset:{L_SEL}")
    a(f"""
    s_and_b32 s{sTmp}, s{sW}, 1
    s_lshl_b32 s{sTmp}, s{sTmp}, 2
    v_and_b32 v15, 1, v13
    v_or_b32 v15, s{sTmp}, v15
    v_lshlrev_b32 v15, 1, v15
    v_xor_b32 v15, v15, v14
    v_lshlrev_b32 v15, 4, v15
    v_lshl_add_u32 v15, v13, 13, v15
    s_lshr_b32 s{sTmp}, s{sW}, 1
    s_lshl_b32 s{sTmp}, s{sTmp}, 20
    s_and_b32 s{sTmp2}, s{sW}, 1
    s_lshl_b32 s{sTmp2}, s{sTmp2}, 17
    s_add_u32 s{sTmp}, s{sTmp}, s{sTmp2}
    s_lshl_b32 s{sTmp2}, s{sH}, 8
    s_add_u32 s{sTmp}, s{sTmp}, s{sTmp2}
    v_add_u32 v24, s{sTmp}, v15
    v_and_b32 v15, 1, v13
    v_lshlrev_b32 v15, 2, v15
    v_xor_b32 v15, v15, v14
    v_lshlrev_b32 v15, 4, v15
    v_lshl_add_u32 v15, v13, 10, v15
    s_lshl_b32 s{sTmp}, s{sW}, 8
    s_lshl_b32 s{sTmp2}, s{sH}, 17
    s_add_u32 s{sTmp}, s{sTmp}, s{sTmp2}
    v_add_u32 v25, s{sTmp}, v15
    ; lane fields: v15 = x (bit 2), v16 = p (bit 3), v18 = g&1, v19 = g>>1, v17 = cc
    v_bfe_u32 v15, v12, 2, 1
    v_bfe_u32 v16, v12, 3, 1
    v_and_b32 v18, 1, v13
    v_lshrrev_b32 v19, 1, v13
    v_lshl_add_u32 v28, v16, 1, v18
    v_lshl_add_u32 v29, v28, 1, v15
    v_lshl_add_u32 v28, v13, 2, v15
    v_lshl_add_u32 v28, v16, 4, v28
    s_lshl_b32 s{sTmp}, s{sW}, 1
    v_xor_b32 v29, s{sTmp}, v29
    v_lshlrev_b32 v29, 5, v29
    v_lshl_add_u32 v29, v28, 8, v29
    v_lshl_add_u32 v26, v17, 3, v29
    v_lshl_add_u32 v28, v19, 2, v15
    v_lshlrev_b32 v28, 8, v28
    v_lshl_add_u32 v28, v18, 14, v28
    v_lshl_add_u32 v29, v18, 1, v15
    v_lshl_add_u32 v28, v29, 6, v28
    v_lshl_add_u32 v28, v16, 5, v28
    v_lshl_add_u32 v28, v17, 3, v28
    s_lshl_b32 s{sTmp}, s{sW}, 12
    v_add_u32 v27, s{sTmp}, v28
    """)
    a(f"""
    s_lshl_b32 s{sMX}, s{sW}, 11
    s_lshl_b32 s{sTmp}, s{sH}, 6
    s_add_u32 s{sMX}, s{sMX}, s{sTmp}
    s_add_u32 s{sMX}, s{sMX}, {WS_MEMX}
    s_and_b32 s{sTmp}, s{sTmp}, 64
    s_lshr_b32 s{sMBw}, s{sH}, 1
    s_lshl_b32 s{sMBw}, s{sMBw}, 8
    s_add_u32 s{sMBw}, s{sMBw}, s{sTmp}
    s_lshr_b32 s{sTmp2}, s{sW}, 1
    s_lshl_b32 s{sMBr}, s{sTmp2}, 12
    s_add_u32 s{sMBw}, s{sMBw}, s{sMBr}
    s_xor_b32 s{sMBr}, s{sTmp2}, 1
    s_lshl_b32 s{sMBr}, s{sMBr}, 7
    s_and_b32 s{sTmp2}, s{sW}, 1
    s_lshl_b32 s{sTmp2}, s{sTmp2}, 7
    s_add_u32 s{sMBw}, s{sMBw}, s{sTmp2}
    s_add_u32 s{sMBw}, s{sMBw}, {opt.get('mb', WS_MB)}
    s_lshl_b32 s{sTmp2}, s{sTmp2}, 4
    s_add_u32 s{sMBr}, s{sMBr}, s{sTmp2}
    s_add_u32 s{sMBr}, s{sMBr}, {opt.get('mb', WS_MB)}
    s_add_u32 s{sMBl}, s{sMBr}, 0x1000
    s_lshl_b32 s{sPAw}, s{sW}, 16
    s_add_u32 s{sPAw}, s{sPAw}, s{sTmp}
    s_add_u32 s{sPAw}, s{sPAw}, {opt.get('pa', WS_PA)}
    s_lshr_b32 s{sPAr}, s{sH}, 1
    s_lshl_b32 s{sPAr}, s{sPAr}, 14
    s_lshl_b32 s{sTmp}, s{sTmp}, 1
    s_add_u32 s{sPAr}, s{sPAr}, s{sTmp}
    s_lshl_b32 s{sTmp}, s{sW}, 12
    s_add_u32 s{sPAr}, s{sPAr}, s{sTmp}
    s_add_u32 s{sPAr}, s{sPAr}, {opt.get('pa', WS_PA) + (0 if opt.get('pa1') else 0x40000)}
    s_lshl_b32 s{sTmp}, s{sW}, 11
    s_mul_i32 s{sKV}, s{sH}, {KV_HEAD}
    s_add_u32 s{sKV}, s{sKV}, s{sTmp}
    s_add_u32 s{sKV}, s{sKV}, {WS_KV}
    s_lshl_b32 s{sM0}, s{sW}, 11
    s_mov_b32 s{sC}, {hex(C_EXP)}
    """)
    if opt.get("rk"):
        a(f"""
    s_lshl_b32 s{sHUr}, s{sW}, 8
    s_add_u32 s{sHUr}, s{sHUr}, {WS_HU}
    s_lshl_b32 s{sHUw}, s{sH}, 2
    s_add_u32 s{sHUw}, s{sHUw}, s{sHUr}
        """)
    a(f"""
    s_mov_b32 s{sStep}, {opt.get('first', 0)}
    s_add_u32 s{sKV}, s{sKV}, {opt.get('first', 0) * 0x4000}
    s_add_u32 s{sMX}, s{sMX}, {opt.get('first', 0) * 0x2000}
    """)


def dma_chunk(w, c):
    out = []
    slot = c % 8
    for i in range(4):
        if c < 24:
            srd = [sWk, sWv, sWq][c >> 3]
            so = (256 * (c & 1) + 32 * ((c & 7) >> 1) + 4 * i) * 8192
            m0 = L_W + slot * 16384 + (16 * w + 4 * i) * 256
            vo = [24, 15][i & 1]
        else:
            srd = sWo
            so = (16 * (c - 24) + 4 * i) * 1024
            m0 = L_W + slot * 16384 + w * 4096 + 4 * i * 256
            vo = 25 if (c & 1) == 0 else 30
        out += [f"s_mov_b32 m0, {m0}", f"s_mov_b32 s{sTmp}, {so}",
                f"buffer_load_dwordx4 v{vo}, s[{srd}:{srd+3}], s{sTmp} offen lds ; @c{c}"]
    return out


def spin(a, name, load, chk, cond_ok):
    a(f"s_mov_b32 s{sTO}, 0")
    a.label(name)
    a(load)
    a(f"s_waitcnt vmcnt(0)")
    a(chk)
    a(f"""
    {cond_ok} {name}_ok
    s_add_u32 s{sTO}, s{sTO}, 1
    s_cmp_lt_u32 s{sTO}, {SPIN_MAX}
    s_cbranch_scc1 {name}
    s_branch L_END
    """)
    a.label(name + "_ok")


def sspin(a, name, load, chk):
    a(f"s_mov_b32 s{sTO}, 0")
    a.label(name)
    a(load)
    a("s_waitcnt lgkmcnt(0)")
    a(chk)
    a(f"""
    s_cbranch_scc1 {name}_ok
    s_sleep 4
    s_add_u32 s{sTO}, s{sTO}, 1
    s_cmp_lt_u32 s{sTO}, {SPIN_MAX}
    s_cbranch_scc1 {name}
    s_branch L_END
    """)
    a.label(name + "_ok")


def r_startup(w, pl, opt):
    a = Asm()
    X = Asm()
    WSR = f"s[{sWS}:{sWS+3}]"
    inv = {pl.name_abs(f): f for f in pl.qk + pl.v + pl.o}
    temps = [32 + 8 * i for i in range(12)]
    pending = []
    a("v_xor_b32 v30, 0x80, v25\nv_xor_b32 v15, 0x40, v24\nv_mov_b32 v31, v27")
    pl_ate = opt.get("palate", 0)

    def pa_init(r):
        a(f"""
        v_mov_b64 {vr(r,2)}, 0
        v_mov_b64 {vr(r+2,2)}, 0
        s_xor_b32 s{sTmp}, s{sPAr}, 0x40000
        buffer_store_dwordx4 {vr(r,4)}, v{vG}, {WSR}, s{sPAr} offen
        buffer_store_dwordx4 {vr(r,4)}, v{vG}, {WSR}, s{sPAr} offen offset:2048
        buffer_store_dwordx4 {vr(r,4)}, v{vG}, {WSR}, s{sTmp} offen
        buffer_store_dwordx4 {vr(r,4)}, v{vG}, {WSR}, s{sTmp} offen offset:2048
        s_nop 0
        """)

    def poison():
        a(f"""
        v_mov_b32 v{vNeg}, -1
        s_xor_b32 s{sTmp2}, s{sMBw}, 0x2000
        buffer_store_dword v{vNeg}, v{vMBst}, {WSR}, s{sMBw} offen
        buffer_store_dword v{vNeg}, v{vMBst}, {WSR}, s{sTmp2} offen
        """)
        if opt.get("rk"):
            a(f"v_mov_b32 v20, 0\nbuffer_store_dword v20, off, {WSR}, s{sHUw}")
        if not pl_ate:
            pa_init(20)
    if opt.get("mark0"):
        a("s_memrealtime s[96:97]\ns_waitcnt lgkmcnt(0)\ns_mov_b32 s94, s96")
        a(f"s_waitcnt vmcnt({opt['mark0']-1})\ns_memrealtime s[96:97]\ns_waitcnt lgkmcnt(0)\ns_mov_b32 s95, s96")
    pz = opt.get("pz", -1)
    hinit = opt.get("hinit") and not opt.get("r_only")
    if pz < 0 and not hinit:
        poison()
    for c in range(8):
        a("\n".join(dma_chunk(w, c)))
    a(f"""
    s_mov_b32 s72, s{P_MEM0}
    s_mov_b32 s73, s{P_MEM0+1}
    s_mov_b32 s74, 8192
    s_mov_b32 s75, 0x20000
    s_and_b32 s{sTmp}, s{sH}, 3
    s_lshl_b32 s{sTmp}, s{sTmp}, 11
    s_lshr_b32 s{sTmp2}, s{sH}, 3
    s_lshl_b32 s{sTmp2}, s{sTmp2}, 8
    s_add_u32 s{sTmp}, s{sTmp}, s{sTmp2}
    s_and_b32 s{sTmp2}, s{sH}, 4
    s_lshl_b32 s{sTmp2}, s{sTmp2}, 2
    s_add_u32 s{sTmp}, s{sTmp}, s{sTmp2}
    v_and_b32 v28, 1, v13
    v_lshlrev_b32 v28, 10, v28
    v_lshl_add_u32 v28, v17, 2, v28
    v_lshrrev_b32 v29, 1, v13
    v_lshl_add_u32 v28, v29, 5, v28
    buffer_load_dword v{vPub}, v28, s[72:75], s{sTmp} offen offset:{64 * w}
    s_lshl_b32 s{sFL}, s{sH}, 10
    s_add_u32 s{sFL}, s{sFL}, {WS_FL_KV + 4 * w}
    s_add_u32 s{sNeed}, s{sFL}, {62 * 16}
    s_add_u32 s{sFL}, s{sFL}, {16 * opt.get('first', 0)}
    """)
    def mk(c):
        for k, x in enumerate(opt.get("markr", [])):
            if x == c:
                a(f"s_memrealtime s[96:97]\ns_waitcnt lgkmcnt(0)\ns_mov_b32 s{94 + k}, s96")
    mk(-1)
    for c in range(24):
        a(f"WAITV c{c}\ns_barrier")
        mk(c)
        th = opt.get("thr")
        if th and th[0] <= c <= th[1]:
            a(f"s_and_b32 s{sTmp}, s{sH}, 3\ns_cmp_eq_u32 s{sTmp}, 1\ns_cbranch_scc1 R{w}_th{c}\nTHR {th[2]}\nR{w}_th{c}:")
        if 1 <= c and c + 7 < 32:
            a("\n".join(dma_chunk(w, c + 7)))
        zl = f"global_load_dword v{vFlag}, v16, s[{P_DBG}:{P_DBG+1}] sc1"
        if c == opt.get('goc', (12, 20))[0] and not opt.get("r_only"):
            a(f"v_mov_b32 v16, {DBG_GO}\n" + zl)
        if c == opt.get('goc', (12, 20))[1] and not opt.get("r_only"):
            a(f"v_cmp_eq_u32 vcc, 0, v{vFlag}\ns_cbranch_vccnz R{w}_reg\nR{w}_regok:")
            X(f"R{w}_reg:")
            spin(X, f"R{w}_reg2", zl, f"v_cmp_eq_u32 vcc, 0, v{vFlag}", "s_cbranch_vccz")
            X(f"s_branch R{w}_regok")
        fl = f"buffer_load_dword v17, off, {WSR}, s{sFL} offset:16 sc1\nbuffer_load_dword v16, off, {WSR}, s{sFL} sc1"
        tl = f"global_load_dword v14, v12, s[{P_DBG}:{P_DBG+1}] sc1"
        if c == opt.get("flc", 21):
            a(("" if hinit else f"v_mov_b32 v12, {DBG_TEAM}\n" + tl + "\n") + fl + " ; @fl")
        if c in opt.get("pfc2", []):
            a(f"""
            s_getpc_b64 s[80:81]
            R{w}_pc{c}:
            v_lshlrev_b32 v20, 3, v{vL16}
            v_add_u32 v20, {opt.get("pfc2o", 2048)}, v20
            v_min_u32 v20, L_LAST-R{w}_pc{c}, v20
            global_load_dword v21, v20, s[80:81]
            """)
        if c == pz:
            poison()
        if c == (1 if pz < 0 else pz + 9) and w == 0 and not hinit:
            a(f"s_mov_b32 s78, 1\ns_atomic_add s78, s[{P_DBG}:{P_DBG+1}], {DBG_TEAM}")
        a(f"v_add_u32 v28, {L_W + (c % 8) * 16384}, v26\nv_xor_b32 v29, 32, v28")
        for t in range(2):
            f = inv[("KVQ"[c >> 3], c & 7, t)]
            if f in pl.reg:
                dst = pl.reg[f]
            else:
                dst = ("v", temps.pop(0))
                pending.append((f, dst[1]))
            for u in range(4):
                z, y = u >> 1, u & 1
                a(f"ds_read_b64_tr_b16 {vr((dst[0], dst[1] + 2 * u), 2)}, v{28 + t} offset:{(32 * z + 2 * y) * 256}")
        a("s_waitcnt lgkmcnt(0)")
    a("s_barrier")
    a("\n".join(dma_chunk(w, 31)))
    if hinit and opt.get("pub0") and not opt.get("first"):
        a(f"v_min_u32 v{vPub}, -2, v{vPub}\nbuffer_store_dword v{vPub}, v{vMBst}, {WSR}, s{sMBw} offen{opt.get('st', '')}")
    a(f"""
    s_add_u32 s{sTmp}, s{sMBw}, 0x2000
    buffer_load_dword v15, v{vMBst}, {WSR}, s{sMBw} offen sc1
    buffer_load_dword v15, v{vMBst}, {WSR}, s{sTmp} offen sc1
    """)
    if opt.get("touch2"):
        a(f"""
        s_add_u32 s{sTmp}, s{sMBw}, 0x4000
        buffer_load_dword v15, v{vMBst}, {WSR}, s{sTmp} offen sc1
        s_add_u32 s{sTmp}, s{sMBw}, 0x6000
        buffer_load_dword v15, v{vMBst}, {WSR}, s{sTmp} offen sc1
        buffer_load_dword v15, v{vMBst}, {WSR}, s{sMX} offen sc1
        {f"buffer_load_dword v15, off, {WSR}, s{sHUr} sc1" if opt.get("rk") else ""}
        """)
    t3 = f"""
        s_xor_b32 s{sTmp}, s{sPAr}, 0x40000
        buffer_load_dword v15, v{vG}, {WSR}, s{sTmp} offen sc1
        buffer_load_dword v15, v{vG}, {WSR}, s{sTmp} offen offset:2048 sc1
        buffer_load_dword v15, v{vG}, {WSR}, s{sPAr} offen sc1
        buffer_load_dword v15, v{vG}, {WSR}, s{sPAr} offen offset:2048 sc1
        """
    if opt.get("pa1"):
        t3 = "\n".join(t3.strip().split("\n")[3:])
    if opt.get("touch3") == 1:
        a(t3)
    if pl_ate == 1:
        pa_init(20)
    nslot = 0
    for kap in range(4):
        ml = f"buffer_load_dword v{vPub}, v{vMBst}, {WSR}, s{sMX} offen sc1"
        if kap == 3 and opt.get("first"):
            a(ml)
        mk(24 + 2 * kap)
        a(f"WAITV c{25 + 2 * kap}")
        mk(25 + 2 * kap)
        if kap == pl_ate - 2:
            pa_init(20)
        if kap == 2:
            a(f"WAITV fl\nv_cmp_eq_u32 vcc, 0, v16\ns_cbranch_vccnz R{w}_kv0\nR{w}_kv0ok:")
            X(f"R{w}_kv0:")
            spin(X, f"R{w}_kv02", fl, "v_cmp_eq_u32 vcc, 0, v16", "s_cbranch_vccz")
            X(f"s_branch R{w}_kv0ok")
            a(f"""
            s_add_u32 s{sFL}, s{sFL}, 16
            s_add_u32 s{sKV2}, s{sKV}, 0x2000
            s_mov_b32 m0, s{sM0}
            v_mov_b32 v{vFlag}, v17
            buffer_load_dwordx4 v{vL16}, {WSR}, s{sKV} offen sc1 lds
            buffer_load_dwordx4 v{vL16}, {WSR}, s{sKV} offen offset:1024 sc1 lds
            buffer_load_dwordx4 {vr(vVX,4)}, v{vL16}, {WSR}, s{sKV2} offen sc1
            buffer_load_dwordx4 {vr(vVX+4,4)}, v{vL16}, {WSR}, s{sKV2} offen offset:1024 sc1
            s_add_u32 s{sKV}, s{sKV}, 0x4000
            s_add_u32 s{sKV2}, s{sKV}, 0x2000
            s_xor_b32 s{sM0}, s{sM0}, 0x2000
            """)
            if opt.get("touch3") == 2:
                a(t3)
        for sl in range(4):
            f = inv[("O", kap, sl)]
            if f in pl.reg:
                dst = pl.reg[f]
            else:
                dst = ("v", temps.pop(0))
                pending.append((f, dst[1]))
            a(f"v_xor_b32 v28, {sl * 64}, v31\nv_add_u32 v28, {L_W + 2 * kap * 16384}, v28")
            for u in range(4):
                z, y = u >> 1, u & 1
                a(f"ds_read_b64_tr_b16 {vr((dst[0], dst[1] + 2 * u), 2)}, v28 offset:{(8 * z + 2 * y) * 256}")
        a("s_waitcnt lgkmcnt(0)")
        while pending and nslot < 4 * kap + 4:
            f, r = pending.pop(0)
            pl.ldsn[f] = nslot
            off = L_W + (nslot >> 1) * 16384 + w * 4096 + (nslot & 1) * 2048
            for hlf in range(2):
                o = off + hlf * 1024
                a(f"ds_write_b128 v{[vL16, vL16b, vL16c][o >> 16]}, {vr(r + 4 * hlf, 4)} offset:{o & 0xffff}")
            temps.append(r)
            nslot += 1
        a("s_waitcnt lgkmcnt(0)")
    assert not pending and nslot == 16
    a(f"""
    {"" if opt.get("first") else f"v_min_u32 v{vPub}, -2, v{vPub}"}
    s_waitcnt vmcnt(0)
    {f"v_cmp_eq_u32 vcc, -1, v{vPub}" if opt.get("first") else "v_cmp_ne_u32 vcc, 32, v14"}
    s_mov_b32 m0, {L_MEM + w*1024 + (4096 if opt.get('dmaL') else 0)}
    """)
    for k in range(0, 8, 2):
        a(f"v_mov_b64 {vr(vVXn+k,2)}, {vr(vVX+k,2)}")
    mk(32)
    if not hinit:
        a(f"s_cbranch_vccnz R{w}_team\nR{w}_teamok:")
        X(f"R{w}_team:")
        spin(X, f"R{w}_team2", tl, "v_cmp_ne_u32 vcc, 32, v14", "s_cbranch_vccz")
        X(f"s_branch R{w}_teamok")
    if opt.get("first"):
        assert hinit
        a(f"s_cbranch_vccnz R{w}_m0\nR{w}_m0ok:")
        X(f"R{w}_m0:")
        spin(X, f"R{w}_m02", ml, f"v_cmp_eq_u32 vcc, -1, v{vPub}", "s_cbranch_vccz")
        X(f"s_branch R{w}_m0ok")
    pl.side = X.lines
    return [re.sub(r"^THR (\d+)", r"s_waitcnt vmcnt(\1)", x) for x in resolve_waits(a.lines)]


def check8(r, t0, t1):
    return [f"v_max3_u32 v{t0}, v{r}, v{r+1}, v{r+2}", f"v_max3_u32 v{t1}, v{r+3}, v{r+4}, v{r+5}",
            f"v_max3_u32 v{t0}, v{t0}, v{r+6}, v{r+7}", f"v_max_u32 v{t0}, v{t0}, v{t1}",
            f"v_cmp_eq_u32 vcc, -1, v{t0}"]


def nops(n):
    out = []
    while n > 0:
        k = min(n, 16)
        out.append(f"s_nop {k-1}")
        n -= k
    return out


def stamp(opt, k):
    if opt.get("stamps"):
        return [f"s_memtime s[{72+2*k}:{73+2*k}]"]
    return []


def r_loop(w, pl, opt):
    WSR = f"s[{sWS}:{sWS+3}]"
    L = []
    X = []
    n = f"R{w}"
    acc = {("K", 0): aK0, ("Q", 0): aQ0, ("K", 1): aK1, ("Q", 1): aQ1, ("V", 0): aV0, ("V", 1): aV1}
    cnt = lambda r, k=1: [f"s_add_u32 s{r}, s{r}, {k}"] if opt.get("stamps") and not opt.get("raw") else []
    bail = lambda lab: [f"s_add_u32 s{sTO}, s{sTO}, 1", f"s_cmp_lt_u32 s{sTO}, {SPIN_MAX}", f"s_cbranch_scc1 {lab}", "s_branch L_END"]
    par = lambda name, dflt: opt.get(name, dflt)[w]

    def sm(d, aop, b):
        return f"{SM} {vr(d,4)}, {vr(aop,4)}, {vr(b,8)}, v{vIdx}"

    def cv(d, r):
        return f"v_cvt_pk_bf16_f32 v{d}, v{r}, v{r+1}"

    def add(r):
        return f"v_add_f32 v{r}, v{r}, v{r+2}"

    def zero(r):
        return f"v_mov_b64 {vr(r,2)}, 0"

    def take(lst, k):
        out = []
        while k > 0 and lst:
            out.append(lst.pop(0))
            k -= 0 if out[-1].endswith(":") else 1
        return out + [x + " ; back-off" for x in nops(k)]

    memE, memL = vMemA, vMemA + 16
    Pa, Sel, Rd, C0, C1, C2 = 40, 12, 64, 16, (17 if not opt.get('trace') else 63), 18
    wacc = [116, 120, 80, 124]
    hold = par("hold", [0, 0, 0, 0])
    assert hold <= 2
    st2 = lambda sl: f"buffer_store_dwordx2 {vr(wacc[sl],2)}, v{vPAst}, {WSR}, s{sP[sl]} offen{opt.get('st', '')}"
    held = [st2(sl) for sl in range(4 - hold, 4)]
    iv = [zero(aK0 + k) for k in range(0, 24, 2) if aK0 + k != 80] + [zero(126)]
    idle2 = [f"s_xor_b32 s{sP[2]}, s{sP[2]}, 0x40000", f"s_xor_b32 s{sP[3]}, s{sP[3]}, 0x40000", zero(80), zero(124)]
    il = [f"ds_read_b128 {vr(Sel,4)}, v{vL16} offset:{L_SEL}"]
    for k in range(4):
        il += pl.lds_read(pl.qk[k], vSt + 8 * k, f"st{k}")
    isc = [f"s_xor_b32 s{sP[k]}, s{sP[k]}, 0x40000" for k in range(2)]
    isc += [f"s_add_u32 s{sMX}, s{sMX}, 0x2000", f"s_add_u32 s{sKV}, s{sKV}, 0x4000", f"s_add_u32 s{sKV2}, s{sKV}, 0x2000",
            f"s_xor_b32 s{sM0}, s{sM0}, 0x2000", f"s_mov_b32 m0, {L_MEM + w*1024 + (4096 if opt.get('dmaL') else 0)}"]
    idle = []
    if opt.get("idg"):
        for k, x in enumerate(iv):
            idle += [x] + isc[k:k + 1]
        for k in range(4):
            idle[4 + 6 * k:4 + 6 * k] = il[1 + 2 * k:3 + 2 * k]
        idle.insert(0, il[0] + " ; @sel")
    else:
        for k, x in enumerate(il + isc):
            idle += [x] + iv[k:k + 1]
    if opt.get("stept"):
        idle += ["s_memrealtime s[76:77]"]
    idle += ["s_waitcnt lgkmcnt(0)"]
    for k, x in enumerate(opt.get("stept", [])):
        idle += [f"s_cmp_eq_u32 s{sStep}, {x}", f"s_cselect_b32 s{94+k}, s76, s{94+k}"]
    if opt.get("raw"):
        idle += [f"s_cmp_eq_u32 s26, {opt['raw']}", "s_cselect_b32 s36, s92, s36", "s_cselect_b32 s37, s90, s37"]
        for k in range(9):
            idle += [f"s_cselect_b32 s{38+k}, s{72+2*k}, s{38+k}"]
        idle += ["s_mov_b32 s92, s88"]
    elif opt.get("trace"):
        idle += [f"v_writelane_b32 v17, s{72+2*k}, {k}" for k in range(10)]
        idle += [f"s_lshl_b32 s67, s{sH}, 2", f"s_add_u32 s67, s67, {w}", "s_lshl_b32 s67, s67, 6", f"s_add_u32 s67, s67, s{sStep}",
                 "s_lshl_b32 s67, s67, 10", f"s_add_u32 s67, s67, {WS_ACT}", "s_mov_b32 s36, s67"]
    elif opt.get("stamps"):
        idle += ["s_sub_u32 s67, s72, s90", "s_add_u32 s36, s36, s67"]
        for k in range(8):
            idle += [f"s_sub_u32 s67, s{74+2*k}, s{72+2*k}", f"s_add_u32 s{37+k}, s{37+k}, s67"]
        idle += ["s_sub_u32 s67, s90, s92", "s_cmp_gt_u32 s26, 1", "s_cselect_b32 s67, s67, 0", "s_add_u32 s45, s45, s67", "s_mov_b32 s92, s88"]
    pollA = lambda k: [f"buffer_load_dwordx4 {vr(Pa+8*k,4)}, v{vG}, {WSR}, s{sPAr} offen sc1 ; @pa{k}0",
                       f"buffer_load_dwordx4 {vr(Pa+8*k+4,4)}, v{vG}, {WSR}, s{sPAr} offen offset:2048 sc1 ; @pa{k}1"]
    pollE = [f"buffer_load_dwordx4 {vr(memE,4)}, v{vG}, {WSR}, s{sMBr} offen sc1 ; @pe"]
    pollL = [f"buffer_load_dwordx4 {vr(memL,4)}, v{vG}, {WSR}, s{sMBl} offen sc1 ; @pl"]
    rk = opt.get("rk") if par("rkon", [1, 1, 1, 1]) else None
    depA = par("depA", [1, 1, 1, 1])
    early = par("earlyE", [0, 0, 0, 0])
    L += [f"{n}_loop:"] + (["s_barrier"] if opt.get("barS", 1) else []) + (["s_waitcnt vmcnt(0)"] if opt.get("ackA") else [])
    hafter = 1 if hold and w < opt.get("hsplit", 2) else 0
    if not hafter:
        L += (take(idle, par("dH", [0, 0, 0, 0])) if hold else []) + held
        idle[0:0] = idle2
    hpos = min(opt.get("hpos", 9), depA - 1)
    for k in range(depA):
        L += take(idle, par("gapA", [16, 16, 16, 16]) if k else par("dA", [0, 0, 0, 0]))
        if k == 0 and rk:
            L += [f"s_cbranch_vccnz {n}_rk", f"{n}_rkok:"]
            X += [f"{n}_rk:"] + cnt(47, 0x10000) + take([], par("rkx", [4, 4, 4, 4]))
            if len(rk) > 2:
                X += [f"s_cmp_eq_u64 s[{sRk}:{sRk+1}], 0", f"s_cbranch_scc1 {n}_rkok"] + take([], par("rky", [12, 12, 12, 12]))
            X += [f"s_branch {n}_rkok"]
        L += pollA(k)
        if hafter and k == hpos:
            L += take(idle, par("dH", [0, 0, 0, 0])) + held
            idle[0:0] = idle2
    if early:
        L += take(idle, par("dE", [0, 0, 0, 0])) + pollE
    idn = par("idn", [99, 99, 99, 99])
    keep = lambda x: x.startswith("s_") and not x.startswith("s_waitcnt")
    L += idle[:idn] + [x for x in idle[idn:] if keep(x)]
    after = [x for x in idle[idn:] if not keep(x)]
    if after:
        assert opt.get("idg") and not any("@sel" in x for x in after) and not opt.get("stamps")
        L += ["WAITL sel"]
    ne = lambda d, r: f"v_bitop3_b32 v{d}, v{r}, v{r+1}, s{sTag} bitop3:0x7e"

    def rung(k, young):
        P = Pa + 8 * k
        out = [f"s_waitcnt vmcnt({young+1})", f"{D32} {vr(Rd,4)}, {vr(Sel,4)}, {vr(P,4)}, 0", ne(C0, P), ne(C1, P + 2),
               f"s_waitcnt vmcnt({young})"] + stamp(opt, 9)
        out += [f"{D32} {vr(Rd,4)}, {vr(Sel,4)}, {vr(P+4,4)}, {vr(Rd,4)}", ne(C2, P + 4), f"v_or3_b32 v{C0}, v{C0}, v{C1}, v{C2}",
                ne(C1, P + 6), f"v_bitop3_b32 v{C0}, v{C0}, v{C1}, 1 bitop3:0xa8", f"v_cmp_ne_u32 vcc, 0, v{C0}", "s_nop 1"]
        for rot in (4, 8):
            for q in range(2):
                out.append(f"v_add_f32_dpp v{Rd+q}, v{Rd+q}, v{Rd+q} row_ror:{rot} row_mask:0xf bank_mask:0xf")
            if rot == 4:
                out.append("s_nop 0")
        return out + [cv(vPub, Rd)]
    L += rung(0, 2 * (depA - 1) + early + hafter * hold) + [f"s_cbranch_vccnz {n}_pa1", f"{n}_pub:", f"buffer_store_dword v{vPub}, v{vMBst}, {WSR}, s{sMBw} offen{opt.get('st', '')}", f"{n}_pub2:"] + stamp(opt, 0)
    X += [f"{n}_pa1:"]
    for k in range(1, depA):
        X += cnt(46, 0x10000) + pollA(k - 1) + rung(k, 2 * (depA - 1) + early + (hafter * hold if k <= hpos else 0)) + [f"s_cbranch_vccz {n}_pub"]
    X += [f"{n}_par:"]
    for k in range(depA):
        X += cnt(46) + pollA((k - 1) % depA) + rung(k, 2 * (depA - 1)) + [f"s_cbranch_vccz {n}_pub"]
    X += bail(f"{n}_par")
    HX = check_hazards(rung(0, 0) + rung(0, 0), name=n)
    assert not HX, HX
    mx = f"buffer_store_dword v{vPub}, v{vMBst}, {WSR}, s{sMX} offen sc1"
    X += [f"{n}_last:", mx, "s_branch R_DONE"]
    top = [f"s_cmp_eq_u32 s{sStep}, {opt.get('last', 63)}", f"s_cbranch_scc1 {n}_last", f"v_cmp_eq_u32 vcc, 0, v{vFlag}"]
    top += [f"v_mov_b64 {vr(vVX+k,2)}, {vr(vVXn+k,2)}" for k in range(0, 8, 2)]
    top += [f"s_xor_b32 s{sMBp}, s{sMBw}, 0x4000", f"s_add_u32 s{sMBw}, s{sMBw}, 0x2000", f"s_bitset0_b32 s{sMBw}, 15", f"s_xor_b32 s{sPAr}, s{sPAr}, 0x40000", f"s_mov_b32 s{sTO}, 0",
            f"s_cbranch_vccnz {n}_flag", f"{n}_flagok:",
            f"s_add_u32 s{sTmp}, s{sStep}, {(2 - opt.get('first', 0)) % 4}", f"s_lshr_b32 s{sTag}, s{sTmp}, 1",
            f"s_add_u32 s{sFL}, s{sFL}, 16", f"s_min_u32 s{sFL}, s{sFL}, s{sNeed}", f"s_add_u32 s{sStep}, s{sStep}, 1"]
    top += after
    X += [f"{n}_flag:"] + (["s_add_u32 s92, s92, 1"] if opt.get("dbgout") else []) + [f"buffer_load_dword v{vFlag}, off, {WSR}, s{sFL} sc1", "s_waitcnt vmcnt(0)",
          f"v_cmp_eq_u32 vcc, 0, v{vFlag}", f"s_cbranch_vccz {n}_flagok"] + bail(f"{n}_flag")
    ck4 = lambda r: [f"v_max3_u32 v{C0}, v{r}, v{r+1}, v{r+2}", f"v_max_u32 v{C0}, v{C0}, v{r+3}", f"v_cmp_eq_u32 vcc, -1, v{C0}"]
    we = f"ds_write_b128 v{vL16}, {vr(memE,4)} offset:{L_MEM + w*1024}"
    dep = par("dep", [3, 3, 3, 3])
    dual = par("dual", [0, 0, 0, 0])
    gapE = par("gapE", [16, 16, 16, 16])
    nl = 2 if dual else 1
    look = pollE + ([f"buffer_load_dwordx4 v{vG}, {WSR}, s{sMBr} offen sc1 lds"] if dual else [])
    assert not (dual and early)
    L += take(top, par("dE", [0, 0, 0, 0]) if not early else par("dL", [0, 0, 0, 0]))
    to = [f"s_add_u32 s{sTO}, s{sTO}, 1", f"s_cmp_ge_u32 s{sTO}, {SPIN_MAX}", "s_cbranch_scc1 L_END"]

    def attempt(k):
        return [f"s_waitcnt vmcnt({k + nl - 1})"] + stamp(opt, 1) + ck4(memE) + ([f"s_waitcnt vmcnt({k})"] if dual else [we])
    preL = par("preL", [0, 0, 0, 0])
    if opt.get("dmaL"):
        assert not dual
        pollL = pollL + [f"buffer_load_dwordx4 v{vG}, {WSR}, s{sMBl} offen sc1 lds ; @pm"]
    wf = par("wfirst", [0, 0, 0, 0])
    if wf:
        assert not (dual or early or preL) and depA <= 2 and dep >= 2
        R1 = 56
        look1 = [f"buffer_load_dwordx4 {vr(R1,4)}, v{vG}, {WSR}, s{sMBr} offen sc1"]
        for k in range(dep):
            L += (look1 if k else look) + (take(top, gapE) if k < dep - 1 else top)
        L += [f"s_waitcnt vmcnt({dep-1})"] + stamp(opt, 1) + [we] + ck4(memE) + [f"{n}_peok:"]
        again = [f"s_waitcnt vmcnt({dep-1})"] + stamp(opt, 1) + ck4(R1) + [we.replace(vr(memE, 4), vr(R1, 4)),
                 f"v_mov_b64 {vr(memE,2)}, {vr(R1,2)}", f"v_mov_b64 {vr(memE+2,2)}, {vr(R1+2,2)}", "s_nop 0", f"s_cbranch_vccz {n}_peok"]
        X += [f"{n}_pe1:"] + cnt(47) + look1 + again[:-4] + ["s_nop 0"] * (wf == 1) + [zero(aK0 + 2 * k) for k in range(2 * wf)] + again[-4:]
        for k in range(2, dep):
            X += cnt(47) + look1 + again
        X += [f"{n}_pe2:"] + cnt(47) + look1 + to + again + [f"s_branch {n}_pe2"]
    elif opt.get("ladder"):
        npost = dep - (1 if early else 0)
        for k in range(npost):
            L += look + (take(top, gapE) if k < npost - 1 else [])
        nL = len(pollL) if preL else 0
        L += (take(top, preL) + pollL if preL else []) + top
        L += attempt(nl * (dep - 1) + (1 if early else 0) + nL) + [f"s_cbranch_vccnz {n}_pe1", f"{n}_peok:"]
        ok = f"{n}_peok2" if preL else f"{n}_peok"
        X += [f"{n}_pe1:"]
        for k in range(1, dep):
            X += cnt(47) + look + attempt(nl * (dep - 1) + nL) + [f"s_cbranch_vccz {ok}"]
        X += [f"{n}_pe2:"] + cnt(47) + look + to + attempt(nl * (dep - 1)) + [f"s_cbranch_vccz {ok}", f"s_branch {n}_pe2"]
        if preL:
            X += [f"{ok}:"] + pollL + [f"s_branch {n}_peok"]
    else:
        for k in range(dep - 1 - (1 if early else 0)):
            L += look + take(top, gapE)
        L += top
        if early:
            L += look + attempt(dep) + [f"s_cbranch_vccz {n}_peok"]
        L += [f"{n}_pe:"] + look + cnt(47) + to + attempt(nl * (dep - 1)) + [f"s_cbranch_vccnz {n}_pe", f"{n}_peok:"]
    V = [sm(acc[("V", f[2])], vMemA + 4 * f[1], pl.reg[f]) for f in pl.v]
    main = []
    for p, f in enumerate(pl.qk):
        b = pl.reg[f] if f in pl.reg else vSt + 8 * (pl.qk_lds_pos.index(p) % 4)
        main.append(sm(acc[(f[0], f[2])], vMemA + 4 * f[1], b))
    vf = opt.get("vfill", 0)
    assert 0 <= vf <= 5
    main[16:16] = V[2:2 + vf]
    main[4:4] = V[:2]
    V = V[:2] + V[2 + vf:] + ["NOP"] * vf
    fm = {p: [] for p in range(-1, 34 + vf)}
    fv = {p: [] for p in range(-1, 34 + vf)}
    pos = lambda q: q + 2 + (vf if q >= 16 else 0)
    pa_ = par("barA", [2, 2, 2, 2])
    pl_ = par("posL", [11, 11, 11, 11])
    pb_ = opt.get("barB", 16)
    dmaL = opt.get("dmaL", 0)
    fm[pa_] += ["s_waitcnt lgkmcnt(0)", "s_barrier"] + stamp(opt, 2)
    for b in (1, 2, 3):
        fm[pa_ + (b - 1) // 2].append(f"ds_read_b128 {vr(vMemA+4*b,4)}, v{vL16} offset:{L_MEM + ((w+b)%4)*1024} ; @ma{b}")
    rdl = lambda b: f"ds_read_b128 {vr(vMemA+4*b,4)}, v{vL16} offset:{L_MEM + 4096 + ((w+b)%4)*1024} ; @ma{b}"
    pp_ = par("posP", [0, 0, 0, 0])
    assert 0 <= pa_ <= 3 and pa_ < pl_ and pl_ + 3 - dmaL < pb_ <= 17 + vf and pp_ < pl_
    if not preL:
        fm[pp_][0:0] = pollL
    if wf:
        assert pp_ >= wf - 1 and pa_ >= wf - 1
        fm[wf - 1].insert(0, f"s_cbranch_vccnz {n}_pe1")
    free = [p for p in range(4, 15) if p != pl_ and p != pp_]
    for k in range(4):
        rd = pl.lds_read(pl.qk[pl.qk_lds_pos[4 + k]], vSt + 8 * k, f"su{k}")
        fm[free[2 * k]].append(rd[0])
        fm[free[2 * k + 1]].append(rd[1])
    for b in (1, 2, 3):
        fm[1 + 4 * b].append(f"WAITL ma{b}")
    ck = ck4(memL)
    wl = [] if dmaL else [f"ds_write_b128 v{vL16}, {vr(memL,4)} offset:{L_MEM + 4096 + w*1024} ; @lw"]
    fm[pl_] += ["WAITV pl"] + wl
    for k in range(3):
        fv[pl_ + 1 - dmaL + k].append(ck[k])
    if dmaL:
        fm[pb_ - 1] += ["WAITV pm"] + (["WAITL su3"] if pb_ >= 16 else [])
    fm[pb_] += [f"s_cbranch_vccnz {n}_plr", f"{n}_plok:"] + ([] if dmaL else ["WAITL lw"]) + ["s_barrier", rdl(5)]
    mL = f"s_mov_b32 m0, {L_MEM + 4096 + w*1024}"
    X += [f"{n}_plr:", mL, "s_nop 0"] + pollL + cnt(47, 0x10000) + [f"s_mov_b32 m0, s{sM0}", "s_waitcnt vmcnt(0)"] + wl + ck + ["s_waitcnt lgkmcnt(0)", f"s_cbranch_vccz {n}_plok"] + bail(f"{n}_plr")
    fm[pb_ + 1] += [rdl(6), rdl(7)]
    fm[pp_ + 1].insert(0, f"s_mov_b32 m0, s{sM0}")
    for k in range(4):
        fm[pos(pl.qk_lds_pos[4 + k]) - 1].append(f"WAITL su{k}")
    kvl = [f"buffer_load_dwordx4 v{vL16}, {WSR}, s{sKV} offen sc1 lds",
           f"buffer_load_dwordx4 v{vL16}, {WSR}, s{sKV} offen offset:1024 sc1 lds",
           f"buffer_load_dwordx4 {vr(vVXn,4)}, v{vL16}, {WSR}, s{sKV2} offen sc1",
           f"buffer_load_dwordx4 {vr(vVXn+4,4)}, v{vL16}, {WSR}, s{sKV2} offen offset:1024 sc1",
           f"buffer_load_dword v{vFlag}, off, {WSR}, s{sFL} sc1",
           f"buffer_store_dword v{vNeg}, v{vMBst}, {WSR}, s{sMBp} offen{opt.get('st', '')}", mx]
    if opt.get("nokv"):
        kvl[0:4] = ["s_nop 0"] * 4
    if opt.get("trace"):
        kvl[6] = f"buffer_store_dword v17, v{vL16}, {WSR}, s36 offen"
    kvp = [x + par("kvoff", [0, 0, 0, 0]) for x in opt.get("kvpos", [20, 22, 25, 28, 21, 23, 31])]
    if opt.get("kvw"):
        kvp = opt["kvw"][w]
    later = {}
    for k, g in enumerate(kvl):
        assert kvp[k] + vf > max(3, max(opt.get("posP", [0])) + 1) and kvp[k] < 48
        if kvp[k] < 34:
            fm[kvp[k] + vf].insert(0, g)
        else:
            later.setdefault(kvp[k] + vf, []).append(g)
    for b in (5, 6, 7):
        fm[16 + vf + b].append(f"WAITL ma{b}")
    Tq = 92
    kx = {(0, 0): 104, (1, 0): 108, (0, 1): 112, (1, 1): 116, (0, 2): 120, (0, 3): 80, (1, 2): 104, (1, 3): 108}

    def kxr(t, i):
        return f"ds_read_b128 {vr(kx[(t,i)],4)}, v{vKX} offset:{L_KX + ((w+i)%4)*2048 + t*1024} ; @kx{t}{i}"
    for p, (t, i) in zip([24, 26, 27, 29, 30], [(0, 0), (1, 0), (0, 1), (1, 1), (0, 2)]):
        fm[p + vf].append(kxr(t, i))
    for k, x in enumerate([add(aK0), add(aK0 + 1), cv(Tq, aK0), add(aQ0), add(aQ0 + 1), cv(Tq + 1, aQ0), add(aK1), add(aK1 + 1)]):
        fv[26 + vf + k].append(x)
    fm[32 + vf].append(f"ds_write_b64 v{vQKw}, {vr(Tq,2)} offset:{L_QK + w*1088}")
    L += weave(main, {p: fm[p] + fv[p] for p in fm}) + stamp(opt, 3)
    qk = [vQKown, 92, 96, 100]

    def qkr(i, y):
        return f"ds_read_b64_tr_b16 {vr(qk[i]+2*y,2)}, v{vQKr} offset:{L_QK + ((w+i)%4)*1088 + y*272} ; @qk{i}"
    L += [V[2], f"s_add_u32 s{sMBr}, s{sMBr}, 0x2000", f"s_bitset0_b32 s{sMBr}, 15", cv(Tq + 2, aK1), f"s_add_u32 s{sMBl}, s{sMBr}, 0x1000",
          add(aQ1), add(aQ1 + 1), cv(Tq + 3, aQ1),
          f"ds_write_b64 v{vQKw}, {vr(Tq+2,2)} offset:{L_QK + w*1088 + 544} ; @qw",
          qkr(0, 0), qkr(0, 1), V[3]] + ([] if opt.get("kxlate") else [kxr(0, 3)]) + [V[4], V[5]]
    e1 = opt.get("e1", 1)
    assert 0 <= e1 <= 2
    L += V[6:6 + e1] + ["WAITL qw", "s_barrier"] + stamp(opt, 4) + [qkr(1, 0), qkr(1, 1)] + V[6 + e1:8] + [qkr(2, 0)]
    Sx0, Sx1, Sm = 68, 72, 76
    T0, T1, T2 = 78, 79, 96

    def smm(d, aop, i):
        return f"{D32} {vr(d,4)}, {vr(aop,4)}, {vr(qk[i],4)}, " + ("0" if i == 0 else vr(d, 4))
    Px, Pm, One, Oa, La = 104, 108, 112, 92, 100
    Op, oA = 84, [88, 68, 72, 76]
    L += ["WAITL qk0", smm(Sm, qk[0], 0), qkr(2, 1), qkr(3, 0), smm(Sx0, kx[(0, 0)], 0), qkr(3, 1), kxr(1, 2), smm(Sx1, kx[(1, 0)], 0),
          kxr(0, 3) if opt.get("kxlate") else kxr(1, 3), "WAITL qk1", smm(Sm, qk[1], 1), kxr(1, 3) if opt.get("kxlate") else "SO", smm(Sx0, kx[(0, 1)], 1),
          f"v_mov_b64 {vr(One,2)}, s[{s01}:{s01+1}]" if opt.get("pack", 0) else f"v_mov_b64 {vr(One,2)}, s[{sOnes}:{sOnes+1}]",
          f"v_mov_b64 {vr(One+2,2)}, s[{sOnes}:{sOnes+1}]",
          smm(Sx1, kx[(1, 1)], 1), "WAITL qk3", zero(wacc[0]), zero(wacc[0] + 2),
          ]
    merge = lambda d, r: f"v_cndmask_b32_dpp v{d}, v{r}, v{d}, vcc quad_perm:[2,3,2,3] row_mask:0xf bank_mask:0xf"
    ml_ = opt.get("mlast", 0)
    Tx = vQKown
    if ml_:
        assert opt.get("pack") and not opt.get("kxlate")
        L += [smm(Sx0, kx[(0, 2)], 2), f"s_mov_b64 vcc, s[{sMaskQ}:{sMaskQ+1}]", zero(wacc[1]), zero(wacc[1] + 2),
              smm(Sx0, kx[(0, 3)], 3), "WAITL kx13", zero(wacc[2]), zero(wacc[2] + 2),
              smm(Sx1, kx[(1, 2)], 2), f"v_xor_b32 v{vKX}, 0x2000, v{vKX}", f"v_mov_b32 v{vVMh}, s{sC}",
              smm(Sx1, kx[(1, 3)], 3), f"v_max3_f32 v{Tx}, v{Sx0}, v{Sx0+1}, v{Sx0+2}", f"v_mov_b32 v{Pm+1}, 0",
              smm(Sm, qk[2], 2), f"v_max_f32 v{Tx}, v{Tx}, v{Sx0+3}", f"v_mov_b32 v{Pm+2}, 0",
              smm(Sm, qk[3], 3)] + stamp(opt, 5)
    else:
        L += [
              smm(Sm, qk[2], 2), "SO", f"v_xor_b32 v{vKX}, 0x2000, v{vKX}", smm(Sm, qk[3], 3), "SO", f"v_mov_b32 v{vVMh}, s{sC}" if opt.get("pack", 0) else "NOP2",
              smm(Sx0, kx[(0, 2)], 2), "WAITL kx03", zero(wacc[1]), zero(wacc[1] + 2),
              smm(Sx0, kx[(0, 3)], 3), "WAITL kx13", zero(wacc[2]), zero(wacc[2] + 2),
              smm(Sx1, kx[(1, 2)], 2)]
        if opt.get("pack", 0):
            L += [f"s_mov_b64 vcc, s[{sMaskQ}:{sMaskQ+1}]", f"v_max_f32 v{T0}, v{Sm}, v{Sm+1}", merge(Sm, Sm + 1)]
        else:
            L += ["SO", f"v_max_f32 v{T0}, v{Sm}, v{Sm+1}"]
        L += [smm(Sx1, kx[(1, 3)], 3)] + stamp(opt, 5)
    so = []
    for k in range(4):
        so += pl.lds_read(pl.o[k], vMemA + 8 * k, f"so{k}")

    def fma(r):
        return f"v_fma_f32 v{r}, v{r}, s{sC}, -v{T0}"

    def ex(r):
        return f"v_exp_f32 v{r}, v{r}"
    if ml_:
        L += [f"v_max3_f32 v{Tx}, v{Tx}, v{Sx1}, v{Sx1+1}", f"v_max3_f32 v{Tx}, v{Tx}, v{Sx1+2}, v{Sx1+3}",
              V[8], "SO", merge(Sx0, Sx1), merge(Sx0 + 1, Sx1 + 1),
              f"v_max3_f32 v{T1}, v{Tx}, v{Sm}, v{Sm+1}", f"v_max3_f32 v{T2}, v{Tx}, v{Sm}, v{Sm+1}"]
    else:
        L += [f"v_max3_f32 v{T0}, v{T0}, v{Sx0}, v{Sx0+1}", f"v_max3_f32 v{T0}, v{T0}, v{Sx0+2}, v{Sx0+3}",
              V[8], "SO", f"v_mov_b32 v{Pm+1}, 0", f"v_mov_b32 v{Pm+2}, 0",
              f"v_max3_f32 v{T0}, v{T0}, v{Sx1}, v{Sx1+1}",
              f"v_max3_f32 v{T1}, v{T0}, v{Sx1+2}, v{Sx1+3}", f"v_max3_f32 v{T2}, v{T0}, v{Sx1+2}, v{Sx1+3}"]
    L += [V[9], "SO", f"v_permlane16_swap_b32 v{T1}, v{T2}",
          f"v_max_f32 v{T0}, v{T1}, v{T2}", f"v_max_f32 v{T1}, v{T1}, v{T2}",
          V[10], "SO", f"v_permlane32_swap_b32 v{T0}, v{T1}", f"v_max_f32 v{T0}, v{T0}, v{T1}",
          V[11], "SO"]
    pk = opt.get("pack", 0)
    vepi = [add(aV0), add(aV0 + 1), add(aV1), add(aV1 + 1), cv(vVMh, aV0), cv(vVMh + 1, aV1)]
    if not pk:
        L += [f"v_mul_f32 v{T0}, s{sC}, v{T0}",
              V[12], "SO", fma(Sm), V[13], "SO", fma(Sm + 1), V[14], "SO", fma(Sx0), V[15], "SO", fma(Sx0 + 1),
              ex(Sm), ex(Sm + 1), fma(Sx0 + 2), fma(Sx0 + 3), cv(Pm, Sm), cv(Pm + 3, Sm)] + vepi
    dn = opt.get("dnorm", 0)

    def mul(r, q=0):
        return f"v_mul_f32 v{r}, v{La+q}, v{r}"

    def pmul(r):
        return f"v_pk_mul_f32 {vr(r,2)}, {vr(r,2)}, {vr(La,2)} op_sel_hi:[1,0]"
    ow = [f"s_mov_b64 exec, s[{sMaskQ}:{sMaskQ+1}]", f"ds_write_b128 v{vO}, {vr(Op,4)} offset:{L_O + w*512} ; @ow", "s_mov_b64 exec, -1"]
    dup = [f"v_mov_b32_dpp v{oA[0]+q}, v{Op+q} quad_perm:[2,3,2,3] row_mask:0xf bank_mask:0xf" for q in range(4)]
    if pk:
        assert not dn
        back = lambda d, r: f"v_mov_b32_dpp v{d}, v{r} quad_perm:[0,1,0,1] row_mask:0xf bank_mask:0xf"
        padd = lambda r: f"v_pk_add_f32 {vr(r,2)}, {vr(r,2)}, {vr(r+2,2)}"
        pfma = lambda r: f"v_pk_fma_f32 {vr(r,2)}, {vr(r,2)}, s[{sC2}:{sC2+1}], {vr(T0,2)} op_sel_hi:[1,1,0] neg_lo:[0,0,1] neg_hi:[0,0,1]"
        La = Sx1
        L += [f"v_mul_f32_dpp v{T0}, v{T0}, v{vVMh} quad_perm:[2,3,2,3] row_mask:0xf bank_mask:0xf",
              ]
        if ml_:
            L += [V[12], "SO", merge(Sm, Sm + 1), V[13], "SO", merge(Sx0 + 2, Sx1 + 2), V[14], "SO", merge(Sx0 + 3, Sx1 + 3), V[15], "SO"]
        else:
            L += [V[12], "SO", merge(Sx0, Sx1), V[13], "SO", merge(Sx0 + 1, Sx1 + 1), V[14], "SO", merge(Sx0 + 2, Sx1 + 2),
                  V[15], "SO", merge(Sx0 + 3, Sx1 + 3)]
        L += [fma(Sm), ex(Sm), pfma(Sx0), pfma(Sx0 + 2), back(Sm + 1, Sm), padd(aV0), padd(aV1),
              cv(Pm, Sm), cv(Pm + 3, Sm)] + vepi[4:]
        L += [ex(Sx0), ex(Sx0 + 1), f"{D16} {vr(Oa,4)}, {vr(vVMh,2)}, {vr(Pm,2)}, 0", cv(Px, Sx0), ex(Sx0 + 2),
              f"{D16} {vr(Oa+4,4)}, {vr(vVMh,2)}, {vr(Pm+2,2)}, 0", ex(Sx0 + 3), f"v_cvt_pk_bf16_f32 v{Px-1}, v{Sm}, 0",
              cv(Px + 1, Sx0 + 2), back(Px + 2, Px), "s_nop 0",
              f"{D32} {vr(La,4)}, {vr(One,4)}, {vr(Px-2,4)}, 0", back(Px + 3, Px + 1), "s_nop 1",
              f"{D32} {vr(Oa,4)}, {vr(vVX,4)}, {vr(Px,4)}, {vr(Oa,4)}", "SO", "SO",
              f"{D32} {vr(Oa+4,4)}, {vr(vVX+4,4)}, {vr(Px,4)}, {vr(Oa+4,4)}", "SO"] + stamp(opt, 6)
        L += [f"v_add_f32_dpp v{La}, v{La}, v{La} quad_perm:[2,3,0,1] row_mask:0xf bank_mask:0xf", f"v_rcp_f32 v{La}, v{La}"]
        if opt.get("osplit", 0) == 1:
            L += [ow[0], mul(Oa), mul(Oa + 1), mul(Oa + 2), mul(Oa + 3), cv(Op, Oa), cv(Op + 1, Oa + 2),
                  f"ds_write_b64 v{vO}, {vr(Op,2)} offset:{L_O + w*512}", pmul(Oa + 4), pmul(Oa + 6), cv(Op + 2, Oa + 4), cv(Op + 3, Oa + 6),
                  f"ds_write_b64 v{vO}, {vr(Op+2,2)} offset:{L_O + w*512 + 8} ; @ow", ow[2]]
        elif opt.get("osplit", 0) == 2:
            L += ["s_nop 4"] + [merge(Oa + q, Oa + 4 + q) for q in range(4)] + [pmul(Oa), pmul(Oa + 2), cv(Op, Oa), cv(Op + 1, Oa + 2),
                  f"ds_write_b64 v{vVMh+1}, {vr(Op,2)} offset:{L_O + w*512} ; @ow"]
            dup = [f"v_mov_b32_dpp v{oA[0]+q}, v{Op+(q&1)} quad_perm:[{'2,3,2,3' if q < 2 else '0,1,0,1'}] row_mask:0xf bank_mask:0xf" for q in range(4)]
            L[L.index("s_nop 4")] = f"v_cndmask_b32 v{vVMh+1}, 8, {0}, vcc".replace(", 0, vcc", f", v{Pm+1}, vcc")
            L.insert(L.index(merge(Oa, Oa + 4)), f"v_add_u32 v{vVMh+1}, v{vVMh+1}, v{vO}")
            L.insert(L.index(merge(Oa, Oa + 4)), "s_nop 1")
        else:
            L += ["s_nop 0", mul(Oa), mul(Oa + 1), mul(Oa + 2), mul(Oa + 3), pmul(Oa + 4), pmul(Oa + 6),
                  cv(Op, Oa), cv(Op + 1, Oa + 2), cv(Op + 2, Oa + 4), cv(Op + 3, Oa + 6)] + ow
        L += dup + ["WAITL so3", "s_nop 0"]
    elif not dn:
        L += [f"{D16} {vr(La,4)}, {vr(One,2)}, {vr(Pm,2)}, 0", ex(Sx0), fma(Sx1),
              f"{D16} {vr(Oa,4)}, {vr(vVMh,2)}, {vr(Pm,2)}, 0", ex(Sx0 + 1), fma(Sx1 + 1),
              f"{D16} {vr(Oa+4,4)}, {vr(vVMh,2)}, {vr(Pm+2,2)}, 0", fma(Sx1 + 2), fma(Sx1 + 3),
              ex(Sx0 + 2), ex(Sx0 + 3), ex(Sx1), ex(Sx1 + 1), ex(Sx1 + 2), ex(Sx1 + 3),
              cv(Px, Sx0), cv(Px + 1, Sx0 + 2), cv(Px + 2, Sx1), cv(Px + 3, Sx1 + 2), "s_nop 1",
              f"{D32} {vr(La,4)}, {vr(One,4)}, {vr(Px,4)}, {vr(La,4)}", "SO", "SO",
              f"{D32} {vr(Oa,4)}, {vr(vVX,4)}, {vr(Px,4)}, {vr(Oa,4)}", "SO", "SO",
              f"{D32} {vr(Oa+4,4)}, {vr(vVX+4,4)}, {vr(Px,4)}, {vr(Oa+4,4)}"] + stamp(opt, 6)
        L += [f"v_rcp_f32 v{La}, v{La}", "s_nop 1", mul(Oa), mul(Oa + 1), mul(Oa + 2), mul(Oa + 3), pmul(Oa + 4), pmul(Oa + 6),
              cv(Op, Oa), cv(Op + 1, Oa + 2), cv(Op + 2, Oa + 4), cv(Op + 3, Oa + 6)] + ow + dup + ["WAITL so3", "s_nop 0"]
    else:
        L += [ex(Sx0), fma(Sx1), f"{D16} {vr(Oa,4)}, {vr(vVMh,2)}, {vr(Pm,2)}, 0", ex(Sx0 + 1), fma(Sx1 + 1),
              f"{D16} {vr(Oa+4,4)}, {vr(vVMh,2)}, {vr(Pm+2,2)}, 0", fma(Sx1 + 2), fma(Sx1 + 3),
              ex(Sx0 + 2), ex(Sx0 + 3), ex(Sx1), ex(Sx1 + 1), ex(Sx1 + 2), ex(Sx1 + 3),
              cv(Px, Sx0), cv(Px + 1, Sx0 + 2), cv(Px + 2, Sx1), cv(Px + 3, Sx1 + 2), "s_nop 1",
              f"{D32} {vr(Oa,4)}, {vr(vVX,4)}, {vr(Px,4)}, {vr(Oa,4)}", "SO", "SO",
              f"{D32} {vr(Oa+4,4)}, {vr(vVX+4,4)}, {vr(Px,4)}, {vr(Oa+4,4)}"] + stamp(opt, 6)
        L += ["SO", "SO", f"{D16} {vr(La,4)}, {vr(Pm,2)}, {vr(One,2)}, 0", cv(Op, Oa), cv(Op + 1, Oa + 2), "s_nop 1",
              cv(Op + 2, Oa + 4), cv(Op + 3, Oa + 6)] + ow + [f"{D32} {vr(La,4)}, {vr(Px,4)}, {vr(One,4)}, {vr(La,4)}"] + dup + ["WAITL so3", "s_nop 0"]
    if rk:
        ev = [f"buffer_store_dword v{vKX}, off, {WSR}, s{sHUw}{opt.get('st', '')}", f"buffer_load_dword v15, v14, {WSR}, s{sHUr} offen sc1 ; @rk",
              f"buffer_load_dword v13, v14, {WSR}, s{sHUr} offen sc1 ; @rk"]
        for p, x in zip(rk, ev):
            k = L.index(V[p])
            assert L[k + 1] == "SO" and V[p] != "NOP"
            L[k + 1] = x
        k = L.index(smm(Sx0, kx[(0, 1)], 1))
        L.insert(k, f"v_bfe_u32 v14, v{vL16}, 2, 7")
    for i, x in enumerate(L):
        if x == "SO":
            r = vMemA + 4 * (8 - len(so))
            busy = not so or L[i - 1] == "NOP" or any(y.startswith(SM) and f", {vr(r,4)}, " in y for y in L[i:])
            L[i] = "NOP2" if busy else so.pop(0)
    assert not so
    main = []
    for p, f in enumerate(pl.o):
        b = pl.reg[f] if f in pl.reg else vMemA + 8 * (pl.o_lds_pos.index(p) % 4)
        main.append(sm(wacc[f[2]], oA[f[1]], b))
    fill = {p: [] for p in range(-1, 16)}
    po = opt.get("barpos2", 0)
    assert 0 <= po <= 2
    fill[po] += ["WAITL ow", "s_barrier"] + stamp(opt, 7)
    for i in (1, 2, 3):
        fill[po].append(f"ds_read_b128 {vr(oA[i],4)}, v{vO} offset:{L_O + ((w+i)%4)*512} ; @oa{i}")
    for k in range(4):
        rd = pl.lds_read(pl.o[pl.o_lds_pos[4 + k]], vMemA + 8 * k, f"sp{k}")
        fill[[1, 3, 5, 6][k]].append(rd[0])
        fill[[2, 4, 6, 7][k]].append(rd[1])
    fill[10].append("WAITL sp3")
    for i in (1, 2, 3):
        fill[2 + i].append(f"WAITL oa{i}")

    def out(sl):
        r = wacc[sl]
        sc = [] if not dn else [mul(r + q, 2 + (q & 1)) for q in range(4)] if sl < 3 else \
            [f"v_pk_mul_f32 {vr(r+q,2)}, {vr(r+q,2)}, {vr(La+2,2)}" for q in (0, 2)]
        return sc + [cv(r, r), cv(r + 1, r + 2), f"v_bfi_b32 v{r}, 1, s{sTag}, v{r}", f"v_bfi_b32 v{r+1}, 1, s{sTag}, v{r+1}",
                     st2(sl) if sl < 4 - hold else "s_nop 0"]
    if dn:
        fill[1].append(f"v_rcp_f32 v{La+2}, v{La+2}")
        fill[2].append(f"v_rcp_f32 v{La+3}, v{La+3}")
    wp = opt.get("wpos", [8, 8, 8, 8, 9, 11, 11, 11, 11, 12, 14, 14, 14, 14, 15])
    tail = []
    for sl in range(3):
        o = out(sl)
        p = wp[5 * sl:5 * sl + 5]
        assert p == sorted(p) and p[0] >= 7 + 3 * sl and p[4] <= 16
        if p[0] == 7 + 3 * sl:
            fill[p[0]] += nops(4 - len([x for x in fill[p[0]] if not x.startswith("WAIT")]))
        fill[min(p[0], 15)] += o[:-5]
        for q, x in zip(p, o[-5:]):
            if q == 16:
                tail.append(x)
            elif x.startswith("v_") or q == p[3]:
                fill[q].append(x)
            else:
                fill[q].insert(0, x)
    if rk:
        tail += ["WAITV rk", f"v_bitop3_b32 v15, v15, v{vKX}, s{s2k} bitop3:0x28"]
        if len(rk) > 2:
            tail += [f"v_bitop3_b32 v13, v13, v{vKX}, s{s2k} bitop3:0x28", f"v_cmp_ne_u32 s[{sRk}:{sRk+1}], 0, v13"]
        tail += ["v_cmp_ne_u32 vcc, 0, v15"]
    body = weave(main, fill) + tail
    for k in range(8):
        if not check_hazards([x for x in body[-24:] if not x.startswith("WAIT")] + nops(k) + out(3)):
            break
    L += body + nops(k) + out(3) + stamp(opt, 8) + [f"s_branch {n}_loop"]
    if opt.get("pa1"):
        L = ["s_nop 0" if x.endswith(", 0x40000") else x for x in L]
        k = L.index(f"s_lshr_b32 s{sTag}, s{sTmp}, 1")
        L[k - 1:k + 1] = [f"s_add_u32 s{sTag}, s{sStep}, {(1 - opt.get('first', 0)) % 2}", "s_nop 0"] if L[k - 1].startswith(f"s_add_u32 s{sTmp}") else None
    L = [x for x in L if x not in ("NOP", "NOP2")]
    i0 = L.index(f"{n}_peok:")
    mf = [i for i in range(i0, len(L)) if L[i].startswith("v_smfmac") or L[i].startswith("v_mfma")]
    for p in sorted(later, reverse=True):
        L[mf[p] + 1:mf[p] + 1] = later[p]
    if opt.get("fine"):
        L = [x for x in L if not any(x == stamp(opt, k)[0] for k in range(3, 8))]
        i0 = L.index(f"{n}_peok:")
        mf = [i for i in range(i0, len(L)) if L[i].startswith("v_smfmac") or L[i].startswith("v_mfma")]
        for k, p in reversed(list(enumerate(opt["fine"]))):
            L.insert(mf[p] + 1, stamp(opt, 3 + k)[0])
    if opt.get("nocheck"):
        L = [x for x in L if not (x.startswith("s_cbranch_vccnz") and ("_pa1" in x or "_pe1" in x or "_plr" in x))]
    for pat in opt.get("drop", []):
        L = [x for x in L if x.startswith("s_") or x.endswith(":") or not re.search(pat, x)]
    assert f"s_cbranch_scc1 {n}_last" in L and f"s_add_u32 s{sStep}, s{sStep}, 1" in L and f"s_cmp_eq_u32 s{sStep}, {opt.get('last', 63)}" in L
    L = resolve_waits(L)
    if opt.get("al8"):
        L = align8(L)
    errs = check_hazards(L + L[:60], name=n) if not (opt.get("nocheck") or opt.get("drop")) else []
    for e in errs:
        print("HAZARD", e)
    assert not errs
    return L, X, iv + idle2[2:] + il + [f"v_mov_b64 {vr(memE,2)}, -1", f"v_mov_b64 {vr(memE+2,2)}, -1", f"v_mov_b32 v{vNeg}, -1"]


sMaskQ, sOnes, sTag, sMBp, sC2, s01, sRk, s2k = 14, 16, 18, 19, 12, 20, 22, 11
sP = [sPAw, 8, 9, 10]
sG = [50, 52, 54]


SLOW = dict(st=" sc1", mb=WS_MB2, pa=WS_PA2, first=0, touch2=0, touch3=0, pfc2=[], hold=[0] * 4, dH=[0] * 4, depA=[1] * 4, dep=[1] * 4,
            dA=[40] * 4, dE=[20] * 4, idg=0, idn=[99] * 4, diag=0, stamps=0, markr=[], stept=[], dbgout=0, ackA=1, flc=23, goc=(14, 22))


def role_s(a, opt):
    o = dict(opt)
    o.update(SLOW)
    o.update(opt.get("slow", {}))
    o["last"] = opt["first"]
    b = Asm()
    role_r(b, o)
    assert b.lines.pop() == "s_branch L_END"
    a.label("ROLE_S0")
    a(f"""
    s_mov_b32 s84, s{sH}
    s_sub_u32 s{sTmp}, s{sXCC}, 1
    s_lshl_b32 s{sTmp}, s{sTmp}, 3
    s_and_b32 s{sH}, s{sH}, 7
    s_add_u32 s{sH}, s{sH}, s{sTmp}
    """)
    a.lines += [re.sub(r"\bR([0-3]_|_DONE)", r"S\1", x).replace("ROLE_R", "ROLE_S") for x in b.lines]
    if opt.get("diag") and opt.get("marks"):
        a("s_memrealtime s[96:97]\ns_waitcnt lgkmcnt(0)\ns_mov_b32 s91, s96")
    a(f"""
    s_waitcnt vmcnt(0) lgkmcnt(0)
    s_barrier
    s_mov_b32 s{sH}, s84
    v_lshrrev_b32 v0, 4, v{vL16}
    s_branch ROLE_FU
    """)


def role_r(a, opt):
    a.label("ROLE_R")
    r_setup(a, opt)
    for w in (1, 2, 3):
        a(f"s_cmp_eq_u32 s{sW}, {w}\ns_cbranch_scc1 R{w}_start")
    for w in range(4):
        pl = Plan(w)
        a.label(f"R{w}_start")
        st = r_startup(w, pl, opt)
        for e in check_hazards(st, timeaware=False, name=f"R{w}start"):
            print("HAZARD", e)
        a.lines += st
        a(f"""
        s_add_u32 s{sP[1]}, s{sPAw}, 0x1000
        s_add_u32 s{sP[2]}, s{sPAw}, 0x2000
        s_add_u32 s{sP[3]}, s{sPAw}, 0x3000
        s_mov_b32 s{s01}, 0
        {f"s_mov_b32 s{s2k}, 0x2000" if opt.get("rk") else ""}
        s_mov_b32 s{s01+1}, 0x3f803f80
        s_mov_b32 s{sC2}, s{sC}
        s_mov_b32 s{sC2+1}, s{sC}
        s_mov_b32 s{sMaskQ}, 0xcccccccc
        s_mov_b32 s{sMaskQ+1}, 0xcccccccc
        s_mov_b32 s{sOnes}, 0x3f803f80
        s_mov_b32 s{sOnes+1}, 0x3f803f80
        """)
        if opt.get("dbgout"):
            a("s_mov_b32 s92, 0")
        if opt.get('stamps'):
            for k in range(36, 50):
                a(f's_mov_b32 s{k}, 0')
            a('s_memtime s[90:91]')
            if opt.get("trace"):
                a(f"s_mov_b32 s36, {WS_XN + 0x180000}")
        if opt.get("diag"):
            a("s_memtime s[96:97]\ns_memrealtime s[98:99]\ns_waitcnt lgkmcnt(0)")
        L, X, idle = r_loop(w, pl, opt)
        a.lines += idle
        done0 = opt.get("hinit") and opt.get("pub0") and not opt.get("r_only") and not opt.get("first")
        a(f"s_waitcnt lgkmcnt(0)\ns_branch R{w}_pub{'2' if done0 else ''}")
        a(".p2align 6")
        a.lines += ["s_nop 0"] * (2 * opt.get("shift", [0] * 4)[w])
        if opt.get("alx"):
            for lab in ("pa1", "pe1"):
                X.insert(X.index(f"R{w}_{lab}:"), ".p2align 5")
        a.lines += L + X + pl.side
    a.label("R_DONE")
    if opt.get("wb"):
        a(f"s_cmp_lg_u32 s{sW}, 0\ns_cbranch_scc1 R_NOWB\ns_cmp_lg_u32 s{sH}, 0\ns_cbranch_scc1 R_NOWB\ns_waitcnt vmcnt(0)\nbuffer_wbl2 sc1\ns_waitcnt vmcnt(0)")
        a.label("R_NOWB")
    if opt.get("diag"):
        a(f"""
        s_memtime s[72:73]
        s_memrealtime s[74:75]
        s_waitcnt lgkmcnt(0)
        s_mov_b32 s49, s72
        s_sub_u32 s72, s72, s96
        s_mov_b32 s93, s72
        v_mov_b32 v20, s72
        v_mov_b32 v21, s100
        v_mov_b32 v22, s98
        v_mov_b32 v23, s74
        s_lshl_b32 s72, s{sH}, 2
        s_add_u32 s72, s72, s{sW}
        s_lshl_b32 s72, s72, 6
        s_add_u32 s72, s72, {WS_DIAG}
        buffer_store_dwordx4 v[20:23], off, s[{sWS}:{sWS+3}], s72
        """)
        if opt.get("raw"):
            a("s_mov_b32 s47, s49")
        for k in range(12):
            a(f"v_mov_b32 v{24+k}, s{36+k}")
        for k in range(3):
            a(f"buffer_store_dwordx4 v[{24+4*k}:{27+4*k}], off, s[{sWS}:{sWS+3}], s72 offset:{16+16*k}")
        if opt.get("raw") or opt.get("trace"):
            a("s_sleep 40\ns_add_u32 s72, s72, 0x2000")
            for k in range(8):
                a(f"s_memtime s[{36+4*k}:{37+4*k}]\ns_memrealtime s[{38+4*k}:{39+4*k}]")
            a("s_waitcnt lgkmcnt(0)")
            for k in range(16):
                a(f"v_mov_b32 v{40+k}, s{36+2*k}")
            for k in range(4):
                a(f"buffer_store_dwordx4 v[{40+4*k}:{43+4*k}], off, s[{sWS}:{sWS+3}], s72 offset:{16*k}")
    a("s_branch L_END")
```

```python
from asmlib import *
from layout import *

M32 = "v_mfma_f32_32x32x16_bf16"
M8 = "v_mfma_f32_32x32x8_bf16"
D32 = "v_mfma_f32_16x16x32_bf16"
WSR = f"s[{sWS}:{sWS+3}]"
sTO, sT0, sT1, sT2 = 35, 67, 68, 69


def cv(d, r):
    return f"v_cvt_pk_bf16_f32 v{d}, v{r}, v{r+1}"


def srd(a, s, p, nbytes):
    a(f"s_mov_b32 s{s}, s{p}\ns_mov_b32 s{s+1}, s{p+1}\ns_mov_b32 s{s+2}, {hex(nbytes)}\ns_mov_b32 s{s+3}, 0x20000")


def spin(a, name, load, chk, sleep=1):
    a(f"s_mov_b32 s{sTO}, 0")
    a.label(name)
    a(load)
    a("s_waitcnt vmcnt(0)")
    a(chk)
    a(f"s_cbranch_vccz {name}_ok")
    if sleep:
        a(f"s_sleep {sleep}")
    a(f"""
    s_add_u32 s{sTO}, s{sTO}, 1
    s_cmp_lt_u32 s{sTO}, {SPIN_MAX}
    s_cbranch_scc1 {name}
    s_branch L_END
    """)
    a.label(name + "_ok")


def mark(a, opt, k):
    if opt.get("diag"):
        a(f"s_memrealtime s[96:97]\ns_waitcnt lgkmcnt(0)\ns_mov_b32 s{94 + k}, s96")


def wacc(a, opt, sign, which=1):
    if opt.get("waitacc") == which:
        a(f"s_{'memtime' if opt.get('wcyc') else 'memrealtime'} s[96:97]\ns_waitcnt lgkmcnt(0)\ns_{'add' if sign > 0 else 'sub'}_u32 s93, s93, s96")
        if sign > 0:
            a("s_add_u32 s94, s93, s100")


def count_cleared(a, name):
    a(f"s_cmp_lg_u32 s{sW}, 1\ns_cbranch_scc1 {name}")
    a.lines += cleared(name)


def load_proj_weights(a, mats, rowbytes, scol, opt, name, hooks={}, base=0, R=8):
    L = Asm()
    L(f"""
    v_lshrrev_b32 v2, 4, v0
    v_and_b32 v3, 15, v0
    v_lshlrev_b32 v4, 2, v2
    v_xor_b32 v4, v4, v3
    v_lshlrev_b32 v4, 4, v4
    s_lshl_b32 s{sT0}, s{sW}, 4
    v_add_u32 v5, s{sT0}, v2
    v_mul_u32_u24 v5, {rowbytes}, v5
    v_add_u32 v4, v4, v5
    v_add_u32 v4, s{scol}, v4
    v_bfe_u32 v5, v0, 2, 2
    v_lshrrev_b32 v6, 5, v0
    v_lshl_add_u32 v6, v6, 3, v5
    v_lshlrev_b32 v6, 8, v6
    v_xor_b32 v5, s{sW}, v5
    v_lshl_add_u32 v6, v5, 6, v6
    v_bfe_u32 v5, v0, 4, 1
    v_lshl_add_u32 v6, v5, 5, v6
    v_and_b32 v5, 3, v0
    v_lshl_add_u32 v6, v5, 3, v6
    v_add_u32 v7, 0x10000, v6
    s_lshl_b32 s{sT2}, s{sW}, 12
    """)
    n = 8 * len(mats)

    def dma(c):
        s = mats[c >> 3][0]
        for i in range(4):
            L(f"""
            s_add_u32 m0, s{sT2}, {base + (c % R) * 16384 + i * 1024}
            s_mov_b32 s{sT0}, {(64 * (c & 7) + 4 * i) * rowbytes}
            buffer_load_dwordx4 v4, s[{s}:{s+3}], s{sT0} offen lds ; @c{c}
            """)
    for c in range(R):
        dma(c)
    for c in range(n):
        L(f"WAITV c{c}\ns_barrier")
        if opt.get("markc") == c:
            mark(L, opt, 1)
        if c >= 1 and c + R - 1 < n:
            dma(c + R - 1)
        L.lines += hooks.get(c, [])
        f, rb = mats[c >> 3][1]
        for kk in range(4):
            for y in range(2):
                o = base + (c % R) * 16384 + (16 * kk + 4 * y) * 256
                L(f"ds_read_b64_tr_b16 {vr((f, rb + 16 * (c & 7) + 4 * kk + 2 * y), 2)}, v{6 + (o >> 16)} offset:{o & 0xffff}")
        L("s_waitcnt lgkmcnt(0)")
        L.lines += hooks.get(c + 0.5, [])
    L("s_barrier")
    a.lines += resolve_waits(L.lines)


def xn_dma(a, sseg, sbuf):
    a(f"""
    s_lshl_b32 s{sT0}, s{sseg}, 15
    s_lshl_b32 s{sT1}, s{sW}, 13
    s_add_u32 s{sT0}, s{sT0}, s{sT1}
    s_add_u32 s{sT0}, s{sT0}, {WS_XN}
    s_add_u32 s{sT1}, s{sT1}, s{sbuf}
    """)
    for k in range(2):
        a(f"s_mov_b32 m0, s{sT1}\ns_nop 0")
        for i in range(4):
            a(f"buffer_load_dwordx4 v1, {WSR}, s{sT0} offen offset:{1024 * i} sc1 lds")
        if k == 0:
            a(f"s_add_u32 s{sT0}, s{sT0}, 0x1000\ns_add_u32 s{sT1}, s{sT1}, 0x1000")


def xn_weave(slots, first, step, sseg, sbuf):
    x = Asm()
    xn_dma(x, sseg, sbuf)
    k = first
    for ln in x.lines:
        slots[k].append(ln)
        if ln.startswith("buffer_load") or ln.startswith(f"s_add_u32 s{sT1}"):
            k += step if ln.startswith("buffer_load") else 1


def proj_gemm(a, vaddr, offs, frag, prods):
    L = []
    rd = lambda k: f"ds_read_b128 {vr(frag + 4 * (k % 4), 4)}, v{vaddr} offset:{offs(k)} ; @x{k}"
    for k in range(3):
        L.append(rd(k))
    for k in range(32):
        L.append(f"WAITL x{k}")
        for q, (acc, wb, isA) in enumerate(prods):
            wv, xv = vr((wb[0], wb[1] + 4 * k), 4), vr(frag + 4 * (k % 4), 4)
            aa, bb = (wv, xv) if isA else (xv, wv)
            L.append(f"{M32} {vr(acc,16)}, {aa}, {bb}, " + ("0" if k == 0 else vr(acc, 16)))
            if q == 0 and k + 3 < 32:
                L.append(rd(k + 3))
    a.lines += resolve_waits(L)


GOSLEEP = [4]


def wait_xn(a, name):
    a(f"v_mov_b32 v3, {DBG_GO}")
    spin(a, name, f"global_load_dword v4, v3, s[{P_DBG}:{P_DBG+1}] sc1", "v_cmp_eq_u32 vcc, 0, v4", sleep=GOSLEEP[0])


def wait_kv(a, name):
    wait_xn(a, name + "0")
    a(f"s_and_b32 s{sT0}, s{sH}, 31\ns_lshl_b32 s{sT0}, s{sT0}, 10")
    spin(a, name, f"buffer_load_dword v4, off, {WSR}, s{sT0} sc1", "v_cmp_eq_u32 vcc, 0, v4", sleep=8)


QL_XN, QL_ST, QL_MEM, QL_MASK, QL_SX = 0, 65536, 65536 + 73728, 65536 + 73728 + 8192, 65536 + 73728 + 8192 + 4096
QL_ZERO = QL_SX + 4096
NREP = 3


def flag_store(soff, vone):
    return ["s_mov_b64 exec, 1", f"buffer_store_dword v{vone}, off, {WSR}, s{soff} sc1", "s_mov_b64 exec, -1"]


def gemm_list(vaddr, offs, frag, prods, tag):
    rd = lambda k: f"ds_read_b128 {vr(frag + 4 * (k % 4), 4)}, v{vaddr} offset:{offs(k)} ; @{tag}{k}"
    slots = []
    for k in range(32):
        for q, (acc, wb, isA) in enumerate(prods):
            wv, xv = vr((wb[0], wb[1] + 4 * k), 4), vr(frag + 4 * (k % 4), 4)
            aa, bb = (wv, xv) if isA else (xv, wv)
            sl = [f"WAITL {tag}{k}"] if q == 0 else []
            sl.append(f"{M32} {vr(acc,16)}, {aa}, {bb}, " + ("0" if k == 0 else vr(acc, 16)))
            if q == 0 and k + 3 < 32:
                sl.append(rd(k + 3))
            slots.append(sl)
    return [rd(k) for k in range(3)], slots


def role_qa(a, opt):
    sHead, sRep, sSa, sSb, sBuf, sSegN, sSta, sStb, sKV, sFkv, sFo, sAct, sMx, sCn = 26, 27, 28, 29, 30, 31, 32, 33, 34, 64, 65, 66, 70, 71
    sPend, sCp = 72, 74
    vXa, vSt, vKst, vVst, vOst, vMa, vHi, vOne, vKw, vKr = 10, 11, 12, 13, 14, 15, 16, 17, 18, 19
    aK, aV, aQ, Fr, Pk = 32, 48, 64, 80, 96
    WK, WV, WQ = ("a", 0), ("a", 128), ("v", 128)
    GOSLEEP[0] = opt.get("gosleep", 4)
    a.label("ROLE_QA")
    srd(a, 8, P_WK, 0x400000)
    srd(a, 12, P_WV, 0x400000)
    srd(a, 16, P_WQ, 0x400000)
    ek = opt.get("earlykv", 0)
    qp = opt.get("qpf", -1) if ek else -1

    def band(sd, win=None):
        out = []
        for c in range(8):
            out += ([f"s_waitcnt vmcnt({win})"] if win is not None else []) + [f"s_mov_b32 s{sT0}, {(256 * (c & 1) + 32 * (c >> 1)) * 8192}", f"buffer_load_dwordx4 v[124:127], v31, s[{sd}:{sd+3}], s{sT0} offen"]
        return out
    a("v_mov_b32 v31, v13")
    for sd in [12, 16][:opt.get("pfq", 3) - 1]:
        if sd == 16 and qp >= 0:
            a(f"s_cmp_lt_u32 s{sH}, {8 * NREP}\ns_cbranch_scc1 QA_nopf")
        a(f"s_waitcnt vmcnt({opt.get('pfk', 2)})")
        a.lines += band(sd, opt.get("pfwin"))
    a.label("QA_nopf")
    a(f"""
    s_cmp_ge_u32 s{sH}, {8 * NREP}
    s_cbranch_scc1 {"ROLE_S0" if opt.get("first") else "ROLE_FU"}
    s_sub_u32 s{sHead}, s{sXCC}, 1
    s_lshl_b32 s{sHead}, s{sHead}, 3
    s_and_b32 s{sT0}, s{sH}, 7
    s_add_u32 s{sHead}, s{sHead}, s{sT0}
    s_lshr_b32 s{sRep}, s{sH}, 3
    v_lshlrev_b32 v1, 4, v0
    """)
    a(f"""
    v_lshrrev_b32 v2, 5, v0
    v_and_b32 v3, 31, v0
    v_lshlrev_b32 v4, 8, v2
    v_bfe_u32 v5, v3, 3, 1
    v_lshl_add_u32 v5, v5, 10, v4
    v_lshrrev_b32 v6, 4, v3
    v_lshl_add_u32 v5, v6, 7, v5
    v_and_b32 v7, 7, v3
    v_lshl_add_u32 v{vKst}, v7, 4, v5
    v_and_b32 v8, 15, v3
    v_lshl_add_u32 v5, v8, 4, v4
    v_lshl_add_u32 v{vVst}, v6, 10, v5
    v_mul_u32_u24 v6, {ACT_UNIT}, v6
    v_add_u32 v{vOst}, v5, v6
    v_bfe_u32 v5, v0, 3, 1
    v_lshl_add_u32 v5, v5, 7, v4
    v_bfe_u32 v6, v0, 1, 1
    v_lshl_add_u32 v5, v6, 6, v5
    v_and_b32 v6, 1, v0
    v_lshl_add_u32 v5, v6, 4, v5
    v_add_u32 v5, {QL_MEM}, v5
    v_lshrrev_b32 v6, 2, v0
    v_xor_b32 v6, v6, v0
    v_and_b32 v6, 4, v6
    v_mov_b32 v9, {QL_ZERO + 32}
    v_cmp_eq_u32 vcc, 0, v6
    s_lshl_b32 s{sT0}, s{sW}, 10
    s_add_u32 s{sT0}, s{sT0}, {QL_SX}
    v_cndmask_b32 v{vMa}, v9, v5, vcc
    v_bfe_u32 v5, v0, 2, 1
    v_lshlrev_b32 v5, 8, v5
    v_bfe_u32 v6, v0, 4, 1
    v_lshl_add_u32 v5, v6, 7, v5
    v_bfe_u32 v6, v0, 3, 1
    v_lshl_add_u32 v5, v6, 6, v5
    v_and_b32 v6, 3, v0
    v_lshl_add_u32 v5, v6, 4, v5
    v_lshl_add_u32 v5, v2, 3, v5
    v_add_u32 v{vKw}, s{sT0}, v5
    v_lshlrev_b32 v5, 7, v2
    v_lshl_add_u32 v5, v7, 4, v5
    v_add_u32 v{vKr}, s{sT0}, v5
    v_add_u32 v{vHi}, {QL_MEM}, v1
    v_mov_b32 v{vOne}, 1
    v_lshlrev_b32 v2, 2, v2
    v_sub_u32 v2, v3, v2
    v_mov_b32 v3, 0xf149f2ca
    """)
    for r in range(16):
        a(f"v_cmp_gt_i32 vcc, {(r & 3) + 8 * (r >> 2)}, v2\ns_nop 1\nv_cndmask_b32 v{aK + r}, 0, v3, vcc")
    for q in range(4):
        a(f"ds_write_b128 v{vHi}, {vr(aK + 4 * q, 4)} offset:{QL_MASK - QL_MEM + 1024 * q}")
    a("v_mov_b64 v[4:5], 0\nv_mov_b64 v[6:7], 0")
    for q in range(8):
        a(f"ds_write_b128 v{vHi}, v[4:7] offset:{QL_ZERO - QL_MEM + 1024 * q}")
    a(f"""
    s_mul_i32 s{sKV}, s{sHead}, {KV_HEAD}
    s_lshl_b32 s{sT0}, s{sRep}, 14
    s_lshl_b32 s{sT1}, s{sW}, 11
    s_add_u32 s{sKV}, s{sKV}, s{sT0}
    s_add_u32 s{sKV}, s{sKV}, s{sT1}
    s_add_u32 s{sKV}, s{sKV}, {WS_KV}
    s_lshl_b32 s{sMx}, s{sRep}, 13
    s_add_u32 s{sMx}, s{sMx}, s{sT1}
    s_add_u32 s{sMx}, s{sMx}, {WS_MEMX}
    s_lshl_b32 s{sFkv}, s{sHead}, 10
    s_lshl_b32 s{sT0}, s{sRep}, 4
    s_add_u32 s{sFkv}, s{sFkv}, s{sT0}
    s_lshl_b32 s{sT0}, s{sW}, 2
    s_add_u32 s{sFkv}, s{sFkv}, s{sT0}
    s_add_u32 s{sFo}, s{sFkv}, {WS_FL_O}
    s_add_u32 s{sFkv}, s{sFkv}, {WS_FL_KV}
    s_mul_i32 s{sAct}, s{sRep}, {2 * ACT_UNIT}
    s_lshl_b32 s{sT0}, s{sHead}, 12
    s_lshl_b32 s{sT1}, s{sW}, 10
    s_add_u32 s{sAct}, s{sAct}, s{sT0}
    s_add_u32 s{sAct}, s{sAct}, s{sT1}
    s_add_u32 s{sAct}, s{sAct}, {WS_ACT}
    s_mov_b32 s{sCn}, {hex(C_EXP)}
    s_mov_b32 s{sCp}, s{sCn}
    s_mov_b32 s{sCp+1}, s{sCn}
    s_mov_b32 s{sSa}, s{sRep}
    s_mov_b32 s{sSb}, s{sRep}
    s_mov_b32 s{sSta}, {QL_ST}
    s_mov_b32 s{sStb}, {QL_ST}
    s_mov_b32 s{sBuf}, 0
    s_mov_b32 s{sSegN}, s{sRep}
    s_add_u32 s{sPend}, s{sFkv}, 0x18000
    """)
    a(f"s_lshl_b32 s73, s{sHead}, 8\nv_mov_b32 v8, {DBG_GO}")
    if opt.get("qtouch", 0):
        a(f"buffer_load_dword v20, off, {WSR}, s{sKV} sc1\nbuffer_load_dword v20, off, {WSR}, s{sAct} sc1")
    gl = f"global_load_dword v9, v8, s[{P_DBG}:{P_DBG+1}] sc1"
    X = Asm()
    X.label("QA_go")
    spin(X, "QA_go2", gl, "v_cmp_eq_u32 vcc, 0, v9", sleep=4)
    X("s_branch QA_gook")
    x = Asm()
    xn_dma(x, sSegN, sBuf)
    gock = ["WAITV go", "v_cmp_eq_u32 vcc, 0, v9", "s_cbranch_vccnz QA_go", "QA_gook:"]
    adv = [f"v_add_u32 v{vXa}, s{sBuf}, v1", f"s_xor_b32 s{sBuf}, s{sBuf}, 0x8000", f"s_add_u32 s{sSegN}, s{sSegN}, {NREP}", f"s_min_u32 s{sSegN}, s{sSegN}, 63"]
    kvout = [cv(Pk + q, aK + 2 * q) for q in range(8)]
    kvout += [f"buffer_store_dwordx4 {vr(Pk + 4 * j, 4)}, v{vKst}, {WSR}, s{sKV} offen offset:{512 * j} sc1" for j in range(2)]
    kvout += [cv(Pk + 8 + q, aV + 2 * q) for q in range(8)]
    kvout += [f"buffer_store_dwordx4 {vr(Pk + 8 + 4 * j, 4)}, v{vVst}, {WSR}, s{sT1} offen offset:{512 * j} sc1" for j in range(2)]
    stadr = [f"s_lshl_b32 s{sT0}, s{sW}, 11", f"s_add_u32 s{sT0}, s{sT0}, s{sSta}", f"v_add_u32 v{vSt}, s{sT0}, v1"]
    if not ek:
        qg = opt.get("qgo", 10)
        load_proj_weights(a, [(8, WK), (12, WV), (16, WQ)], 8192, 73, opt, "QA", {qg: [gl + " ; @go"], max(18, qg + 8): gock + x.lines})
        mark(a, opt, 0)
        a("s_waitcnt vmcnt(0) lgkmcnt(0)\ns_barrier")
    else:
        qg = opt.get("qgo", 4)
        x.lines[-1] += " ; @xn"
        pro, slots = gemm_list(vXa, lambda k: 1024 * k, Fr, [(aK, WK, True), (aV, WV, False)], "e")
        hooks = {qg: [gl + " ; @go"], qg + 6: gock + x.lines}
        assert qg + 6 <= 15
        hooks[15.5] = ["WAITV xn", "s_barrier"] + adv + pro + sum(slots, []) + [f"s_add_u32 s{sT1}, s{sKV}, 0x2000", f"s_mov_b32 s{sPend}, s{sFkv}", "s_nop 2"] + kvout
        if qp >= 0:
            hooks[qp] = hooks.get(qp, []) + band(16)
        load_proj_weights(a, [(8, WK), (12, WV), (16, WQ)], 8192, 73, opt, "QA", hooks, 32768, 6)
        mark(a, opt, 0)
        pro, slots = gemm_list(vXa, lambda k: 1024 * k, Fr, [(aQ, WQ, True)], "f")
        xn_weave(slots, 1, 1, sSegN, sBuf)
        a.lines += resolve_waits(flag_store(sPend, vOne) + pro + sum(slots, []) + stadr
                                 + [f"ds_write_b128 v{vSt}, {vr(Pk + 4 * q, 4)} offset:{8192 * (q >> 1) + 1024 * (q & 1)}" for q in range(4)]
                                 + ["s_waitcnt vmcnt(0)", "s_nop 3", "s_branch QA_A2"])
    a.label("QA_A")
    wacc(a, opt, -1, 2)
    wacc(a, opt, -1, 3)
    a.lines += adv
    Mp = 120
    ml = [f"buffer_load_dwordx4 {vr(Mp,4)}, v1, {WSR}, s{sMx} offen sc1", f"buffer_load_dwordx4 {vr(Mp+4,4)}, v1, {WSR}, s{sMx} offen offset:1024 sc1"]
    slots = []
    for tg, pr_ in (("x", (aK, WK, True)), ("y", (aV, WV, False)), ("z", (aQ, WQ, True))):
        p_, sl_ = gemm_list(vXa, lambda k: 1024 * k, Fr, [pr_], tg)
        if slots:
            for q in range(3):
                slots[-3 + q].append(p_[q])
        else:
            pro = p_
        slots += sl_
    stw = lambda m: [f"ds_write_b128 v{vSt}, {vr(Pk + 8 * m + 4 * j, 4)} offset:{8192 * m + 1024 * j}" for j in range(2)]
    qf = opt.get("qflag", 24)
    slots[1] += stadr
    slots[qf] += ["s_waitcnt vmcnt(0)"] + flag_store(sPend, vOne) + [f"s_mov_b32 s{sPend}, s{sFkv}"]
    xn_weave(slots, qf + 1, 2, sSegN, sBuf)
    slots[60].append(f"s_add_u32 s{sT1}, s{sKV}, 0x2000")
    for p0, m in ((qf + 22, 0), (66, 1)):
        part = kvout[10 * m:10 * m + 10]
        for q in range(8):
            slots[p0 + q // 3].append(part[q])
        for q, x in enumerate(part[8:] + stw(m)):
            slots[p0 + 3 + 2 * q].append(x)
    slots[92].append(ml[0])
    slots[94].append(ml[1])
    wb = Asm()
    wacc(wb, opt, 1, 3)
    A = pro + sum(slots, []) + wb.lines + ["s_waitcnt vmcnt(6)", "s_nop 7", "s_nop 2", "QA_A2:"]
    A += [cv(Pk + 16 + q, aQ + 2 * q) for q in range(8)] + stw(2)
    A += [f"s_add_u32 s{sKV}, s{sKV}, {NREP * 0x4000}", f"s_add_u32 s{sSa}, s{sSa}, {NREP}", f"s_add_u32 s{sFkv}, s{sFkv}, {NREP * 16}",
          f"s_add_u32 s{sSta}, s{sSta}, 24576", f"s_cmp_eq_u32 s{sSta}, {QL_ST + 73728}", f"s_cselect_b32 s{sSta}, {QL_ST}, s{sSta}",
          "s_waitcnt lgkmcnt(0)", "s_barrier"]
    wb = Asm()
    wacc(wb, opt, 1, 2)
    A += wb.lines + [f"s_cmp_lt_u32 s{sSa}, {3 * NREP}", "s_cbranch_scc1 QA_A"]
    a.lines += resolve_waits(A)
    a.label("QA_B")
    wacc(a, opt, -1, 4)
    S, Oa, Sp, Km, Vm = 32, 48, 32, 64, 68
    Qo, Vx, Sm, Kp, Px, Pm, Vmp = 96, 104, 112, 72, 20, 28, 30
    B = [f"v_add_u32 v{vSt}, s{sStb}, v1", f"s_lshl_b32 s{sT0}, s{sW}, 11", f"v_add_u32 v2, s{sT0}, v{vSt}", f"v_add_u32 v3, s{sT0}, v{vHi}"]
    B += [f"ds_read_b128 {vr(S + 4 * q, 4)}, v{vHi} offset:{QL_MASK - QL_MEM + 1024 * q}" for q in range(4)]
    kq = lambda k: [f"ds_read_b128 {vr(48 + 8 * (k % 4), 4)}, v{vSt} offset:{1024 * k}",
                    f"ds_read_b128 {vr(52 + 8 * (k % 4), 4)}, v{vSt} offset:{16384 + 1024 * k} ; @s{k}"]
    for k in range(3):
        B += kq(k)
    for k in range(8):
        B += [f"WAITL s{k}", f"{M32} {vr(S,16)}, {vr(48 + 8 * (k % 4), 4)}, {vr(52 + 8 * (k % 4), 4)}, {vr(S,16)}"]
        if k + 3 < 8:
            B += kq(k + 3)
    B += [f"ds_read_b128 {vr(Qo + 4 * j, 4)}, v2 offset:{16384 + 1024 * j}" for j in range(2)]
    B += [f"ds_read_b128 {vr(Vx + 4 * j, 4)}, v2 offset:{8192 + 1024 * j} ; @vx" for j in range(2)]
    B += [f"s_lshl_b32 s{sT0}, s{sW}, 10", f"v_add_u32 v2, s{sT0}, v{vHi}", "s_nop 5",
          f"v_max3_f32 v4, v{S}, v{S+1}, v{S+2}"] + [f"v_max3_f32 v4, v4, v{S+3+2*q}, v{S+4+2*q}" for q in range(6)]
    B += [f"v_max_f32 v5, v4, v{S+15}", f"v_max_f32 v4, v4, v{S+15}", "s_nop 1", "v_permlane32_swap_b32 v4, v5", "v_max_f32 v4, v4, v5", f"v_mul_f32 v6, s{sCn}, v4"]
    B += [f"v_pk_fma_f32 {vr(S+q,2)}, {vr(S+q,2)}, s[{sCp}:{sCp+1}], v[6:7] op_sel_hi:[1,1,0] neg_lo:[0,0,1] neg_hi:[0,0,1]" for q in range(0, 16, 2)]
    B += [f"v_exp_f32 v{S+q}, v{S+q}" for q in range(16)]
    B += [cv(Px + q, S + 2 * q) for q in range(8)]
    B += [f"v_pk_add_f32 {vr(S+q,2)}, {vr(S+q,2)}, {vr(S+q+8,2)}" for q in range(0, 8, 2)]
    B += [f"v_pk_add_f32 {vr(S+q,2)}, {vr(S+q,2)}, {vr(S+q+4,2)}" for q in (0, 2)] + [f"v_pk_add_f32 {vr(S,2)}, {vr(S,2)}, {vr(S+2,2)}", f"v_add_f32 v7, v{S}, v{S+1}"]
    B += ["WAITL vx", f"{M32} {vr(Oa,16)}, {vr(Vx,4)}, {vr(Px,4)}, 0", f"{M32} {vr(Oa,16)}, {vr(Vx+4,4)}, {vr(Px+4,4)}, {vr(Oa,16)}"]
    mc = [f"v_max3_u32 v4, v{Mp}, v{Mp+1}, v{Mp+2}", f"v_max3_u32 v5, v{Mp+3}, v{Mp+4}, v{Mp+5}", f"v_max3_u32 v4, v4, v{Mp+6}, v{Mp+7}",
          "v_max_u32 v4, v4, v5", "v_cmp_eq_u32 vcc, -1, v4"]
    wa = Asm()
    wacc(wa, opt, -1)
    wacc(wa, opt, 1, 4)
    B += wa.lines + ["s_waitcnt vmcnt(0)"] + flag_store(sPend, vOne) + mc + [f"s_mov_b32 s{sPend}, s{sFo}", "s_cbranch_vccz QA_m_ok"]
    a.lines += resolve_waits(B)
    qd = opt.get("qdep", 1)
    if qd == 1:
        spin(a, "QA_m", "\n".join(ml), "\n".join(mc), sleep=opt.get("qsleep", 2))
    else:
        for k in range(qd - 1):
            a.lines += ml + [f"s_sleep {opt.get('qsleep', 2)}"]
        a.lines += [f"s_mov_b32 s{sTO}, 0", "QA_m:"] + ml + [f"s_waitcnt vmcnt({2 * (qd - 1)})"] + mc + ["s_cbranch_vccz QA_m_ok",
                    f"s_sleep {opt.get('qsleep', 2)}", f"s_add_u32 s{sTO}, s{sTO}, 1", f"s_cmp_lt_u32 s{sTO}, {SPIN_MAX}", "s_cbranch_scc1 QA_m", "s_branch L_END", "QA_m_ok:"]
    wacc(a, opt, 1)
    wacc(a, opt, -1, 5)
    if opt.get("markc") is None:
        mark(a, opt, 1)
    B = [f"ds_write_b128 v3, {vr(Mp,4)}", f"ds_write_b128 v3, {vr(Mp+4,4)} offset:1024", "s_waitcnt lgkmcnt(0)", "s_barrier"]
    moff = lambda k: ((k >> 1) & 3) * 2048 + (k >> 4) * 1024 + ((k >> 3) & 1) * 512 + (k & 1) * 32
    NF, J = 6, opt.get("qjoint", 12)
    fb = [80, 84, 88, 92, 104, 108]
    rd = lambda k, r, tg: f"ds_read_b128 {vr(r, 4)}, v{vMa} offset:{moff(k)} ; @{tg}{k}"
    kmm = lambda k, r: f"{D32} {vr(Km,4)}, {vr(('a', 4 * k), 4)}, {vr(r, 4)}, " + ("0" if k == 0 else vr(Km, 4))
    joint = [k for k in range(32) if (k * J) // 32 != ((k - 1) * J) // 32 or (k == 0 and J)]
    first_v = [True]

    def vmm(k, r):
        c = "0" if first_v[0] else vr(Vm, 4)
        first_v[0] = False
        return f"{D32} {vr(Vm,4)}, {vr(r, 4)}, {vr(('a', 128 + 4 * k), 4)}, {c}"
    seq = [("m", k) for k in range(32)] + [("n", k) for k in range(32) if k not in joint]
    B += [rd(k, fb[q], tg) for q, (tg, k) in enumerate(seq[:NF - 1])]
    slots = []
    for q, (tg, k) in enumerate(seq):
        r = fb[q % NF]
        nx = [rd(seq[q + NF - 1][1], fb[(q + NF - 1) % NF], seq[q + NF - 1][0])] if q + NF - 1 < len(seq) else []
        sl = [f"WAITL {tg}{k}", kmm(k, r) if tg == "m" else vmm(k, r)] + nx
        if tg == "m" and k in joint:
            sl.append(vmm(k, r))
        slots.append(sl)
    s2 = slots[32:]
    s2[1] += [cv(Km, Km), cv(Km + 1, Km + 2), f"ds_write_b64 v{vKw}, {vr(Km,2)}"] + [f"ds_read_b128 {vr(Kp + 4*j, 4)}, v{vKr} offset:{256*j} ; @kp" for j in range(2)]
    s2[6] += ["WAITL kp", f"{M32} {vr(Sp,16)}, {vr(Kp,4)}, {vr(Qo,4)}, 0", f"{M32} {vr(Sp,16)}, {vr(Kp+4,4)}, {vr(Qo+4,4)}, {vr(Sp,16)}"]
    s2[9] += [f"ds_write_b128 v2, {vr(Sp,4)} offset:{QL_SX - QL_MEM} ; @sx"]
    s2[13] += (["s_waitcnt vmcnt(0)"] if qd > 1 else []) + ["WAITL sx", "s_barrier"]
    s2[13] += [f"ds_read_b128 {vr(Sm + 4 * q, 4)}, v{vHi} offset:{QL_SX - QL_MEM + 1024 * q} ; @sr" for q in range(4)]
    s2[14] += [f"s_add_u32 s{sMx}, s{sMx}, {NREP * 0x2000}", f"s_add_u32 s{sSb}, s{sSb}, {NREP}"]
    s2[15] += [f"s_add_u32 s{sFo}, s{sFo}, {NREP * 16}", f"s_add_u32 s{sStb}, s{sStb}, 24576"]
    s2[16] += [f"s_cmp_eq_u32 s{sStb}, {QL_ST + 73728}", f"s_cselect_b32 s{sStb}, {QL_ST}, s{sStb}"]
    assert len(s2) >= 17
    pa = lambda d, x, y: f"v_pk_add_f32 {vr(d,2)}, {vr(x,2)}, {vr(y,2)}"
    B += sum(slots, []) + ["WAITL sr"]
    B += [pa(Sm, Sm, Sm + 4), pa(Sm + 2, Sm + 2, Sm + 6), pa(Sm + 8, Sm + 8, Sm + 12), pa(Sm + 10, Sm + 10, Sm + 14), pa(Sm, Sm, Sm + 8), pa(Sm + 2, Sm + 2, Sm + 10),
          f"v_max_f32 v4, v{Sm}, v{Sm+1}", f"v_max3_f32 v5, v4, v{Sm+2}, v{Sm+3}", f"v_max3_f32 v4, v4, v{Sm+2}, v{Sm+3}",
          cv(Vmp, Vm), cv(Vmp + 1, Vm + 2), "v_permlane32_swap_b32 v4, v5", "v_max_f32 v4, v4, v5", f"v_mul_f32 v4, s{sCn}, v4", "v_max_f32 v4, v4, v6",
          "v_sub_f32 v6, v6, v4"]
    B += [f"v_pk_fma_f32 {vr(Sm+q,2)}, {vr(Sm+q,2)}, s[{sCp}:{sCp+1}], v[4:5] op_sel_hi:[1,1,0] neg_lo:[0,0,1] neg_hi:[0,0,1]" for q in (0, 2)]
    B += ["v_exp_f32 v6, v6"] + [f"v_exp_f32 v{Sm+q}, v{Sm+q}" for q in range(4)]
    B += [f"v_fma_f32 v7, v7, v6, v{Sm}", cv(Pm, Sm), cv(Pm + 1, Sm + 2), f"v_add_f32 v7, v7, v{Sm+1}", f"v_add_f32 v5, v{Sm+2}, v{Sm+3}",
          f"{M8} {vr(Sp,16)}, {vr(Vmp,2)}, {vr(Pm,2)}, 0", "v_add_f32 v4, v7, v5", "v_add_f32 v5, v7, v5", "s_nop 1",
          "v_permlane32_swap_b32 v4, v5", "v_add_f32 v4, v4, v5", "v_rcp_f32 v4, v4", "s_nop 3"]
    for j in range(2):
        B += [f"v_pk_fma_f32 {vr(Oa + 8*j + q, 2)}, {vr(Oa + 8*j + q, 2)}, v[6:7], {vr(Sp + 8*j + q, 2)} op_sel_hi:[1,0,1]" for q in range(0, 8, 2)]
        B += [f"v_pk_mul_f32 {vr(Oa + 8*j + q, 2)}, {vr(Oa + 8*j + q, 2)}, v[4:5] op_sel_hi:[1,0]" for q in range(0, 8, 2)]
        B += [cv(Px + 4 * j + q, Oa + 8 * j + 2 * q) for q in range(4)]
        B += [f"buffer_store_dwordx4 {vr(Px + 4 * j, 4)}, v{vOst}, {WSR}, s{sAct} offen offset:{512 * j} sc1"]
    wb = Asm()
    wacc(wb, opt, 1, 5)
    B += wb.lines + [f"s_add_u32 s{sAct}, s{sAct}, {NREP * 2 * ACT_UNIT}", f"s_cmp_lt_u32 s{sSa}, 64", "s_cbranch_scc1 QA_A"]
    if opt.get("fprobe") == 2:
        B += [f"s_cmp_ge_u32 s{sSb}, {62 + NREP}", "s_cbranch_scc1 QA_now", "s_waitcnt vmcnt(0)", "QA_now:"]
    else:
        B += ["s_waitcnt vmcnt(0)"]
    if opt.get("qone"):
        B += ["s_barrier", f"s_cmp_lg_u32 s{sW}, 0", "s_cbranch_scc1 QA_one", "v_lshrrev_b32 v4, 2, v1", "s_mov_b64 exec, 15",
              f"buffer_store_dword v{vOne}, v4, {WSR}, s{sPend} offen sc1", "s_mov_b64 exec, -1", "QA_one:", f"s_add_u32 s{sPend}, s{sPend}, 0x10000"]
        B += [f"v_mov_b32 v{Mp}, -1", f"s_cmp_lt_u32 s{sSb}, 64", "s_cbranch_scc1 QA_B", "s_branch L_END"]
    else:
        B += flag_store(sPend, vOne) + [f"v_mov_b32 v{Mp}, -1", "s_barrier", f"s_cmp_lt_u32 s{sSb}, 64", "s_cbranch_scc1 QA_B", "s_branch L_END"]
    a.lines += resolve_waits(B) + X.lines


def role_fu(a, opt):
    sCu, sRep, sI, sBuf, sSegN, sAct, sFl, sCn, sPend = 26, 27, 28, 30, 31, 32, 33, 34, 29
    vXa, vOst, vOne = 10, 11, 12
    aG, aU, Fr, Pk = 32, 48, 64, 80
    W1, W3 = ("a", 0), ("a", 128)
    a.label("ROLE_FU")
    a(f"""
    s_sub_u32 s{sT0}, s{sH}, {8 * NREP}
    s_and_b32 s{sRep}, s{sT0}, 1
    s_lshr_b32 s{sT0}, s{sT0}, 1
    s_lshl_b32 s{sT0}, s{sT0}, 2
    s_add_u32 s{sCu}, s{sT0}, s{sXCC}
    s_sub_u32 s{sCu}, s{sCu}, 1
    s_cmp_ge_u32 s{sCu}, 11
    s_cbranch_scc1 L_END
    s_lshl_b32 s{sBuf}, s{sCu}, 8
    v_lshlrev_b32 v1, 4, v0
    """)
    srd(a, 8, P_W1, 512 * 2752)
    srd(a, 12, P_W3, 512 * 2752)
    wait_xn(a, "FU_w")
    if not opt.get("slow"):
        mark(a, opt, 1)
    if opt.get("uwait"):
        wait_kv(a, "FU_kv")
    load_proj_weights(a, [(8, W1), (12, W3)], 2752, sBuf, opt, "FU")
    a(f"""
    v_lshrrev_b32 v2, 5, v0
    v_lshlrev_b32 v4, 8, v2
    v_and_b32 v8, 15, v0
    v_lshl_add_u32 v5, v8, 4, v4
    v_bfe_u32 v6, v0, 4, 1
    v_mul_u32_u24 v6, {ACT_UNIT}, v6
    v_add_u32 v{vOst}, v5, v6
    v_mov_b32 v{vOne}, 1
    s_lshl_b32 s{sT0}, s{sCu}, 2
    s_add_u32 s{sT0}, s{sT0}, s{sW}
    s_lshl_b32 s{sFl}, s{sT0}, 2
    s_lshl_b32 s{sT0}, s{sT0}, 10
    s_mul_i32 s{sAct}, s{sRep}, {2 * ACT_UNIT}
    s_add_u32 s{sAct}, s{sAct}, s{sT0}
    s_add_u32 s{sAct}, s{sAct}, {WS_ACT + 128 * 1024}
    s_lshl_b32 s{sT0}, s{sRep}, 8
    s_add_u32 s{sFl}, s{sFl}, s{sT0}
    s_add_u32 s{sFl}, s{sFl}, {WS_FL_HF}
    s_mov_b32 s{sCn}, 0xbfb8aa3b
    s_mov_b32 s{sI}, 0
    s_mov_b32 s{sBuf}, 0
    s_mov_b32 s{sSegN}, s{sRep}
    s_lshl_b32 s{sPend}, s{sFl}, 4
    s_and_b32 s{sPend}, s{sPend}, 0x3fff
    s_add_u32 s{sPend}, s{sPend}, 0x14000
    """)
    if not opt.get("slow"):
        mark(a, opt, 0)
    xn_dma(a, sSegN, sBuf)
    a("s_waitcnt vmcnt(0)\ns_barrier")
    a.label("FU_A")
    a(f"""
    v_add_u32 v{vXa}, s{sBuf}, v1
    s_xor_b32 s{sBuf}, s{sBuf}, 0x8000
    s_add_u32 s{sSegN}, s{sSegN}, 2
    s_min_u32 s{sSegN}, s{sSegN}, 63
    """)
    pro, slots = gemm_list(vXa, lambda k: 1024 * k, Fr, [(aG, W1, True), (aU, W3, True)], "x")
    xn_weave(slots, 24, 2, sSegN, sBuf)
    slots[49] += ["s_waitcnt vmcnt(8)"] + flag_store(sPend, vOne)
    T = 96
    A = pro + sum(slots, []) + [f"s_mov_b32 s{sPend}, s{sFl}", f"s_add_u32 s{sFl}, s{sFl}, 512", "s_nop 1"]
    A += [f"v_mul_f32 v{T+q}, s{sCn}, v{aG+q}" for q in range(16)]
    A += [f"v_exp_f32 v{T+q}, v{T+q}" for q in range(16)]
    A += [f"v_add_f32 v{T+q}, 1.0, v{T+q}" for q in range(16)]
    A += [f"v_rcp_f32 v{T+q}, v{T+q}" for q in range(16)]
    A += [f"v_pk_mul_f32 {vr(aG+q,2)}, {vr(aG+q,2)}, {vr(T+q,2)}" for q in range(0, 16, 2)]
    A += [f"v_pk_mul_f32 {vr(aG+q,2)}, {vr(aG+q,2)}, {vr(aU+q,2)}" for q in range(0, 16, 2)]
    A += [cv(Pk + q, aG + 2 * q) for q in range(8)] + ["s_waitcnt vmcnt(1)", "s_barrier"]
    A += [f"buffer_store_dwordx4 {vr(Pk + 4 * j, 4)}, v{vOst}, {WSR}, s{sAct} offen offset:{512 * j} sc1" for j in range(2)]
    A += [f"s_add_u32 s{sAct}, s{sAct}, {4 * ACT_UNIT}", f"s_add_u32 s{sI}, s{sI}, 1", f"s_cmp_lt_u32 s{sI}, 32", "s_cbranch_scc1 FU_A",
          "s_waitcnt vmcnt(0)"] + flag_store(sPend, vOne) + ["s_branch L_END"]
    a.lines += resolve_waits(A)


def role_h(a, opt):
    a.label("ROLE_H")
    a(f"""
    v_lshlrev_b32 v1, 4, v0
    v_mov_b64 v[4:5], 0
    v_mov_b64 v[6:7], 0
    v_mov_b64 v[8:9], -1
    v_mov_b64 v[10:11], -1
    s_lshl_b32 s{sT0}, s{sH}, 2
    s_add_u32 s{sT0}, s{sT0}, s{sW}
    s_lshl_b32 s{sT0}, s{sT0}, 10
    s_lshl_b32 s{sT1}, s{sT0}, 2
    s_add_u32 s{sT1}, s{sT1}, {WS_MEMX}
    buffer_store_dwordx4 v[4:7], v1, {WSR}, s{sT0} offen sc1
    """)
    for k in range(4):
        a(f"buffer_store_dwordx4 v[8:11], v1, {WSR}, s{sT1} offen offset:{1024 * k} sc1")
    if opt.get("fprobe"):
        a(f"s_mul_i32 s{sT2}, s{sW}, {ACT_UNIT}\ns_lshl_b32 s70, s{sH}, 12\ns_add_u32 s{sT2}, s{sT2}, s70\ns_add_u32 s{sT2}, s{sT2}, {WS_ACT + 124 * ACT_UNIT}")
        for k in range(4):
            a(f"buffer_store_dwordx4 v[8:11], v1, {WSR}, s{sT2} offen offset:{1024 * k} sc1")
    if opt.get("hinit"):
        a(f"s_sub_u32 s{sT1}, s{sT1}, {WS_MEMX - WS_PA}")
        if opt.get("pa1"):
            assert not opt.get("first")
            a(f"s_lshl_b32 s{sT1}, s{sT0}, 1\ns_add_u32 s{sT1}, s{sT1}, {WS_PA}")
        for k in range(2 if opt.get("pa1") else 4):
            a(f"buffer_store_dwordx4 v[4:7], v1, {WSR}, s{sT1} offen offset:{1024 * k} sc1")
        a(f"v_lshlrev_b32 v2, 2, v0\ns_lshr_b32 s{sT0}, s{sT0}, 2\ns_add_u32 s{sT0}, s{sT0}, {WS_MB}\nbuffer_store_dword v8, v2, {WSR}, s{sT0} offen sc1")
        if opt.get("first"):
            a(f"s_add_u32 s{sT1}, s{sT1}, {WS_PA2 - WS_PA}\ns_add_u32 s{sT0}, s{sT0}, {WS_MB2 - WS_MB}")
            for k in range(4):
                a(f"buffer_store_dwordx4 v[4:7], v1, {WSR}, s{sT1} offen offset:{1024 * k} sc1")
            a(f"buffer_store_dword v8, v2, {WSR}, s{sT0} offen sc1")
    a("s_waitcnt vmcnt(0)\ns_barrier")
    count_cleared(a, "H_clr")
    if opt.get("pfo", 1):
        srd(a, 16, P_WO, 0x400000)
        a(f"s_lshl_b32 s{sT0}, s{sH}, 17\ns_lshl_b32 s{sT1}, s{sW}, 12\ns_add_u32 s{sT0}, s{sT0}, s{sT1}\nv_lshlrev_b32 v1, 4, v0\ns_barrier")
        if opt.get("pfo", 1) == 1:
            wait_xn(a, "H_x")
        for c in range(8):
            for k in range(4):
                a(f"buffer_load_dwordx4 v[124:127], v1, s[16:19], s{sT0} offen offset:{1024 * k}")
            a(f"s_add_u32 s{sT0}, s{sT0}, 0x4000")
    a("s_branch L_END")


def layer_norm(a, sF):
    X, Y = 32, 64
    L = Asm()
    L(f"""
    v_and_b32 v2, 7, v0
    v_lshrrev_b32 v3, 3, v0
    s_lshl_b32 s{sT0}, s{sW}, 3
    v_add_u32 v2, s{sT0}, v2
    v_lshlrev_b32 v4, 10, v2
    v_lshl_add_u32 v4, v3, 4, v4
    v_lshlrev_b32 v5, 9, v3
    v_lshl_add_u32 v5, v2, 4, v5
    s_lshl_b32 s{sT0}, s{sF}, 15
    """)
    for i in range(8):
        L(f"buffer_load_dwordx4 {vr(X + 4 * i, 4)}, v4, s[8:11], s{sT0} offen offset:{128 * i}")
    L("s_waitcnt vmcnt(0)")
    for q in range(32):
        L(f"v_lshlrev_b32 v{Y + 2*q}, 16, v{X+q}\nv_and_b32 v{Y + 2*q + 1}, 0xffff0000, v{X+q}")

    def reduce(r):
        L(f"""
        s_nop 1
        v_add_f32_dpp v{r}, v{r}, v{r} row_ror:8 row_mask:0xf bank_mask:0xf
        v_mov_b32 v{r+1}, v{r}
        s_nop 1
        v_permlane16_swap_b32 v{r}, v{r+1}
        v_add_f32 v{r}, v{r}, v{r+1}
        v_mov_b32 v{r+1}, v{r}
        s_nop 1
        v_permlane32_swap_b32 v{r}, v{r+1}
        v_add_f32 v{r}, v{r}, v{r+1}
        v_mul_f32 v{r}, 0x3b000000, v{r}
        """)

    def round_bf16(r):
        L(f"v_cvt_pk_bf16_f32 v{r}, v{r}, v{r}\nv_lshlrev_b32 v{r}, 16, v{r}")
    for q in range(4):
        L(f"v_add_f32 v{6+q}, v{Y+q}, v{Y+4+q}")
    for q in range(8, 64):
        L(f"v_add_f32 v{6 + (q & 3)}, v{6 + (q & 3)}, v{Y+q}")
    L("v_add_f32 v6, v6, v7\nv_add_f32 v8, v8, v9\nv_add_f32 v6, v6, v8")
    reduce(6)
    for q in range(64):
        L(f"v_sub_f32 v{12 + (q & 3)}, v{Y+q}, v6")
        L(f"v_mul_f32 v{8 + q}, v{12 + q}, v{12 + q}" if q < 4 else f"v_fmac_f32 v{8 + (q & 3)}, v{12 + (q & 3)}, v{12 + (q & 3)}")
    L("v_add_f32 v8, v8, v9\nv_add_f32 v10, v10, v11\nv_add_f32 v8, v8, v10")
    reduce(8)
    round_bf16(6)
    round_bf16(8)
    L("v_add_f32 v8, 0x3727c5ac, v8")
    round_bf16(8)
    L("v_sqrt_f32 v8, v8\ns_nop 0")
    round_bf16(8)
    L("v_rcp_f32 v8, v8")
    for q in range(64):
        L(f"v_sub_f32 v{Y+q}, v{Y+q}, v6")
    for q in range(32):
        L(cv(X + q, Y + 2 * q))
    for q in range(32):
        L(f"v_lshlrev_b32 v{Y + 2*q}, 16, v{X+q}\nv_and_b32 v{Y + 2*q + 1}, 0xffff0000, v{X+q}")
    for q in range(64):
        L(f"v_mul_f32 v{Y+q}, v{Y+q}, v8")
    for q in range(32):
        L(cv(X + q, Y + 2 * q))
    L(f"s_add_u32 s{sT0}, s{sT0}, {WS_XN}")
    for i in range(8):
        L(f"buffer_store_dwordx4 {vr(X + 4 * i, 4)}, v5, {WSR}, s{sT0} offen sc1\ns_add_u32 s{sT0}, s{sT0}, 0x1000")
    a.lines += L.lines


def role_f(a, opt):
    sF, sU, sAo, sAh, sAl, sN, sFo, sFh, sXo, sRed, sOne = 26, 27, 28, 29, 30, 31, 32, 33, 34, 64, 65
    vFo, vFh, vX, vRed, vHv, vXr, Acc, Hf, Ob, vOv, vXi = 10, 11, 12, 13, 14, 16, 20, 28, 72, 15, 9
    NB = 24
    a.label("ROLE_F")
    srd(a, 8, P_X, 2048 * 1024)
    srd(a, 12, P_WO, 0x400000)
    srd(a, 16, P_W2, 1376 * 1024)
    srd(a, 20, P_OUT, 2048 * 1024)
    a(f"""
    s_sub_u32 s{sF}, s{sXCC}, 5
    s_lshl_b32 s{sF}, s{sF}, 5
    s_add_u32 s{sF}, s{sF}, s{sH}
    v_lshlrev_b32 v1, 4, v0
    """)
    if opt.get("markf") == 0:
        mark(a, opt, 1)
    layer_norm(a, sF)
    if opt.get("markf") == 1:
        mark(a, opt, 1)
    a("s_waitcnt vmcnt(0)\ns_barrier")
    if opt.get("markf") == 2:
        mark(a, opt, 1)
    count_cleared(a, "F_clr")
    if opt.get("markf") == 3:
        mark(a, opt, 1)
    if opt.get("fwait"):
        wait_kv(a, "F_kv")
    a(f"""
    s_and_b32 s{sXo}, s{sF}, 15
    s_lshl_b32 s{sXo}, s{sXo}, 6
    v_lshrrev_b32 v2, 2, v0
    v_lshlrev_b32 v2, 10, v2
    v_and_b32 v3, 3, v0
    v_lshl_add_u32 v2, v3, 4, v2
    v_add_u32 v2, s{sXo}, v2
    v_lshrrev_b32 v4, 5, v0
    v_lshlrev_b32 v4, 4, v4
    v_bfe_u32 v5, v0, 2, 3
    v_add_u32 v4, v4, v5
    v_lshlrev_b32 v4, 6, v4
    v_lshl_add_u32 v4, v3, 4, v4
    s_mul_i32 s{sT2}, s{sW}, 40960
    v_add_u32 v4, s{sT2}, v4
    """)
    L = [f"s_lshl_b32 s{sAo}, s{sW}, 20", f"s_mul_i32 s{sAh}, s{sW}, {11 * 32768}"]

    def wdma(k):
        sd, so = (12, sAo) if k < 32 else (16, sAh)
        out = []
        for hh in range(2):
            out += [f"s_add_u32 m0, s{sT2}, {2048 * (k % 20) + 1024 * hh}", "s_nop 0",
                    f"buffer_load_dwordx4 v2, s[{sd}:{sd+3}], s{so} offen lds ; @w{k}", f"s_add_u32 s{so}, s{so}, 0x4000"]
        return out
    for k in range(20):
        L += wdma(k)
    for k in range(43):
        dst = ("a", 8 * k) if k < 32 else ("v", 168 + 8 * (k - 32))
        L.append(f"WAITV w{k}")
        for t in range(2):
            for y in range(2):
                L.append(f"ds_read_b64_tr_b16 {vr((dst[0], dst[1] + 4 * t + 2 * y), 2)}, v4 offset:{2048 * (k % 20) + 512 * y + 8 * t} ; @r{k}")
        if k >= 1 and k + 19 < 43:
            L += [f"WAITL r{k-1}"] + wdma(k + 19)
        elif k % 2:
            L.append(f"WAITL r{k-1}")
    a.lines += resolve_waits(L)
    a(f"""
    s_waitcnt lgkmcnt(0)
    s_barrier
    s_lshr_b32 s{sU}, s{sF}, 4
    {f"s_lshr_b32 s{sU}, s{sH}, 4" if opt.get("fmap") else ""}
    {f"s_lshl_b32 s{sU}, s{sU}, 1" if opt.get("fmap") else ""}
    {f"s_add_u32 s{sU}, s{sU}, s{sXCC}" if opt.get("fmap") else ""}
    {f"s_sub_u32 s{sU}, s{sU}, 5" if opt.get("fmap") else ""}
    v_bfe_u32 v2, v0, 2, 3
    v_lshlrev_b32 v2, 10, v2
    v_and_b32 v3, 3, v0
    v_lshl_add_u32 v2, v3, 2, v2
    s_lshl_b32 s{sT0}, s{sW}, 13
    v_add_u32 v{vFo}, s{sT0}, v2
    v_min_u32 v2, 42, v0
    v_lshlrev_b32 v{vFh}, 2, v2
    v_and_b32 v2, 15, v0
    v_lshrrev_b32 v3, 4, v0
    v_lshlrev_b32 v2, 10, v2
    v_lshl_add_u32 v2, v3, 4, v2
    v_add_u32 v{vX}, s{sXo}, v2
    s_cmp_eq_u32 s{sW}, 0
    s_cselect_b32 s{sT0}, 0, 0x1000000
    v_add_u32 v{vXi}, s{sT0}, v{vX}
    v_mov_b32 v{vHv}, 0
    s_mov_b32 s{sRed}, 0
    s_mov_b32 s{sOne}, 0
    s_mov_b32 s{sN}, s{sU}
    """)
    X = Asm()
    pr = opt.get("fprobe", 0)
    sNy, vPr, vCk = 66, 8, 3
    a(f"""
    v_lshlrev_b32 v2, 9, v0
    s_lshl_b32 s{sT0}, s{sW}, 15
    s_add_u32 s{sT0}, s{sT0}, 508
    v_add_u32 v{vPr}, s{sT0}, v2
    s_mov_b32 s{sNy}, 0
    """)
    hl = f"buffer_load_dword v{vHv}, v{vFh}, {WSR}, s{sFh} offen sc1"
    ol = f"buffer_load_dword v{vOv}, v{vFo}, {WSR}, s{sFo} offen sc1"

    def fetch_next(name):
        out = [f"s_lshr_b32 s{sT0}, s{sN}, 1", f"s_lshl_b32 s{sFh}, s{sT0}, 8", f"s_add_u32 s{sFh}, s{sFh}, {WS_FL_HF}",
               f"s_lshl_b32 s{sFo}, s{sT0}, 4", f"s_add_u32 s{sFo}, s{sFo}, {WS_FL_O}",
               f"v_cmp_eq_u32 vcc, 0, v{vHv}", f"s_mul_i32 s{sAh}, s{sN}, {ACT_UNIT}", f"s_add_u32 s{sAh}, s{sAh}, {WS_ACT + 128 * 1024}",
               f"s_mul_i32 s{sT0}, s{sW}, 11", f"s_add_u32 s{sT1}, s{sT0}, 10", f"s_min_u32 s{sT1}, s{sT1}, 42",
               f"s_lshl_b32 s{sT0}, s{sT0}, 10", f"s_lshl_b32 s{sT1}, s{sT1}, 10",
               ] + ([f"s_cmp_ge_u32 s{sN}, 128", f"s_cselect_b32 s{sAh}, {WS_BYTES}, s{sAh}", f"s_cselect_b32 s{sFo}, {WS_BYTES}, s{sFo}",
                     f"s_min_u32 s{sFh}, s{sFh}, {WS_FL_HF + 63 * 256}"] if opt.get("funi") else []) + [
               f"s_add_u32 s{sAl}, s{sAh}, s{sT1}", f"s_add_u32 s{sAh}, s{sAh}, s{sT0}",
               f"s_cbranch_vccnz {name}", f"{name}_go:"]
        X.label(name)
        spin(X, name + "s", hl, f"v_cmp_eq_u32 vcc, 0, v{vHv}")
        X(f"s_branch {name}_go")
        for k in range(10):
            out.append(f"buffer_load_dwordx4 {vr(Hf + 4 * k, 4)}, v1, {WSR}, s{sAh} offen offset:{1024 * (k & 3)} sc1")
            if k & 3 == 3:
                out.append(f"s_add_u32 s{sAh}, s{sAh}, 0x1000")
        out += [f"buffer_load_dwordx4 {vr(Hf + 40, 4)}, v1, {WSR}, s{sAl} offen sc1", f"s_lshl_b32 s{sT0}, s{sN}, 14",
                f"buffer_load_dwordx4 {vr(vXr,4)}, v{vXi}, s[8:11], s{sT0} offen",
                f"s_add_u32 s{sFh}, s{sFh}, 512", f"s_min_u32 s{sFh}, s{sFh}, {WS_FL_HF + 63 * 256}", hl]
        if pr == 1:
            out += [f"s_mul_i32 s{sT0}, s{sN}, {ACT_UNIT}", f"s_add_u32 s{sT0}, s{sT0}, {WS_ACT}", f"s_cmp_ge_u32 s{sN}, 124",
                    f"s_cselect_b32 s{sFo}, s{sT0}, s{sFo}", f"s_cselect_b32 s{sNy}, -1, 0", f"s_cselect_b64 vcc, -1, 0",
                    f"v_cndmask_b32 v{vFo}, v{vFo}, v{vPr}, vcc"]
        out += [ol]
        return out
    mark(a, opt, 0)
    wait_xn(a, "F_go")
    a.lines += fetch_next("F_h0")
    a.label("F_U0")
    a("s_waitcnt vmcnt(0)")
    a.label("F_U")
    wacc(a, opt, -1)
    a(f"""
    s_mul_i32 s{sAo}, s{sU}, {ACT_UNIT}
    s_lshl_b32 s{sT0}, s{sW}, 15
    s_add_u32 s{sAo}, s{sAo}, s{sT0}
    s_add_u32 s{sAo}, s{sAo}, {WS_ACT}
    s_lshl_b32 s{sXo}, s{sU}, 14
    s_add_u32 s{sU}, s{sU}, 4
    s_mov_b32 s{sN}, s{sU}
    v_cmp_eq_u32 vcc, s{sNy}, v{vOv}
    s_cbranch_vccz F_o_ok
    """)
    fd = opt.get("fdep", 1)
    if fd == 1:
        spin(a, "F_o", ol, f"v_cmp_eq_u32 vcc, s{sNy}, v{vOv}", sleep=opt.get("fsleep", 1))
    else:
        for k in range(fd - 1):
            a.lines += [ol, "s_sleep 1"]
        a.lines += [f"s_mov_b32 s{sTO}, 0", "F_o:", ol, f"s_waitcnt vmcnt({fd - 1})", f"v_cmp_eq_u32 vcc, s{sNy}, v{vOv}", "s_cbranch_vccz F_o_ok"]
        a.lines += ([f"s_sleep {opt['fsleep']}"] if opt.get("fsleep") else [])
        a.lines += [f"s_add_u32 s{sTO}, s{sTO}, 1", f"s_cmp_lt_u32 s{sTO}, {SPIN_MAX}", "s_cbranch_scc1 F_o", "s_branch L_END", "F_o_ok:"]
    wacc(a, opt, 1)
    if opt.get("markf") is None:
        mark(a, opt, 1)
    L = []

    def ld(k):
        out = [f"buffer_load_dwordx4 {vr(Ob + 4 * (k % NB), 4)}, v1, {WSR}, s{sAo} offen offset:{1024 * (k & 3)} sc1 ; @o{k}"]
        if k & 3 == 3:
            out.append(f"s_add_u32 s{sAo}, s{sAo}, 0x1000")
        return out
    for k in range(NB):
        L += ld(k)
    for q in range(4):
        L += [f"v_lshlrev_b32 v{Acc + 2*q}, 16, v{vXr+q}", f"v_and_b32 v{Acc + 1 + 2*q}, 0xffff0000, v{vXr+q}"]
    L += ["s_nop 1"]
    for k in range(11):
        for t in range(2):
            L.append(f"{D32} {vr(Acc + 4 * t, 4)}, {vr(168 + 8 * k + 4 * t, 4)}, {vr(Hf + 4 * k, 4)}, {vr(Acc + 4 * t, 4)}")
    def step(k):
        r = Ob + 4 * (k % NB)
        m = [f"{D32} {vr(Acc + 4 * t, 4)}, {vr(('a', 8 * k + 4 * t), 4)}, {vr(r, 4)}, {vr(Acc + 4 * t, 4)}" for t in range(2)]
        ck = [f"v_max3_u32 v{vCk}, v{vCk}, v{r}, v{r+1}", f"v_max3_u32 v{vCk}, v{vCk}, v{r+2}, v{r+3}"] if pr else []
        return [f"WAITV o{k}", m[0]] + ck + [m[1]] + (ld(k + NB) if k + NB < 32 else [])
    fn = opt.get("fnext", 20) if not pr else 31
    assert fn >= 32 - NB
    if pr:
        L.insert(0, f"v_mov_b32 v{vCk}, 0")
    for k in range(fn + 1):
        L += step(k)
    rest = sum((step(k) for k in range(fn + 1, 32)), [])
    if pr:
        L += [f"v_cmp_eq_u32 vcc, -1, v{vCk}", "s_cbranch_vccnz F_again"]
        X(f"""
        F_again:
        s_sub_u32 s{sAo}, s{sAo}, 0x8000
        s_add_u32 s{sOne}, s{sOne}, 1
        s_cmp_lt_u32 s{sOne}, {SPIN_MAX}
        s_cbranch_scc1 F_o_ok
        s_branch L_END
        """)
        late = [f"s_cmp_ge_u32 s{sU}, 128", "s_cbranch_scc1 F_red"] + fetch_next("F_h1") + ["F_red:"]
    elif opt.get("funi"):
        L += fetch_next("F_h1") + rest
        late = []
    else:
        n0 = len(resolve_waits(L))
        X.lines += ["F_last:"] + resolve_waits(L + rest)[n0:] + ["s_branch F_red"]
        L += [f"s_cmp_ge_u32 s{sU}, 128", "s_cbranch_scc1 F_last"] + fetch_next("F_h1") + rest + ["F_red:"]
        late = []
    a.lines += resolve_waits(L)
    a(f"""
    s_lshl_b32 s{sT0}, s{sW}, 11
    s_add_u32 s{sT0}, s{sT0}, s{sRed}
    v_add_u32 v{vRed}, s{sT0}, v1
    v_add_u32 v2, s{sRed}, v1
    s_xor_b32 s{sRed}, s{sRed}, 0x2000
    s_nop 2
    ds_write_b128 v{vRed}, {vr(Acc,4)}
    ds_write_b128 v{vRed}, {vr(Acc+4,4)} offset:1024
    """)
    a.lines += late
    a(f"""
    s_waitcnt lgkmcnt(0)
    s_barrier
    s_cmp_lg_u32 s{sW}, 0
    s_cbranch_scc1 F_next
    """)
    for q in range(6):
        a(f"ds_read_b128 {vr(Ob + 4 * q, 4)}, v2 offset:{2048 + 1024 * q}")
    a("s_waitcnt lgkmcnt(0)")
    for q in range(8):
        a(f"v_add_f32 v{Ob+q}, v{Ob+q}, v{Ob+8+q}\nv_add_f32 v{Acc+q}, v{Acc+q}, v{Ob+16+q}")
    for q in range(8):
        a(f"v_add_f32 v{Acc+q}, v{Acc+q}, v{Ob+q}")
    for q in range(4):
        a(cv(4 + q, Acc + 2 * q))
    a(f"buffer_store_dwordx4 v[4:7], v{vX}, s[20:23], s{sXo} offen {opt.get('outfl', '')}")
    a(f"s_waitcnt vmcnt(1)\ns_cmp_lt_u32 s{sU}, 128\ns_cbranch_scc1 F_U\ns_branch L_END")
    a.label("F_next")
    a(f"s_cmp_lt_u32 s{sU}, 128\ns_cbranch_scc1 F_U0\ns_branch L_END")
    a.lines += X.lines
```

```python
import struct
P_X, P_MEM0, P_WQ, P_WK, P_WV, P_WO = 36, 38, 40, 42, 44, 46
P_W1, P_W3, P_W2, P_OUT, P_DBG, P_WS = 52, 54, 56, 58, 60, 62
sWS = 4
sH, sW = 24, 25
sXCC = 3

DBG_TEAM = 4
DBG_READY = 72
DBG_GO = 136

WS_FL_KV = 0x0
WS_FL_O = 0x8000
WS_FL_HF = 0x10000
WS_HU = 0x17000
WS_FLAG_BYTES = 0x20000
WS_MB = 0x20000
WS_DIAG = 0x30000
WS_MB2 = 0x40000
WS_PA2 = 0x380000
WS_PA = 0x80000
WS_XN = 0x100000
WS_MEMX = 0x300000
WS_KV = 0x1000000
KV_HEAD = 0x104000
WS_ACT = 0x3200000
ACT_UNIT = 0x30000
WS_BYTES = 0x10000000

SPIN_MAX = 0x20000
C_EXP = struct.unpack("<I", struct.pack("<f", 128 ** -0.5 * 1.4426950408889634))[0]


def cleared(name):
    return ["s_mov_b32 s77, 1", f"s_atomic_add s77, s[{P_DBG}:{P_DBG+1}], {DBG_READY} glc", "s_waitcnt lgkmcnt(0)",
            "s_cmp_lg_u32 s77, 95", f"s_cbranch_scc1 {name}", "s_mov_b32 s77, 1", f"s_atomic_add s77, s[{P_DBG}:{P_DBG+1}], {DBG_GO}", f"{name}:"]


def read_tickets(name, va, vd, lane16, done):
    out = [f"v_lshlrev_b32 v{va}, 1, v0" if lane16 else f"v_lshlrev_b32 v{va}, 5, v0", f"v_and_b32 v{va}, 0xe0, v{va}", "s_mov_b32 s89, 0", f"{name}:",
           f"global_load_dword v{vd}, v{va}, s[{P_DBG}:{P_DBG+1}] sc1", "s_waitcnt vmcnt(0)"]
    out += [f"v_readlane_b32 s{80+k}, v{vd}, {k}" for k in range(8)]
    out += ["s_nop 3", "s_add_u32 s88, s80, s81"] + [f"s_add_u32 s88, s88, s{82+k}" for k in range(6)]
    out += done + ["s_sleep 16", "s_add_u32 s89, s89, 1", f"s_cmp_lt_u32 s89, {SPIN_MAX}", f"s_cbranch_scc1 {name}", "s_branch L_END"]
    return out
```

```python
import re
from asmlib import *
from layout import *

SM = "v_smfmac_f32_16x16x64_bf16"
D32 = "v_mfma_f32_16x16x32_bf16"
D16 = "v_mfma_f32_16x16x16_bf16"

L_KX, L_MEM, L_QK, L_O, L_SEL, L_W = 0, 16384, 24576, 28928, 30976, 32768

vL16, vL16b, vL16c, vIdx, vPAst, vMBst, vQKw, vQKr, vO, vKX, vVM, vFlag = range(12)
vQKown, vVMh, vPub, vVX, vVXn, vMemA = 12, 16, 18, 20, 28, 36
aK0, aQ0, aK1, aQ1, aV0, aV1 = 68, 72, 76, 80, 84, 88
vNeg, vG = 19, 10
sMode = 79
vSt = 92
vT = 124

sWv, sWq, sWk, sWo = 8, 12, 16, 20
sStep, sMBw, sMBr, sPAw, sPAr, sKV, sMX, sFL, sNeed, sTO = 26, 27, 28, 29, 30, 31, 32, 33, 34, 35
sC, sM0, sTmp, sTmp2, sMBl, sKV2, sHUw, sHUr = 64, 66, 67, 68, 69, 70, 71, 65


def own_blocks(w):
    a = w ^ 2
    return [a, a + 4]


class Plan:
    def __init__(self, w):
        self.w = w
        self.blocks = [own_blocks((w + i) % 4)[k] for k in range(2) for i in range(4)]
        seq = []
        for b in range(5):
            seq += [("K", b, 0), ("Q", b, 0), ("K", b, 1), ("Q", b, 1)]
        for t in range(2):
            for m in "KQ":
                seq += [(m, b, t) for b in (5, 6, 7)]
        self.qk = seq
        self.v = [("V", b, t) for b in range(8) for t in range(2)]
        self.o = [("O", 0, sl) for sl in range(4)]
        self.o += [("O", i, sl) for sl in range(4) for i in (1, 2, 3)]
        self.qk_lds_pos = [0, 1, 2, 3, 12, 14, 16, 18]
        self.o_lds_pos = [0, 1, 2, 3, 12, 13, 14, 15]
        lds = [self.qk[p] for p in self.qk_lds_pos] + [self.o[p] for p in self.o_lds_pos]
        self.reg = {}
        free = [("a", 8 * i) for i in range(32)] + [("v", 128 + 8 * i) for i in range(16)]
        for f in self.qk + self.v + self.o:
            if f not in lds:
                self.reg[f] = free.pop(0)
        assert not free
        self.ldsn = {}

    def name_abs(self, f):
        m, i, t = f
        return (m, self.blocks[i] if m != "O" else (self.w + i) % 4, t)

    def lds_read(self, f, dst, tag=""):
        n = self.ldsn[f]
        off = L_W + (n >> 1) * 16384 + self.w * 4096 + (n & 1) * 2048
        out = []
        for hlf in range(2):
            o = off + hlf * 1024
            base = [vL16, vL16b, vL16c][o >> 16]
            out.append(f"ds_read_b128 {vr(dst + 4 * hlf, 4)}, v{base} offset:{o & 0xffff} ; @{tag}")
        return out


def r_setup(a, opt):
    for s, p in ((sWv, P_WV), (sWq, P_WQ), (sWk, P_WK), (sWo, P_WO)):
        a(f"""
        s_mov_b32 s{s}, s{p}
        s_mov_b32 s{s+1}, s{p+1}
        s_mov_b32 s{s+2}, 0x400000
        s_mov_b32 s{s+3}, 0x20000
        """)
    a(f"""
    v_mov_b32 v12, v0
    v_lshrrev_b32 v13, 4, v12
    v_and_b32 v14, 15, v12
    v_lshlrev_b32 v{vL16}, 4, v12
    v_add_u32 v{vL16b}, 0x10000, v{vL16}
    v_add_u32 v{vL16c}, 0x20000, v{vL16}
    v_mov_b32 v{vKX}, v{vL16}
    v_bfe_u32 v15, v12, 1, 1
    v_mul_u32_u24 v15, 0xaaaa, v15
    v_add_u32 v{vIdx}, 0x4444, v15
    ; (c>>3)*32768 + (g>>1)*16384 + ((h>>1) ^ 8(g&1))*256 + (g&1)*128 + (c&7)*8
    v_and_b32 v15, 7, v14
    v_lshlrev_b32 v15, 3, v15
    v_lshrrev_b32 v16, 1, v13
    v_lshl_add_u32 v15, v16, 14, v15
    v_lshrrev_b32 v16, 3, v14
    v_lshl_add_u32 v15, v16, 15, v15
    v_and_b32 v16, 1, v13
    v_lshl_add_u32 v15, v16, 7, v15
    v_lshlrev_b32 v16, 3, v16
    s_lshr_b32 s{sTmp}, s{sH}, 1
    v_xor_b32 v16, s{sTmp}, v16
    v_lshl_add_u32 v{vPAst}, v16, 8, v15
    v_and_b32 v17, 3, v12
    v_lshlrev_b32 v15, 2, v17
    v_lshl_add_u32 v{vMBst}, v13, 4, v15
    v_lshrrev_b32 v15, 2, v14
    v_mul_u32_u24 v15, 136, v15
    v_lshl_add_u32 v15, v13, 3, v15
    v_lshl_add_u32 v{vQKw}, v17, 5, v15
    v_lshrrev_b32 v15, 1, v13
    v_mul_u32_u24 v15, 544, v15
    v_and_b32 v16, 1, v13
    v_mul_u32_u24 v16, 136, v16
    v_add_u32 v15, v15, v16
    v_lshl_add_u32 v{vQKr}, v14, 3, v15
    v_lshrrev_b32 v15, 2, v14
    v_and_b32 v16, 1, v14
    v_lshl_add_u32 v15, v15, 1, v16
    v_lshlrev_b32 v15, 4, v15
    v_lshl_add_u32 v{vO}, v13, 7, v15
    v_lshrrev_b32 v15, 3, v12
    v_and_b32 v16, 7, v12
    v_lshlrev_b32 v16, 4, v16
    v_lshl_add_u32 v{vG}, v15, 8, v16
    """)
    a(f"""
    v_mov_b32 v16, 0x3f80
    v_bfe_u32 v15, v14, 2, 1
    v_lshlrev_b32 v15, 4, v15
    v_lshlrev_b32 v16, v15, v16
    v_and_b32 v15, 11, v14
    """)
    for q in range(4):
        a(f"""
        v_cmp_eq_u32 vcc, {8 * (q & 1) + (q >> 1)}, v15
        s_nop 1
        v_cndmask_b32 v{20+q}, 0, v16, vcc
        """)
    a(f"ds_write_b128 v{vL16}, v[20:23] offset:{L_SEL}")
    a(f"""
    s_and_b32 s{sTmp}, s{sW}, 1
    s_lshl_b32 s{sTmp}, s{sTmp}, 2
    v_and_b32 v15, 1, v13
    v_or_b32 v15, s{sTmp}, v15
    v_lshlrev_b32 v15, 1, v15
    v_xor_b32 v15, v15, v14
    v_lshlrev_b32 v15, 4, v15
    v_lshl_add_u32 v15, v13, 13, v15
    s_lshr_b32 s{sTmp}, s{sW}, 1
    s_lshl_b32 s{sTmp}, s{sTmp}, 20
    s_and_b32 s{sTmp2}, s{sW}, 1
    s_lshl_b32 s{sTmp2}, s{sTmp2}, 17
    s_add_u32 s{sTmp}, s{sTmp}, s{sTmp2}
    s_lshl_b32 s{sTmp2}, s{sH}, 8
    s_add_u32 s{sTmp}, s{sTmp}, s{sTmp2}
    v_add_u32 v24, s{sTmp}, v15
    v_and_b32 v15, 1, v13
    v_lshlrev_b32 v15, 2, v15
    v_xor_b32 v15, v15, v14
    v_lshlrev_b32 v15, 4, v15
    v_lshl_add_u32 v15, v13, 10, v15
    s_lshl_b32 s{sTmp}, s{sW}, 8
    s_lshl_b32 s{sTmp2}, s{sH}, 17
    s_add_u32 s{sTmp}, s{sTmp}, s{sTmp2}
    v_add_u32 v25, s{sTmp}, v15
    ; lane fields: v15 = x (bit 2), v16 = p (bit 3), v18 = g&1, v19 = g>>1, v17 = cc
    v_bfe_u32 v15, v12, 2, 1
    v_bfe_u32 v16, v12, 3, 1
    v_and_b32 v18, 1, v13
    v_lshrrev_b32 v19, 1, v13
    v_lshl_add_u32 v28, v16, 1, v18
    v_lshl_add_u32 v29, v28, 1, v15
    v_lshl_add_u32 v28, v13, 2, v15
    v_lshl_add_u32 v28, v16, 4, v28
    s_lshl_b32 s{sTmp}, s{sW}, 1
    v_xor_b32 v29, s{sTmp}, v29
    v_lshlrev_b32 v29, 5, v29
    v_lshl_add_u32 v29, v28, 8, v29
    v_lshl_add_u32 v26, v17, 3, v29
    v_lshl_add_u32 v28, v19, 2, v15
    v_lshlrev_b32 v28, 8, v28
    v_lshl_add_u32 v28, v18, 14, v28
    v_lshl_add_u32 v29, v18, 1, v15
    v_lshl_add_u32 v28, v29, 6, v28
    v_lshl_add_u32 v28, v16, 5, v28
    v_lshl_add_u32 v28, v17, 3, v28
    s_lshl_b32 s{sTmp}, s{sW}, 12
    v_add_u32 v27, s{sTmp}, v28
    """)
    a(f"""
    s_lshl_b32 s{sMX}, s{sW}, 11
    s_lshl_b32 s{sTmp}, s{sH}, 6
    s_add_u32 s{sMX}, s{sMX}, s{sTmp}
    s_add_u32 s{sMX}, s{sMX}, {WS_MEMX}
    s_and_b32 s{sTmp}, s{sTmp}, 64
    s_lshr_b32 s{sMBw}, s{sH}, 1
    s_lshl_b32 s{sMBw}, s{sMBw}, 8
    s_add_u32 s{sMBw}, s{sMBw}, s{sTmp}
    s_lshr_b32 s{sTmp2}, s{sW}, 1
    s_lshl_b32 s{sMBr}, s{sTmp2}, 12
    s_add_u32 s{sMBw}, s{sMBw}, s{sMBr}
    s_xor_b32 s{sMBr}, s{sTmp2}, 1
    s_lshl_b32 s{sMBr}, s{sMBr}, 7
    s_and_b32 s{sTmp2}, s{sW}, 1
    s_lshl_b32 s{sTmp2}, s{sTmp2}, 7
    s_add_u32 s{sMBw}, s{sMBw}, s{sTmp2}
    s_add_u32 s{sMBw}, s{sMBw}, {opt.get('mb', WS_MB)}
    s_lshl_b32 s{sTmp2}, s{sTmp2}, 4
    s_add_u32 s{sMBr}, s{sMBr}, s{sTmp2}
    s_add_u32 s{sMBr}, s{sMBr}, {opt.get('mb', WS_MB)}
    s_add_u32 s{sMBl}, s{sMBr}, 0x1000
    s_lshl_b32 s{sPAw}, s{sW}, 16
    s_add_u32 s{sPAw}, s{sPAw}, s{sTmp}
    s_add_u32 s{sPAw}, s{sPAw}, {opt.get('pa', WS_PA)}
    s_lshr_b32 s{sPAr}, s{sH}, 1
    s_lshl_b32 s{sPAr}, s{sPAr}, 14
    s_lshl_b32 s{sTmp}, s{sTmp}, 1
    s_add_u32 s{sPAr}, s{sPAr}, s{sTmp}
    s_lshl_b32 s{sTmp}, s{sW}, 12
    s_add_u32 s{sPAr}, s{sPAr}, s{sTmp}
    s_add_u32 s{sPAr}, s{sPAr}, {opt.get('pa', WS_PA) + (0 if opt.get('pa1') else 0x40000)}
    s_lshl_b32 s{sTmp}, s{sW}, 11
    s_mul_i32 s{sKV}, s{sH}, {KV_HEAD}
    s_add_u32 s{sKV}, s{sKV}, s{sTmp}
    s_add_u32 s{sKV}, s{sKV}, {WS_KV}
    s_lshl_b32 s{sM0}, s{sW}, 11
    s_mov_b32 s{sC}, {hex(C_EXP)}
    """)
    if opt.get("rk"):
        a(f"""
    s_lshl_b32 s{sHUr}, s{sW}, 8
    s_add_u32 s{sHUr}, s{sHUr}, {WS_HU}
    s_lshl_b32 s{sHUw}, s{sH}, 2
    s_add_u32 s{sHUw}, s{sHUw}, s{sHUr}
        """)
    a(f"""
    s_mov_b32 s{sStep}, {opt.get('first', 0)}
    s_add_u32 s{sKV}, s{sKV}, {opt.get('first', 0) * 0x4000}
    s_add_u32 s{sMX}, s{sMX}, {opt.get('first', 0) * 0x2000}
    """)


def dma_chunk(w, c):
    out = []
    slot = c % 8
    for i in range(4):
        if c < 24:
            srd = [sWk, sWv, sWq][c >> 3]
            so = (256 * (c & 1) + 32 * ((c & 7) >> 1) + 4 * i) * 8192
            m0 = L_W + slot * 16384 + (16 * w + 4 * i) * 256
            vo = [24, 15][i & 1]
        else:
            srd = sWo
            so = (16 * (c - 24) + 4 * i) * 1024
            m0 = L_W + slot * 16384 + w * 4096 + 4 * i * 256
            vo = 25 if (c & 1) == 0 else 30
        out += [f"s_mov_b32 m0, {m0}", f"s_mov_b32 s{sTmp}, {so}",
                f"buffer_load_dwordx4 v{vo}, s[{srd}:{srd+3}], s{sTmp} offen lds ; @c{c}"]
    return out


def spin(a, name, load, chk, cond_ok):
    a(f"s_mov_b32 s{sTO}, 0")
    a.label(name)
    a(load)
    a(f"s_waitcnt vmcnt(0)")
    a(chk)
    a(f"""
    {cond_ok} {name}_ok
    s_add_u32 s{sTO}, s{sTO}, 1
    s_cmp_lt_u32 s{sTO}, {SPIN_MAX}
    s_cbranch_scc1 {name}
    s_branch L_END
    """)
    a.label(name + "_ok")


def sspin(a, name, load, chk):
    a(f"s_mov_b32 s{sTO}, 0")
    a.label(name)
    a(load)
    a("s_waitcnt lgkmcnt(0)")
    a(chk)
    a(f"""
    s_cbranch_scc1 {name}_ok
    s_sleep 4
    s_add_u32 s{sTO}, s{sTO}, 1
    s_cmp_lt_u32 s{sTO}, {SPIN_MAX}
    s_cbranch_scc1 {name}
    s_branch L_END
    """)
    a.label(name + "_ok")


def r_startup(w, pl, opt):
    a = Asm()
    X = Asm()
    WSR = f"s[{sWS}:{sWS+3}]"
    inv = {pl.name_abs(f): f for f in pl.qk + pl.v + pl.o}
    temps = [32 + 8 * i for i in range(12)]
    pending = []
    a("v_xor_b32 v30, 0x80, v25\nv_xor_b32 v15, 0x40, v24\nv_mov_b32 v31, v27")
    pl_ate = opt.get("palate", 0)

    def pa_init(r):
        a(f"""
        v_mov_b64 {vr(r,2)}, 0
        v_mov_b64 {vr(r+2,2)}, 0
        s_xor_b32 s{sTmp}, s{sPAr}, 0x40000
        buffer_store_dwordx4 {vr(r,4)}, v{vG}, {WSR}, s{sPAr} offen
        buffer_store_dwordx4 {vr(r,4)}, v{vG}, {WSR}, s{sPAr} offen offset:2048
        buffer_store_dwordx4 {vr(r,4)}, v{vG}, {WSR}, s{sTmp} offen
        buffer_store_dwordx4 {vr(r,4)}, v{vG}, {WSR}, s{sTmp} offen offset:2048
        s_nop 0
        """)

    def poison():
        a(f"""
        v_mov_b32 v{vNeg}, -1
        s_xor_b32 s{sTmp2}, s{sMBw}, 0x2000
        buffer_store_dword v{vNeg}, v{vMBst}, {WSR}, s{sMBw} offen
        buffer_store_dword v{vNeg}, v{vMBst}, {WSR}, s{sTmp2} offen
        """)
        if opt.get("rk"):
            a(f"v_mov_b32 v20, 0\nbuffer_store_dword v20, off, {WSR}, s{sHUw}")
        if not pl_ate:
            pa_init(20)
    if opt.get("mark0"):
        a("s_memrealtime s[96:97]\ns_waitcnt lgkmcnt(0)\ns_mov_b32 s94, s96")
        a(f"s_waitcnt vmcnt({opt['mark0']-1})\ns_memrealtime s[96:97]\ns_waitcnt lgkmcnt(0)\ns_mov_b32 s95, s96")
    pz = opt.get("pz", -1)
    hinit = opt.get("hinit") and not opt.get("r_only")
    anyp = hinit and opt.get("anyplace")
    if pz < 0 and not hinit:
        poison()
    for c in range(8):
        a("\n".join(dma_chunk(w, c)))
    a(f"""
    s_mov_b32 s72, s{P_MEM0}
    s_mov_b32 s73, s{P_MEM0+1}
    s_mov_b32 s74, 8192
    s_mov_b32 s75, 0x20000
    s_and_b32 s{sTmp}, s{sH}, 3
    s_lshl_b32 s{sTmp}, s{sTmp}, 11
    s_lshr_b32 s{sTmp2}, s{sH}, 3
    s_lshl_b32 s{sTmp2}, s{sTmp2}, 8
    s_add_u32 s{sTmp}, s{sTmp}, s{sTmp2}
    s_and_b32 s{sTmp2}, s{sH}, 4
    s_lshl_b32 s{sTmp2}, s{sTmp2}, 2
    s_add_u32 s{sTmp}, s{sTmp}, s{sTmp2}
    v_and_b32 v28, 1, v13
    v_lshlrev_b32 v28, 10, v28
    v_lshl_add_u32 v28, v17, 2, v28
    v_lshrrev_b32 v29, 1, v13
    v_lshl_add_u32 v28, v29, 5, v28
    buffer_load_dword v{vPub}, v28, s[72:75], s{sTmp} offen offset:{64 * w}
    s_lshl_b32 s{sFL}, s{sH}, 10
    s_add_u32 s{sFL}, s{sFL}, {WS_FL_KV + 4 * w}
    s_add_u32 s{sNeed}, s{sFL}, {62 * 16}
    s_add_u32 s{sFL}, s{sFL}, {16 * opt.get('first', 0)}
    """)
    def mk(c):
        for k, x in enumerate(opt.get("markr", [])):
            if x == c:
                a(f"s_memrealtime s[96:97]\ns_waitcnt lgkmcnt(0)\ns_mov_b32 s{94 + k}, s96")
    mk(-1)
    for c in range(24):
        a(f"WAITV c{c}\ns_barrier")
        mk(c)
        th = opt.get("thr")
        if th and th[0] <= c <= th[1]:
            a(f"s_and_b32 s{sTmp}, s{sH}, 3\ns_cmp_eq_u32 s{sTmp}, 1\ns_cbranch_scc1 R{w}_th{c}\nTHR {th[2]}\nR{w}_th{c}:")
        if 1 <= c and c + 7 < 32:
            a("\n".join(dma_chunk(w, c + 7)))
        zl = f"global_load_dword v{vFlag}, v16, s[{P_DBG}:{P_DBG+1}] sc1"
        if c == opt.get('goc', (12, 20))[0] and not opt.get("r_only"):
            a(f"v_mov_b32 v16, {DBG_GO}\n" + zl)
            if anyp:
                a(f"global_load_dword v14, v16, s[{P_DBG}:{P_DBG+1}] offset:{-DBG_GO} sc1")
        if c == opt.get('goc', (12, 20))[1] and not opt.get("r_only"):
            a(f"v_cmp_eq_u32 vcc, 0, v{vFlag}\ns_cbranch_vccnz R{w}_reg\nR{w}_regok:")
            X(f"R{w}_reg:")
            spin(X, f"R{w}_reg2", zl, f"v_cmp_eq_u32 vcc, 0, v{vFlag}", "s_cbranch_vccz")
            X(f"s_branch R{w}_regok")
            if anyp:
                a(f"s_mov_b32 s{sMode}, 0\nv_cmp_gt_u32 vcc, 32, v14\ns_cbranch_vccnz R{w}_md\nR{w}_mdok:")
                X(f"R{w}_md:")
                X.lines += read_tickets(f"R{w}_md2", 12, 14, True, ["s_cmp_ge_u32 s80, 32", f"s_cbranch_scc1 R{w}_mdok", "s_cmp_ge_u32 s88, 256", f"s_cbranch_scc1 R{w}_md3"])
                X(f"R{w}_md3:\ns_mov_b32 s{sMode}, 1\ns_branch R{w}_mdok")
        fl = f"buffer_load_dword v17, off, {WSR}, s{sFL} offset:16 sc1\nbuffer_load_dword v16, off, {WSR}, s{sFL} sc1"
        tl = f"global_load_dword v14, v12, s[{P_DBG}:{P_DBG+1}] sc1"
        if c == opt.get("flc", 21):
            a(("" if hinit else f"v_mov_b32 v12, {DBG_TEAM}\n" + tl + "\n") + fl + " ; @fl")
        if c in opt.get("pfc2", []):
            a(f"""
            s_getpc_b64 s[80:81]
            R{w}_pc{c}:
            v_lshlrev_b32 v20, 3, v{vL16}
            v_add_u32 v20, {opt.get("pfc2o", 2048)}, v20
            v_min_u32 v20, L_LAST-R{w}_pc{c}, v20
            global_load_dword v21, v20, s[80:81]
            """)
        if c == pz:
            poison()
        if c == (1 if pz < 0 else pz + 9) and w == 0 and not hinit:
            a(f"s_mov_b32 s78, 1\ns_atomic_add s78, s[{P_DBG}:{P_DBG+1}], {DBG_TEAM}")
        a(f"v_add_u32 v28, {L_W + (c % 8) * 16384}, v26\nv_xor_b32 v29, 32, v28")
        for t in range(2):
            f = inv[("KVQ"[c >> 3], c & 7, t)]
            if f in pl.reg:
                dst = pl.reg[f]
            else:
                dst = ("v", temps.pop(0))
                pending.append((f, dst[1]))
            for u in range(4):
                z, y = u >> 1, u & 1
                a(f"ds_read_b64_tr_b16 {vr((dst[0], dst[1] + 2 * u), 2)}, v{28 + t} offset:{(32 * z + 2 * y) * 256}")
        a("s_waitcnt lgkmcnt(0)")
    a("s_barrier")
    a("\n".join(dma_chunk(w, 31)))
    if hinit and opt.get("pub0") and not opt.get("first"):
        a(f"v_min_u32 v{vPub}, -2, v{vPub}")
        if anyp:
            a(f"s_cmp_lg_u32 s{sMode}, 0\ns_cbranch_scc1 R{w}_p0")
            X(f"R{w}_p0:\nbuffer_store_dword v{vPub}, v{vMBst}, {WSR}, s{sMBw} offen sc1\ns_branch R{w}_p0ok")
        a(f"buffer_store_dword v{vPub}, v{vMBst}, {WSR}, s{sMBw} offen{opt.get('st', '')}\nR{w}_p0ok:")
    a(f"""
    s_add_u32 s{sTmp}, s{sMBw}, 0x2000
    buffer_load_dword v15, v{vMBst}, {WSR}, s{sMBw} offen sc1
    buffer_load_dword v15, v{vMBst}, {WSR}, s{sTmp} offen sc1
    """)
    if opt.get("touch2"):
        a(f"""
        s_add_u32 s{sTmp}, s{sMBw}, 0x4000
        buffer_load_dword v15, v{vMBst}, {WSR}, s{sTmp} offen sc1
        s_add_u32 s{sTmp}, s{sMBw}, 0x6000
        buffer_load_dword v15, v{vMBst}, {WSR}, s{sTmp} offen sc1
        buffer_load_dword v15, v{vMBst}, {WSR}, s{sMX} offen sc1
        {f"buffer_load_dword v15, off, {WSR}, s{sHUr} sc1" if opt.get("rk") else ""}
        """)
    t3 = f"""
        s_xor_b32 s{sTmp}, s{sPAr}, 0x40000
        buffer_load_dword v15, v{vG}, {WSR}, s{sTmp} offen sc1
        buffer_load_dword v15, v{vG}, {WSR}, s{sTmp} offen offset:2048 sc1
        buffer_load_dword v15, v{vG}, {WSR}, s{sPAr} offen sc1
        buffer_load_dword v15, v{vG}, {WSR}, s{sPAr} offen offset:2048 sc1
        """
    if opt.get("pa1"):
        t3 = "\n".join(t3.strip().split("\n")[3:])
    if opt.get("touch3") == 1:
        a(t3)
    if pl_ate == 1:
        pa_init(20)
    nslot = 0
    for kap in range(4):
        ml = f"buffer_load_dword v{vPub}, v{vMBst}, {WSR}, s{sMX} offen sc1"
        if kap == 3 and opt.get("first"):
            a(ml)
        mk(24 + 2 * kap)
        a(f"WAITV c{25 + 2 * kap}")
        mk(25 + 2 * kap)
        if kap == pl_ate - 2:
            pa_init(20)
        if kap == 2:
            a(f"WAITV fl\nv_cmp_eq_u32 vcc, 0, v16\ns_cbranch_vccnz R{w}_kv0\nR{w}_kv0ok:")
            X(f"R{w}_kv0:")
            spin(X, f"R{w}_kv02", fl, "v_cmp_eq_u32 vcc, 0, v16", "s_cbranch_vccz")
            X(f"s_branch R{w}_kv0ok")
            a(f"""
            s_add_u32 s{sFL}, s{sFL}, 16
            s_add_u32 s{sKV2}, s{sKV}, 0x2000
            s_mov_b32 m0, s{sM0}
            v_mov_b32 v{vFlag}, v17
            buffer_load_dwordx4 v{vL16}, {WSR}, s{sKV} offen sc1 lds
            buffer_load_dwordx4 v{vL16}, {WSR}, s{sKV} offen offset:1024 sc1 lds
            buffer_load_dwordx4 {vr(vVX,4)}, v{vL16}, {WSR}, s{sKV2} offen sc1
            buffer_load_dwordx4 {vr(vVX+4,4)}, v{vL16}, {WSR}, s{sKV2} offen offset:1024 sc1
            s_add_u32 s{sKV}, s{sKV}, 0x4000
            s_add_u32 s{sKV2}, s{sKV}, 0x2000
            s_xor_b32 s{sM0}, s{sM0}, 0x2000
            """)
            if opt.get("touch3") == 2:
                a(t3)
        for sl in range(4):
            f = inv[("O", kap, sl)]
            if f in pl.reg:
                dst = pl.reg[f]
            else:
                dst = ("v", temps.pop(0))
                pending.append((f, dst[1]))
            a(f"v_xor_b32 v28, {sl * 64}, v31\nv_add_u32 v28, {L_W + 2 * kap * 16384}, v28")
            for u in range(4):
                z, y = u >> 1, u & 1
                a(f"ds_read_b64_tr_b16 {vr((dst[0], dst[1] + 2 * u), 2)}, v28 offset:{(8 * z + 2 * y) * 256}")
        a("s_waitcnt lgkmcnt(0)")
        while pending and nslot < 4 * kap + 4:
            f, r = pending.pop(0)
            pl.ldsn[f] = nslot
            off = L_W + (nslot >> 1) * 16384 + w * 4096 + (nslot & 1) * 2048
            for hlf in range(2):
                o = off + hlf * 1024
                a(f"ds_write_b128 v{[vL16, vL16b, vL16c][o >> 16]}, {vr(r + 4 * hlf, 4)} offset:{o & 0xffff}")
            temps.append(r)
            nslot += 1
        a("s_waitcnt lgkmcnt(0)")
    assert not pending and nslot == 16
    a(f"""
    {"" if opt.get("first") else f"v_min_u32 v{vPub}, -2, v{vPub}"}
    s_waitcnt vmcnt(0)
    {f"v_cmp_eq_u32 vcc, -1, v{vPub}" if opt.get("first") else "v_cmp_ne_u32 vcc, 32, v14"}
    s_mov_b32 m0, {L_MEM + w*1024 + (4096 if opt.get('dmaL') else 0)}
    """)
    for k in range(0, 8, 2):
        a(f"v_mov_b64 {vr(vVXn+k,2)}, {vr(vVX+k,2)}")
    mk(32)
    if not hinit:
        a(f"s_cbranch_vccnz R{w}_team\nR{w}_teamok:")
        X(f"R{w}_team:")
        spin(X, f"R{w}_team2", tl, "v_cmp_ne_u32 vcc, 32, v14", "s_cbranch_vccz")
        X(f"s_branch R{w}_teamok")
    if opt.get("first"):
        assert hinit
        a(f"s_cbranch_vccnz R{w}_m0\nR{w}_m0ok:")
        X(f"R{w}_m0:")
        spin(X, f"R{w}_m02", ml, f"v_cmp_eq_u32 vcc, -1, v{vPub}", "s_cbranch_vccz")
        X(f"s_branch R{w}_m0ok")
    pl.side = X.lines
    return [re.sub(r"^THR (\d+)", r"s_waitcnt vmcnt(\1)", x) for x in resolve_waits(a.lines)]


def check8(r, t0, t1):
    return [f"v_max3_u32 v{t0}, v{r}, v{r+1}, v{r+2}", f"v_max3_u32 v{t1}, v{r+3}, v{r+4}, v{r+5}",
            f"v_max3_u32 v{t0}, v{t0}, v{r+6}, v{r+7}", f"v_max_u32 v{t0}, v{t0}, v{t1}",
            f"v_cmp_eq_u32 vcc, -1, v{t0}"]


def nops(n):
    out = []
    while n > 0:
        k = min(n, 16)
        out.append(f"s_nop {k-1}")
        n -= k
    return out


def stamp(opt, k):
    if opt.get("stamps"):
        return [f"s_memtime s[{72+2*k}:{73+2*k}]"]
    return []


def r_loop(w, pl, opt):
    WSR = f"s[{sWS}:{sWS+3}]"
    L = []
    X = []
    n = f"R{w}"
    acc = {("K", 0): aK0, ("Q", 0): aQ0, ("K", 1): aK1, ("Q", 1): aQ1, ("V", 0): aV0, ("V", 1): aV1}
    cnt = lambda r, k=1: [f"s_add_u32 s{r}, s{r}, {k}"] if opt.get("stamps") and not opt.get("raw") else []
    bail = lambda lab: [f"s_add_u32 s{sTO}, s{sTO}, 1", f"s_cmp_lt_u32 s{sTO}, {SPIN_MAX}", f"s_cbranch_scc1 {lab}", "s_branch L_END"]
    par = lambda name, dflt: opt.get(name, dflt)[w]

    def sm(d, aop, b):
        return f"{SM} {vr(d,4)}, {vr(aop,4)}, {vr(b,8)}, v{vIdx}"

    def cv(d, r):
        return f"v_cvt_pk_bf16_f32 v{d}, v{r}, v{r+1}"

    def add(r):
        return f"v_add_f32 v{r}, v{r}, v{r+2}"

    def zero(r):
        return f"v_mov_b64 {vr(r,2)}, 0"

    def take(lst, k):
        out = []
        while k > 0 and lst:
            out.append(lst.pop(0))
            k -= 0 if out[-1].endswith(":") else 1
        return out + [x + " ; back-off" for x in nops(k)]

    memE, memL = vMemA, vMemA + 16
    Pa, Sel, Rd, C0, C1, C2 = 40, 12, 64, 16, (17 if not opt.get('trace') else 63), 18
    wacc = [116, 120, 80, 124]
    hold = par("hold", [0, 0, 0, 0])
    assert hold <= 2
    st2 = lambda sl: f"buffer_store_dwordx2 {vr(wacc[sl],2)}, v{vPAst}, {WSR}, s{sP[sl]} offen{opt.get('st', '')}"
    held = [st2(sl) for sl in range(4 - hold, 4)]
    iv = [zero(aK0 + k) for k in range(0, 24, 2) if aK0 + k != 80] + [zero(126)]
    idle2 = [f"s_xor_b32 s{sP[2]}, s{sP[2]}, 0x40000", f"s_xor_b32 s{sP[3]}, s{sP[3]}, 0x40000", zero(80), zero(124)]
    il = [f"ds_read_b128 {vr(Sel,4)}, v{vL16} offset:{L_SEL}"]
    for k in range(4):
        il += pl.lds_read(pl.qk[k], vSt + 8 * k, f"st{k}")
    isc = [f"s_xor_b32 s{sP[k]}, s{sP[k]}, 0x40000" for k in range(2)]
    isc += [f"s_add_u32 s{sMX}, s{sMX}, 0x2000", f"s_add_u32 s{sKV}, s{sKV}, 0x4000", f"s_add_u32 s{sKV2}, s{sKV}, 0x2000",
            f"s_xor_b32 s{sM0}, s{sM0}, 0x2000", f"s_mov_b32 m0, {L_MEM + w*1024 + (4096 if opt.get('dmaL') else 0)}"]
    idle = []
    if opt.get("idg"):
        for k, x in enumerate(iv):
            idle += [x] + isc[k:k + 1]
        for k in range(4):
            idle[4 + 6 * k:4 + 6 * k] = il[1 + 2 * k:3 + 2 * k]
        idle.insert(0, il[0] + " ; @sel")
    else:
        for k, x in enumerate(il + isc):
            idle += [x] + iv[k:k + 1]
    if opt.get("stept"):
        idle += ["s_memrealtime s[76:77]"]
    idle += ["s_waitcnt lgkmcnt(0)"]
    for k, x in enumerate(opt.get("stept", [])):
        idle += [f"s_cmp_eq_u32 s{sStep}, {x}", f"s_cselect_b32 s{94+k}, s76, s{94+k}"]
    if opt.get("raw"):
        idle += [f"s_cmp_eq_u32 s26, {opt['raw']}", "s_cselect_b32 s36, s92, s36", "s_cselect_b32 s37, s90, s37"]
        for k in range(9):
            idle += [f"s_cselect_b32 s{38+k}, s{72+2*k}, s{38+k}"]
        idle += ["s_mov_b32 s92, s88"]
    elif opt.get("trace"):
        idle += [f"v_writelane_b32 v17, s{72+2*k}, {k}" for k in range(10)]
        idle += [f"s_lshl_b32 s67, s{sH}, 2", f"s_add_u32 s67, s67, {w}", "s_lshl_b32 s67, s67, 6", f"s_add_u32 s67, s67, s{sStep}",
                 "s_lshl_b32 s67, s67, 10", f"s_add_u32 s67, s67, {WS_ACT}", "s_mov_b32 s36, s67"]
    elif opt.get("stamps"):
        idle += ["s_sub_u32 s67, s72, s90", "s_add_u32 s36, s36, s67"]
        for k in range(8):
            idle += [f"s_sub_u32 s67, s{74+2*k}, s{72+2*k}", f"s_add_u32 s{37+k}, s{37+k}, s67"]
        idle += ["s_sub_u32 s67, s90, s92", "s_cmp_gt_u32 s26, 1", "s_cselect_b32 s67, s67, 0", "s_add_u32 s45, s45, s67", "s_mov_b32 s92, s88"]
    pollA = lambda k: [f"buffer_load_dwordx4 {vr(Pa+8*k,4)}, v{vG}, {WSR}, s{sPAr} offen sc1 ; @pa{k}0",
                       f"buffer_load_dwordx4 {vr(Pa+8*k+4,4)}, v{vG}, {WSR}, s{sPAr} offen offset:2048 sc1 ; @pa{k}1"]
    pollE = [f"buffer_load_dwordx4 {vr(memE,4)}, v{vG}, {WSR}, s{sMBr} offen sc1 ; @pe"]
    pollL = [f"buffer_load_dwordx4 {vr(memL,4)}, v{vG}, {WSR}, s{sMBl} offen sc1 ; @pl"]
    rk = opt.get("rk") if par("rkon", [1, 1, 1, 1]) else None
    depA = par("depA", [1, 1, 1, 1])
    early = par("earlyE", [0, 0, 0, 0])
    L += [f"{n}_loop:"] + (["s_barrier"] if opt.get("barS", 1) else []) + (["s_waitcnt vmcnt(0)"] if opt.get("ackA") else [])
    hafter = 1 if hold and w < opt.get("hsplit", 2) else 0
    if not hafter:
        L += (take(idle, par("dH", [0, 0, 0, 0])) if hold else []) + held
        idle[0:0] = idle2
    hpos = min(opt.get("hpos", 9), depA - 1)
    for k in range(depA):
        L += take(idle, par("gapA", [16, 16, 16, 16]) if k else par("dA", [0, 0, 0, 0]))
        if k == 0 and rk:
            L += [f"s_cbranch_vccnz {n}_rk", f"{n}_rkok:"]
            X += [f"{n}_rk:"] + cnt(47, 0x10000) + take([], par("rkx", [4, 4, 4, 4]))
            if len(rk) > 2:
                X += [f"s_cmp_eq_u64 s[{sRk}:{sRk+1}], 0", f"s_cbranch_scc1 {n}_rkok"] + take([], par("rky", [12, 12, 12, 12]))
            X += [f"s_branch {n}_rkok"]
        L += pollA(k)
        if hafter and k == hpos:
            L += take(idle, par("dH", [0, 0, 0, 0])) + held
            idle[0:0] = idle2
    if early:
        L += take(idle, par("dE", [0, 0, 0, 0])) + pollE
    idn = par("idn", [99, 99, 99, 99])
    keep = lambda x: x.startswith("s_") and not x.startswith("s_waitcnt")
    L += idle[:idn] + [x for x in idle[idn:] if keep(x)]
    after = [x for x in idle[idn:] if not keep(x)]
    if after:
        assert opt.get("idg") and not any("@sel" in x for x in after) and not opt.get("stamps")
        L += ["WAITL sel"]
    ne = lambda d, r: f"v_bitop3_b32 v{d}, v{r}, v{r+1}, s{sTag} bitop3:0x7e"

    def rung(k, young):
        P = Pa + 8 * k
        out = [f"s_waitcnt vmcnt({young+1})", f"{D32} {vr(Rd,4)}, {vr(Sel,4)}, {vr(P,4)}, 0", ne(C0, P), ne(C1, P + 2),
               f"s_waitcnt vmcnt({young})"] + stamp(opt, 9)
        out += [f"{D32} {vr(Rd,4)}, {vr(Sel,4)}, {vr(P+4,4)}, {vr(Rd,4)}", ne(C2, P + 4), f"v_or3_b32 v{C0}, v{C0}, v{C1}, v{C2}",
                ne(C1, P + 6), f"v_bitop3_b32 v{C0}, v{C0}, v{C1}, 1 bitop3:0xa8", f"v_cmp_ne_u32 vcc, 0, v{C0}", "s_nop 1"]
        for rot in (4, 8):
            for q in range(2):
                out.append(f"v_add_f32_dpp v{Rd+q}, v{Rd+q}, v{Rd+q} row_ror:{rot} row_mask:0xf bank_mask:0xf")
            if rot == 4:
                out.append("s_nop 0")
        return out + [cv(vPub, Rd)]
    L += rung(0, 2 * (depA - 1) + early + hafter * hold) + [f"s_cbranch_vccnz {n}_pa1", f"{n}_pub:", f"buffer_store_dword v{vPub}, v{vMBst}, {WSR}, s{sMBw} offen{opt.get('st', '')}", f"{n}_pub2:"] + stamp(opt, 0)
    X += [f"{n}_pa1:"]
    for k in range(1, depA):
        X += cnt(46, 0x10000) + pollA(k - 1) + rung(k, 2 * (depA - 1) + early + (hafter * hold if k <= hpos else 0)) + [f"s_cbranch_vccz {n}_pub"]
    X += [f"{n}_par:"]
    for k in range(depA):
        X += cnt(46) + pollA((k - 1) % depA) + rung(k, 2 * (depA - 1)) + [f"s_cbranch_vccz {n}_pub"]
    X += bail(f"{n}_par")
    HX = check_hazards(rung(0, 0) + rung(0, 0), name=n)
    assert not HX, HX
    mx = f"buffer_store_dword v{vPub}, v{vMBst}, {WSR}, s{sMX} offen sc1"
    X += [f"{n}_last:", mx, "s_branch R_DONE"]
    top = [f"s_cmp_eq_u32 s{sStep}, {opt.get('last', 63)}", f"s_cbranch_scc1 {n}_last", f"v_cmp_eq_u32 vcc, 0, v{vFlag}"]
    top += [f"v_mov_b64 {vr(vVX+k,2)}, {vr(vVXn+k,2)}" for k in range(0, 8, 2)]
    top += [f"s_xor_b32 s{sMBp}, s{sMBw}, 0x4000", f"s_add_u32 s{sMBw}, s{sMBw}, 0x2000", f"s_bitset0_b32 s{sMBw}, 15", f"s_xor_b32 s{sPAr}, s{sPAr}, 0x40000", f"s_mov_b32 s{sTO}, 0",
            f"s_cbranch_vccnz {n}_flag", f"{n}_flagok:",
            f"s_add_u32 s{sTmp}, s{sStep}, {(2 - opt.get('first', 0)) % 4}", f"s_lshr_b32 s{sTag}, s{sTmp}, 1",
            f"s_add_u32 s{sFL}, s{sFL}, 16", f"s_min_u32 s{sFL}, s{sFL}, s{sNeed}", f"s_add_u32 s{sStep}, s{sStep}, 1"]
    top += after
    X += [f"{n}_flag:"] + (["s_add_u32 s92, s92, 1"] if opt.get("dbgout") else []) + [f"buffer_load_dword v{vFlag}, off, {WSR}, s{sFL} sc1", "s_waitcnt vmcnt(0)",
          f"v_cmp_eq_u32 vcc, 0, v{vFlag}", f"s_cbranch_vccz {n}_flagok"] + bail(f"{n}_flag")
    ck4 = lambda r: [f"v_max3_u32 v{C0}, v{r}, v{r+1}, v{r+2}", f"v_max_u32 v{C0}, v{C0}, v{r+3}", f"v_cmp_eq_u32 vcc, -1, v{C0}"]
    we = f"ds_write_b128 v{vL16}, {vr(memE,4)} offset:{L_MEM + w*1024}"
    dep = par("dep", [3, 3, 3, 3])
    dual = par("dual", [0, 0, 0, 0])
    gapE = par("gapE", [16, 16, 16, 16])
    nl = 2 if dual else 1
    look = pollE + ([f"buffer_load_dwordx4 v{vG}, {WSR}, s{sMBr} offen sc1 lds"] if dual else [])
    assert not (dual and early)
    L += take(top, par("dE", [0, 0, 0, 0]) if not early else par("dL", [0, 0, 0, 0]))
    to = [f"s_add_u32 s{sTO}, s{sTO}, 1", f"s_cmp_ge_u32 s{sTO}, {SPIN_MAX}", "s_cbranch_scc1 L_END"]

    def attempt(k):
        return [f"s_waitcnt vmcnt({k + nl - 1})"] + stamp(opt, 1) + ck4(memE) + ([f"s_waitcnt vmcnt({k})"] if dual else [we])
    preL = par("preL", [0, 0, 0, 0])
    if opt.get("dmaL"):
        assert not dual
        pollL = pollL + [f"buffer_load_dwordx4 v{vG}, {WSR}, s{sMBl} offen sc1 lds ; @pm"]
    wf = par("wfirst", [0, 0, 0, 0])
    if wf:
        assert not (dual or early or preL) and depA <= 2 and dep >= 2
        R1 = 56
        look1 = [f"buffer_load_dwordx4 {vr(R1,4)}, v{vG}, {WSR}, s{sMBr} offen sc1"]
        for k in range(dep):
            L += (look1 if k else look) + (take(top, gapE) if k < dep - 1 else top)
        L += [f"s_waitcnt vmcnt({dep-1})"] + stamp(opt, 1) + [we] + ck4(memE) + [f"{n}_peok:"]
        again = [f"s_waitcnt vmcnt({dep-1})"] + stamp(opt, 1) + ck4(R1) + [we.replace(vr(memE, 4), vr(R1, 4)),
                 f"v_mov_b64 {vr(memE,2)}, {vr(R1,2)}", f"v_mov_b64 {vr(memE+2,2)}, {vr(R1+2,2)}", "s_nop 0", f"s_cbranch_vccz {n}_peok"]
        X += [f"{n}_pe1:"] + cnt(47) + look1 + again[:-4] + ["s_nop 0"] * (wf == 1) + [zero(aK0 + 2 * k) for k in range(2 * wf)] + again[-4:]
        for k in range(2, dep):
            X += cnt(47) + look1 + again
        X += [f"{n}_pe2:"] + cnt(47) + look1 + to + again + [f"s_branch {n}_pe2"]
    elif opt.get("ladder"):
        npost = dep - (1 if early else 0)
        for k in range(npost):
            L += look + (take(top, gapE) if k < npost - 1 else [])
        nL = len(pollL) if preL else 0
        L += (take(top, preL) + pollL if preL else []) + top
        L += attempt(nl * (dep - 1) + (1 if early else 0) + nL) + [f"s_cbranch_vccnz {n}_pe1", f"{n}_peok:"]
        ok = f"{n}_peok2" if preL else f"{n}_peok"
        X += [f"{n}_pe1:"]
        for k in range(1, dep):
            X += cnt(47) + look + attempt(nl * (dep - 1) + nL) + [f"s_cbranch_vccz {ok}"]
        X += [f"{n}_pe2:"] + cnt(47) + look + to + attempt(nl * (dep - 1)) + [f"s_cbranch_vccz {ok}", f"s_branch {n}_pe2"]
        if preL:
            X += [f"{ok}:"] + pollL + [f"s_branch {n}_peok"]
    else:
        for k in range(dep - 1 - (1 if early else 0)):
            L += look + take(top, gapE)
        L += top
        if early:
            L += look + attempt(dep) + [f"s_cbranch_vccz {n}_peok"]
        L += [f"{n}_pe:"] + look + cnt(47) + to + attempt(nl * (dep - 1)) + [f"s_cbranch_vccnz {n}_pe", f"{n}_peok:"]
    V = [sm(acc[("V", f[2])], vMemA + 4 * f[1], pl.reg[f]) for f in pl.v]
    main = []
    for p, f in enumerate(pl.qk):
        b = pl.reg[f] if f in pl.reg else vSt + 8 * (pl.qk_lds_pos.index(p) % 4)
        main.append(sm(acc[(f[0], f[2])], vMemA + 4 * f[1], b))
    vf = opt.get("vfill", 0)
    assert 0 <= vf <= 5
    main[16:16] = V[2:2 + vf]
    main[4:4] = V[:2]
    V = V[:2] + V[2 + vf:] + ["NOP"] * vf
    fm = {p: [] for p in range(-1, 34 + vf)}
    fv = {p: [] for p in range(-1, 34 + vf)}
    pos = lambda q: q + 2 + (vf if q >= 16 else 0)
    pa_ = par("barA", [2, 2, 2, 2])
    pl_ = par("posL", [11, 11, 11, 11])
    pb_ = opt.get("barB", 16)
    dmaL = opt.get("dmaL", 0)
    fm[pa_] += ["s_waitcnt lgkmcnt(0)", "s_barrier"] + stamp(opt, 2)
    for b in (1, 2, 3):
        fm[pa_ + (b - 1) // 2].append(f"ds_read_b128 {vr(vMemA+4*b,4)}, v{vL16} offset:{L_MEM + ((w+b)%4)*1024} ; @ma{b}")
    rdl = lambda b: f"ds_read_b128 {vr(vMemA+4*b,4)}, v{vL16} offset:{L_MEM + 4096 + ((w+b)%4)*1024} ; @ma{b}"
    pp_ = par("posP", [0, 0, 0, 0])
    assert 0 <= pa_ <= 3 and pa_ < pl_ and pl_ + 3 - dmaL < pb_ <= 17 + vf and pp_ < pl_
    if not preL:
        fm[pp_][0:0] = pollL
    if wf:
        assert pp_ >= wf - 1 and pa_ >= wf - 1
        fm[wf - 1].insert(0, f"s_cbranch_vccnz {n}_pe1")
    free = [p for p in range(4, 15) if p != pl_ and p != pp_]
    for k in range(4):
        rd = pl.lds_read(pl.qk[pl.qk_lds_pos[4 + k]], vSt + 8 * k, f"su{k}")
        fm[free[2 * k]].append(rd[0])
        fm[free[2 * k + 1]].append(rd[1])
    for b in (1, 2, 3):
        fm[1 + 4 * b].append(f"WAITL ma{b}")
    ck = ck4(memL)
    wl = [] if dmaL else [f"ds_write_b128 v{vL16}, {vr(memL,4)} offset:{L_MEM + 4096 + w*1024} ; @lw"]
    fm[pl_] += ["WAITV pl"] + wl
    for k in range(3):
        fv[pl_ + 1 - dmaL + k].append(ck[k])
    if dmaL:
        fm[pb_ - 1] += ["WAITV pm"] + (["WAITL su3"] if pb_ >= 16 else [])
    fm[pb_] += [f"s_cbranch_vccnz {n}_plr", f"{n}_plok:"] + ([] if dmaL else ["WAITL lw"]) + ["s_barrier", rdl(5)]
    mL = f"s_mov_b32 m0, {L_MEM + 4096 + w*1024}"
    X += [f"{n}_plr:", mL, "s_nop 0"] + pollL + cnt(47, 0x10000) + [f"s_mov_b32 m0, s{sM0}", "s_waitcnt vmcnt(0)"] + wl + ck + ["s_waitcnt lgkmcnt(0)", f"s_cbranch_vccz {n}_plok"] + bail(f"{n}_plr")
    fm[pb_ + 1] += [rdl(6), rdl(7)]
    fm[pp_ + 1].insert(0, f"s_mov_b32 m0, s{sM0}")
    for k in range(4):
        fm[pos(pl.qk_lds_pos[4 + k]) - 1].append(f"WAITL su{k}")
    kvl = [f"buffer_load_dwordx4 v{vL16}, {WSR}, s{sKV} offen sc1 lds",
           f"buffer_load_dwordx4 v{vL16}, {WSR}, s{sKV} offen offset:1024 sc1 lds",
           f"buffer_load_dwordx4 {vr(vVXn,4)}, v{vL16}, {WSR}, s{sKV2} offen sc1",
           f"buffer_load_dwordx4 {vr(vVXn+4,4)}, v{vL16}, {WSR}, s{sKV2} offen offset:1024 sc1",
           f"buffer_load_dword v{vFlag}, off, {WSR}, s{sFL} sc1",
           f"buffer_store_dword v{vNeg}, v{vMBst}, {WSR}, s{sMBp} offen{opt.get('st', '')}", mx]
    if opt.get("nokv"):
        kvl[0:4] = ["s_nop 0"] * 4
    if opt.get("trace"):
        kvl[6] = f"buffer_store_dword v17, v{vL16}, {WSR}, s36 offen"
    kvp = [x + par("kvoff", [0, 0, 0, 0]) for x in opt.get("kvpos", [20, 22, 25, 28, 21, 23, 31])]
    if opt.get("kvw"):
        kvp = opt["kvw"][w]
    later = {}
    for k, g in enumerate(kvl):
        assert kvp[k] + vf > max(3, max(opt.get("posP", [0])) + 1) and kvp[k] < 48
        if kvp[k] < 34:
            fm[kvp[k] + vf].insert(0, g)
        else:
            later.setdefault(kvp[k] + vf, []).append(g)
    for b in (5, 6, 7):
        fm[16 + vf + b].append(f"WAITL ma{b}")
    Tq = 92
    kx = {(0, 0): 104, (1, 0): 108, (0, 1): 112, (1, 1): 116, (0, 2): 120, (0, 3): 80, (1, 2): 104, (1, 3): 108}

    def kxr(t, i):
        return f"ds_read_b128 {vr(kx[(t,i)],4)}, v{vKX} offset:{L_KX + ((w+i)%4)*2048 + t*1024} ; @kx{t}{i}"
    for p, (t, i) in zip([24, 26, 27, 29, 30], [(0, 0), (1, 0), (0, 1), (1, 1), (0, 2)]):
        fm[p + vf].append(kxr(t, i))
    for k, x in enumerate([add(aK0), add(aK0 + 1), cv(Tq, aK0), add(aQ0), add(aQ0 + 1), cv(Tq + 1, aQ0), add(aK1), add(aK1 + 1)]):
        fv[26 + vf + k].append(x)
    fm[32 + vf].append(f"ds_write_b64 v{vQKw}, {vr(Tq,2)} offset:{L_QK + w*1088}")
    L += weave(main, {p: fm[p] + fv[p] for p in fm}) + stamp(opt, 3)
    qk = [vQKown, 92, 96, 100]

    def qkr(i, y):
        return f"ds_read_b64_tr_b16 {vr(qk[i]+2*y,2)}, v{vQKr} offset:{L_QK + ((w+i)%4)*1088 + y*272} ; @qk{i}"
    L += [V[2], f"s_add_u32 s{sMBr}, s{sMBr}, 0x2000", f"s_bitset0_b32 s{sMBr}, 15", cv(Tq + 2, aK1), f"s_add_u32 s{sMBl}, s{sMBr}, 0x1000",
          add(aQ1), add(aQ1 + 1), cv(Tq + 3, aQ1),
          f"ds_write_b64 v{vQKw}, {vr(Tq+2,2)} offset:{L_QK + w*1088 + 544} ; @qw",
          qkr(0, 0), qkr(0, 1), V[3]] + ([] if opt.get("kxlate") else [kxr(0, 3)]) + [V[4], V[5]]
    e1 = opt.get("e1", 1)
    assert 0 <= e1 <= 2
    L += V[6:6 + e1] + ["WAITL qw", "s_barrier"] + stamp(opt, 4) + [qkr(1, 0), qkr(1, 1)] + V[6 + e1:8] + [qkr(2, 0)]
    Sx0, Sx1, Sm = 68, 72, 76
    T0, T1, T2 = 78, 79, 96

    def smm(d, aop, i):
        return f"{D32} {vr(d,4)}, {vr(aop,4)}, {vr(qk[i],4)}, " + ("0" if i == 0 else vr(d, 4))
    Px, Pm, One, Oa, La = 104, 108, 112, 92, 100
    Op, oA = 84, [88, 68, 72, 76]
    L += ["WAITL qk0", smm(Sm, qk[0], 0), qkr(2, 1), qkr(3, 0), smm(Sx0, kx[(0, 0)], 0), qkr(3, 1), kxr(1, 2), smm(Sx1, kx[(1, 0)], 0),
          kxr(0, 3) if opt.get("kxlate") else kxr(1, 3), "WAITL qk1", smm(Sm, qk[1], 1), kxr(1, 3) if opt.get("kxlate") else "SO", smm(Sx0, kx[(0, 1)], 1),
          f"v_mov_b64 {vr(One,2)}, s[{s01}:{s01+1}]" if opt.get("pack", 0) else f"v_mov_b64 {vr(One,2)}, s[{sOnes}:{sOnes+1}]",
          f"v_mov_b64 {vr(One+2,2)}, s[{sOnes}:{sOnes+1}]",
          smm(Sx1, kx[(1, 1)], 1), "WAITL qk3", zero(wacc[0]), zero(wacc[0] + 2),
          ]
    merge = lambda d, r: f"v_cndmask_b32_dpp v{d}, v{r}, v{d}, vcc quad_perm:[2,3,2,3] row_mask:0xf bank_mask:0xf"
    ml_ = opt.get("mlast", 0)
    Tx = vQKown
    if ml_:
        assert opt.get("pack") and not opt.get("kxlate")
        L += [smm(Sx0, kx[(0, 2)], 2), f"s_mov_b64 vcc, s[{sMaskQ}:{sMaskQ+1}]", zero(wacc[1]), zero(wacc[1] + 2),
              smm(Sx0, kx[(0, 3)], 3), "WAITL kx13", zero(wacc[2]), zero(wacc[2] + 2),
              smm(Sx1, kx[(1, 2)], 2), f"v_xor_b32 v{vKX}, 0x2000, v{vKX}", f"v_mov_b32 v{vVMh}, s{sC}",
              smm(Sx1, kx[(1, 3)], 3), f"v_max3_f32 v{Tx}, v{Sx0}, v{Sx0+1}, v{Sx0+2}", f"v_mov_b32 v{Pm+1}, 0",
              smm(Sm, qk[2], 2), f"v_max_f32 v{Tx}, v{Tx}, v{Sx0+3}", f"v_mov_b32 v{Pm+2}, 0",
              smm(Sm, qk[3], 3)] + stamp(opt, 5)
    else:
        L += [
              smm(Sm, qk[2], 2), "SO", f"v_xor_b32 v{vKX}, 0x2000, v{vKX}", smm(Sm, qk[3], 3), "SO", f"v_mov_b32 v{vVMh}, s{sC}" if opt.get("pack", 0) else "NOP2",
              smm(Sx0, kx[(0, 2)], 2), "WAITL kx03", zero(wacc[1]), zero(wacc[1] + 2),
              smm(Sx0, kx[(0, 3)], 3), "WAITL kx13", zero(wacc[2]), zero(wacc[2] + 2),
              smm(Sx1, kx[(1, 2)], 2)]
        if opt.get("pack", 0):
            L += [f"s_mov_b64 vcc, s[{sMaskQ}:{sMaskQ+1}]", f"v_max_f32 v{T0}, v{Sm}, v{Sm+1}", merge(Sm, Sm + 1)]
        else:
            L += ["SO", f"v_max_f32 v{T0}, v{Sm}, v{Sm+1}"]
        L += [smm(Sx1, kx[(1, 3)], 3)] + stamp(opt, 5)
    so = []
    for k in range(4):
        so += pl.lds_read(pl.o[k], vMemA + 8 * k, f"so{k}")

    def fma(r):
        return f"v_fma_f32 v{r}, v{r}, s{sC}, -v{T0}"

    def ex(r):
        return f"v_exp_f32 v{r}, v{r}"
    if ml_:
        L += [f"v_max3_f32 v{Tx}, v{Tx}, v{Sx1}, v{Sx1+1}", f"v_max3_f32 v{Tx}, v{Tx}, v{Sx1+2}, v{Sx1+3}",
              V[8], "SO", merge(Sx0, Sx1), merge(Sx0 + 1, Sx1 + 1),
              f"v_max3_f32 v{T1}, v{Tx}, v{Sm}, v{Sm+1}", f"v_max3_f32 v{T2}, v{Tx}, v{Sm}, v{Sm+1}"]
    else:
        L += [f"v_max3_f32 v{T0}, v{T0}, v{Sx0}, v{Sx0+1}", f"v_max3_f32 v{T0}, v{T0}, v{Sx0+2}, v{Sx0+3}",
              V[8], "SO", f"v_mov_b32 v{Pm+1}, 0", f"v_mov_b32 v{Pm+2}, 0",
              f"v_max3_f32 v{T0}, v{T0}, v{Sx1}, v{Sx1+1}",
              f"v_max3_f32 v{T1}, v{T0}, v{Sx1+2}, v{Sx1+3}", f"v_max3_f32 v{T2}, v{T0}, v{Sx1+2}, v{Sx1+3}"]
    L += [V[9], "SO", f"v_permlane16_swap_b32 v{T1}, v{T2}",
          f"v_max_f32 v{T0}, v{T1}, v{T2}", f"v_max_f32 v{T1}, v{T1}, v{T2}",
          V[10], "SO", f"v_permlane32_swap_b32 v{T0}, v{T1}", f"v_max_f32 v{T0}, v{T0}, v{T1}",
          V[11], "SO"]
    pk = opt.get("pack", 0)
    vepi = [add(aV0), add(aV0 + 1), add(aV1), add(aV1 + 1), cv(vVMh, aV0), cv(vVMh + 1, aV1)]
    if not pk:
        L += [f"v_mul_f32 v{T0}, s{sC}, v{T0}",
              V[12], "SO", fma(Sm), V[13], "SO", fma(Sm + 1), V[14], "SO", fma(Sx0), V[15], "SO", fma(Sx0 + 1),
              ex(Sm), ex(Sm + 1), fma(Sx0 + 2), fma(Sx0 + 3), cv(Pm, Sm), cv(Pm + 3, Sm)] + vepi
    dn = opt.get("dnorm", 0)

    def mul(r, q=0):
        return f"v_mul_f32 v{r}, v{La+q}, v{r}"

    def pmul(r):
        return f"v_pk_mul_f32 {vr(r,2)}, {vr(r,2)}, {vr(La,2)} op_sel_hi:[1,0]"
    ow = [f"s_mov_b64 exec, s[{sMaskQ}:{sMaskQ+1}]", f"ds_write_b128 v{vO}, {vr(Op,4)} offset:{L_O + w*512} ; @ow", "s_mov_b64 exec, -1"]
    dup = [f"v_mov_b32_dpp v{oA[0]+q}, v{Op+q} quad_perm:[2,3,2,3] row_mask:0xf bank_mask:0xf" for q in range(4)]
    if pk:
        assert not dn
        back = lambda d, r: f"v_mov_b32_dpp v{d}, v{r} quad_perm:[0,1,0,1] row_mask:0xf bank_mask:0xf"
        padd = lambda r: f"v_pk_add_f32 {vr(r,2)}, {vr(r,2)}, {vr(r+2,2)}"
        pfma = lambda r: f"v_pk_fma_f32 {vr(r,2)}, {vr(r,2)}, s[{sC2}:{sC2+1}], {vr(T0,2)} op_sel_hi:[1,1,0] neg_lo:[0,0,1] neg_hi:[0,0,1]"
        La = Sx1
        L += [f"v_mul_f32_dpp v{T0}, v{T0}, v{vVMh} quad_perm:[2,3,2,3] row_mask:0xf bank_mask:0xf",
              ]
        if ml_:
            L += [V[12], "SO", merge(Sm, Sm + 1), V[13], "SO", merge(Sx0 + 2, Sx1 + 2), V[14], "SO", merge(Sx0 + 3, Sx1 + 3), V[15], "SO"]
        else:
            L += [V[12], "SO", merge(Sx0, Sx1), V[13], "SO", merge(Sx0 + 1, Sx1 + 1), V[14], "SO", merge(Sx0 + 2, Sx1 + 2),
                  V[15], "SO", merge(Sx0 + 3, Sx1 + 3)]
        L += [fma(Sm), ex(Sm), pfma(Sx0), pfma(Sx0 + 2), back(Sm + 1, Sm), padd(aV0), padd(aV1),
              cv(Pm, Sm), cv(Pm + 3, Sm)] + vepi[4:]
        L += [ex(Sx0), ex(Sx0 + 1), f"{D16} {vr(Oa,4)}, {vr(vVMh,2)}, {vr(Pm,2)}, 0", cv(Px, Sx0), ex(Sx0 + 2),
              f"{D16} {vr(Oa+4,4)}, {vr(vVMh,2)}, {vr(Pm+2,2)}, 0", ex(Sx0 + 3), f"v_cvt_pk_bf16_f32 v{Px-1}, v{Sm}, 0",
              cv(Px + 1, Sx0 + 2), back(Px + 2, Px), "s_nop 0",
              f"{D32} {vr(La,4)}, {vr(One,4)}, {vr(Px-2,4)}, 0", back(Px + 3, Px + 1), "s_nop 1",
              f"{D32} {vr(Oa,4)}, {vr(vVX,4)}, {vr(Px,4)}, {vr(Oa,4)}", "SO", "SO",
              f"{D32} {vr(Oa+4,4)}, {vr(vVX+4,4)}, {vr(Px,4)}, {vr(Oa+4,4)}", "SO"] + stamp(opt, 6)
        L += [f"v_add_f32_dpp v{La}, v{La}, v{La} quad_perm:[2,3,0,1] row_mask:0xf bank_mask:0xf", f"v_rcp_f32 v{La}, v{La}"]
        if opt.get("osplit", 0) == 1:
            L += [ow[0], mul(Oa), mul(Oa + 1), mul(Oa + 2), mul(Oa + 3), cv(Op, Oa), cv(Op + 1, Oa + 2),
                  f"ds_write_b64 v{vO}, {vr(Op,2)} offset:{L_O + w*512}", pmul(Oa + 4), pmul(Oa + 6), cv(Op + 2, Oa + 4), cv(Op + 3, Oa + 6),
                  f"ds_write_b64 v{vO}, {vr(Op+2,2)} offset:{L_O + w*512 + 8} ; @ow", ow[2]]
        elif opt.get("osplit", 0) == 2:
            L += ["s_nop 4"] + [merge(Oa + q, Oa + 4 + q) for q in range(4)] + [pmul(Oa), pmul(Oa + 2), cv(Op, Oa), cv(Op + 1, Oa + 2),
                  f"ds_write_b64 v{vVMh+1}, {vr(Op,2)} offset:{L_O + w*512} ; @ow"]
            dup = [f"v_mov_b32_dpp v{oA[0]+q}, v{Op+(q&1)} quad_perm:[{'2,3,2,3' if q < 2 else '0,1,0,1'}] row_mask:0xf bank_mask:0xf" for q in range(4)]
            L[L.index("s_nop 4")] = f"v_cndmask_b32 v{vVMh+1}, 8, {0}, vcc".replace(", 0, vcc", f", v{Pm+1}, vcc")
            L.insert(L.index(merge(Oa, Oa + 4)), f"v_add_u32 v{vVMh+1}, v{vVMh+1}, v{vO}")
            L.insert(L.index(merge(Oa, Oa + 4)), "s_nop 1")
        else:
            L += ["s_nop 0", mul(Oa), mul(Oa + 1), mul(Oa + 2), mul(Oa + 3), pmul(Oa + 4), pmul(Oa + 6),
                  cv(Op, Oa), cv(Op + 1, Oa + 2), cv(Op + 2, Oa + 4), cv(Op + 3, Oa + 6)] + ow
        L += dup + ["WAITL so3", "s_nop 0"]
    elif not dn:
        L += [f"{D16} {vr(La,4)}, {vr(One,2)}, {vr(Pm,2)}, 0", ex(Sx0), fma(Sx1),
              f"{D16} {vr(Oa,4)}, {vr(vVMh,2)}, {vr(Pm,2)}, 0", ex(Sx0 + 1), fma(Sx1 + 1),
              f"{D16} {vr(Oa+4,4)}, {vr(vVMh,2)}, {vr(Pm+2,2)}, 0", fma(Sx1 + 2), fma(Sx1 + 3),
              ex(Sx0 + 2), ex(Sx0 + 3), ex(Sx1), ex(Sx1 + 1), ex(Sx1 + 2), ex(Sx1 + 3),
              cv(Px, Sx0), cv(Px + 1, Sx0 + 2), cv(Px + 2, Sx1), cv(Px + 3, Sx1 + 2), "s_nop 1",
              f"{D32} {vr(La,4)}, {vr(One,4)}, {vr(Px,4)}, {vr(La,4)}", "SO", "SO",
              f"{D32} {vr(Oa,4)}, {vr(vVX,4)}, {vr(Px,4)}, {vr(Oa,4)}", "SO", "SO",
              f"{D32} {vr(Oa+4,4)}, {vr(vVX+4,4)}, {vr(Px,4)}, {vr(Oa+4,4)}"] + stamp(opt, 6)
        L += [f"v_rcp_f32 v{La}, v{La}", "s_nop 1", mul(Oa), mul(Oa + 1), mul(Oa + 2), mul(Oa + 3), pmul(Oa + 4), pmul(Oa + 6),
              cv(Op, Oa), cv(Op + 1, Oa + 2), cv(Op + 2, Oa + 4), cv(Op + 3, Oa + 6)] + ow + dup + ["WAITL so3", "s_nop 0"]
    else:
        L += [ex(Sx0), fma(Sx1), f"{D16} {vr(Oa,4)}, {vr(vVMh,2)}, {vr(Pm,2)}, 0", ex(Sx0 + 1), fma(Sx1 + 1),
              f"{D16} {vr(Oa+4,4)}, {vr(vVMh,2)}, {vr(Pm+2,2)}, 0", fma(Sx1 + 2), fma(Sx1 + 3),
              ex(Sx0 + 2), ex(Sx0 + 3), ex(Sx1), ex(Sx1 + 1), ex(Sx1 + 2), ex(Sx1 + 3),
              cv(Px, Sx0), cv(Px + 1, Sx0 + 2), cv(Px + 2, Sx1), cv(Px + 3, Sx1 + 2), "s_nop 1",
              f"{D32} {vr(Oa,4)}, {vr(vVX,4)}, {vr(Px,4)}, {vr(Oa,4)}", "SO", "SO",
              f"{D32} {vr(Oa+4,4)}, {vr(vVX+4,4)}, {vr(Px,4)}, {vr(Oa+4,4)}"] + stamp(opt, 6)
        L += ["SO", "SO", f"{D16} {vr(La,4)}, {vr(Pm,2)}, {vr(One,2)}, 0", cv(Op, Oa), cv(Op + 1, Oa + 2), "s_nop 1",
              cv(Op + 2, Oa + 4), cv(Op + 3, Oa + 6)] + ow + [f"{D32} {vr(La,4)}, {vr(Px,4)}, {vr(One,4)}, {vr(La,4)}"] + dup + ["WAITL so3", "s_nop 0"]
    if rk:
        ev = [f"buffer_store_dword v{vKX}, off, {WSR}, s{sHUw}{opt.get('st', '')}", f"buffer_load_dword v15, v14, {WSR}, s{sHUr} offen sc1 ; @rk",
              f"buffer_load_dword v13, v14, {WSR}, s{sHUr} offen sc1 ; @rk"]
        for p, x in zip(rk, ev):
            k = L.index(V[p])
            assert L[k + 1] == "SO" and V[p] != "NOP"
            L[k + 1] = x
        k = L.index(smm(Sx0, kx[(0, 1)], 1))
        L.insert(k, f"v_bfe_u32 v14, v{vL16}, 2, 7")
    for i, x in enumerate(L):
        if x == "SO":
            r = vMemA + 4 * (8 - len(so))
            busy = not so or L[i - 1] == "NOP" or any(y.startswith(SM) and f", {vr(r,4)}, " in y for y in L[i:])
            L[i] = "NOP2" if busy else so.pop(0)
    assert not so
    main = []
    for p, f in enumerate(pl.o):
        b = pl.reg[f] if f in pl.reg else vMemA + 8 * (pl.o_lds_pos.index(p) % 4)
        main.append(sm(wacc[f[2]], oA[f[1]], b))
    fill = {p: [] for p in range(-1, 16)}
    po = opt.get("barpos2", 0)
    assert 0 <= po <= 2
    fill[po] += ["WAITL ow", "s_barrier"] + stamp(opt, 7)
    for i in (1, 2, 3):
        fill[po].append(f"ds_read_b128 {vr(oA[i],4)}, v{vO} offset:{L_O + ((w+i)%4)*512} ; @oa{i}")
    for k in range(4):
        rd = pl.lds_read(pl.o[pl.o_lds_pos[4 + k]], vMemA + 8 * k, f"sp{k}")
        fill[[1, 3, 5, 6][k]].append(rd[0])
        fill[[2, 4, 6, 7][k]].append(rd[1])
    fill[10].append("WAITL sp3")
    for i in (1, 2, 3):
        fill[2 + i].append(f"WAITL oa{i}")

    def out(sl):
        r = wacc[sl]
        sc = [] if not dn else [mul(r + q, 2 + (q & 1)) for q in range(4)] if sl < 3 else \
            [f"v_pk_mul_f32 {vr(r+q,2)}, {vr(r+q,2)}, {vr(La+2,2)}" for q in (0, 2)]
        return sc + [cv(r, r), cv(r + 1, r + 2), f"v_bfi_b32 v{r}, 1, s{sTag}, v{r}", f"v_bfi_b32 v{r+1}, 1, s{sTag}, v{r+1}",
                     st2(sl) if sl < 4 - hold else "s_nop 0"]
    if dn:
        fill[1].append(f"v_rcp_f32 v{La+2}, v{La+2}")
        fill[2].append(f"v_rcp_f32 v{La+3}, v{La+3}")
    wp = opt.get("wpos", [8, 8, 8, 8, 9, 11, 11, 11, 11, 12, 14, 14, 14, 14, 15])
    tail = []
    for sl in range(3):
        o = out(sl)
        p = wp[5 * sl:5 * sl + 5]
        assert p == sorted(p) and p[0] >= 7 + 3 * sl and p[4] <= 16
        if p[0] == 7 + 3 * sl:
            fill[p[0]] += nops(4 - len([x for x in fill[p[0]] if not x.startswith("WAIT")]))
        fill[min(p[0], 15)] += o[:-5]
        for q, x in zip(p, o[-5:]):
            if q == 16:
                tail.append(x)
            elif x.startswith("v_") or q == p[3]:
                fill[q].append(x)
            else:
                fill[q].insert(0, x)
    if rk:
        tail += ["WAITV rk", f"v_bitop3_b32 v15, v15, v{vKX}, s{s2k} bitop3:0x28"]
        if len(rk) > 2:
            tail += [f"v_bitop3_b32 v13, v13, v{vKX}, s{s2k} bitop3:0x28", f"v_cmp_ne_u32 s[{sRk}:{sRk+1}], 0, v13"]
        tail += ["v_cmp_ne_u32 vcc, 0, v15"]
    body = weave(main, fill) + tail
    for k in range(8):
        if not check_hazards([x for x in body[-24:] if not x.startswith("WAIT")] + nops(k) + out(3)):
            break
    L += body + nops(k) + out(3) + stamp(opt, 8) + [f"s_branch {n}_loop"]
    if opt.get("pa1"):
        L = ["s_nop 0" if x.endswith(", 0x40000") else x for x in L]
        k = L.index(f"s_lshr_b32 s{sTag}, s{sTmp}, 1")
        L[k - 1:k + 1] = [f"s_add_u32 s{sTag}, s{sStep}, {(1 - opt.get('first', 0)) % 2}", "s_nop 0"] if L[k - 1].startswith(f"s_add_u32 s{sTmp}") else None
    L = [x for x in L if x not in ("NOP", "NOP2")]
    i0 = L.index(f"{n}_peok:")
    mf = [i for i in range(i0, len(L)) if L[i].startswith("v_smfmac") or L[i].startswith("v_mfma")]
    for p in sorted(later, reverse=True):
        L[mf[p] + 1:mf[p] + 1] = later[p]
    if opt.get("fine"):
        L = [x for x in L if not any(x == stamp(opt, k)[0] for k in range(3, 8))]
        i0 = L.index(f"{n}_peok:")
        mf = [i for i in range(i0, len(L)) if L[i].startswith("v_smfmac") or L[i].startswith("v_mfma")]
        for k, p in reversed(list(enumerate(opt["fine"]))):
            L.insert(mf[p] + 1, stamp(opt, 3 + k)[0])
    if opt.get("nocheck"):
        L = [x for x in L if not (x.startswith("s_cbranch_vccnz") and ("_pa1" in x or "_pe1" in x or "_plr" in x))]
    for pat in opt.get("drop", []):
        L = [x for x in L if x.startswith("s_") or x.endswith(":") or not re.search(pat, x)]
    assert f"s_cbranch_scc1 {n}_last" in L and f"s_add_u32 s{sStep}, s{sStep}, 1" in L and f"s_cmp_eq_u32 s{sStep}, {opt.get('last', 63)}" in L
    L = resolve_waits(L)
    if opt.get("al8"):
        L = align8(L)
    errs = check_hazards(L + L[:60], name=n) if not (opt.get("nocheck") or opt.get("drop")) else []
    for e in errs:
        print("HAZARD", e)
    assert not errs
    return L, X, iv + idle2[2:] + il + [f"v_mov_b64 {vr(memE,2)}, -1", f"v_mov_b64 {vr(memE+2,2)}, -1", f"v_mov_b32 v{vNeg}, -1"]


sMaskQ, sOnes, sTag, sMBp, sC2, s01, sRk, s2k = 14, 16, 18, 19, 12, 20, 22, 11
sP = [sPAw, 8, 9, 10]
sG = [50, 52, 54]


SLOW = dict(st=" sc1", mb=WS_MB2, pa=WS_PA2, first=0, touch2=0, touch3=0, pfc2=[], hold=[0] * 4, dH=[0] * 4, depA=[1] * 4, dep=[1] * 4,
            dA=[40] * 4, dE=[20] * 4, idg=0, idn=[99] * 4, diag=0, stamps=0, markr=[], stept=[], dbgout=0, ackA=1, flc=23, goc=(14, 22))


def role_s(a, opt):
    o = dict(opt)
    o.update(SLOW)
    o.update(opt.get("slow", {}))
    o["last"] = opt["first"]
    b = Asm()
    role_r(b, o)
    assert b.lines.pop() == "s_branch L_END"
    a.label("ROLE_S0")
    a(f"""
    s_mov_b32 s84, s{sH}
    s_sub_u32 s{sTmp}, s{sXCC}, 1
    s_lshl_b32 s{sTmp}, s{sTmp}, 3
    s_and_b32 s{sH}, s{sH}, 7
    s_add_u32 s{sH}, s{sH}, s{sTmp}
    """)
    a.lines += [re.sub(r"\bR([0-3]_|_DONE)", r"S\1", x).replace("ROLE_R", "ROLE_S") for x in b.lines]
    if opt.get("diag") and opt.get("marks"):
        a("s_memrealtime s[96:97]\ns_waitcnt lgkmcnt(0)\ns_mov_b32 s91, s96")
    a(f"""
    s_waitcnt vmcnt(0) lgkmcnt(0)
    s_barrier
    s_mov_b32 s{sH}, s84
    v_lshrrev_b32 v0, 4, v{vL16}
    s_branch ROLE_FU
    """)


def role_r(a, opt):
    a.label("ROLE_R")
    r_setup(a, opt)
    for w in (1, 2, 3):
        a(f"s_cmp_eq_u32 s{sW}, {w}\ns_cbranch_scc1 R{w}_start")
    slow = []
    for w in range(4):
        pl = Plan(w)
        a.label(f"R{w}_start")
        st = r_startup(w, pl, opt)
        for e in check_hazards(st, timeaware=False, name=f"R{w}start"):
            print("HAZARD", e)
        a.lines += st
        a(f"""
        s_add_u32 s{sP[1]}, s{sPAw}, 0x1000
        s_add_u32 s{sP[2]}, s{sPAw}, 0x2000
        s_add_u32 s{sP[3]}, s{sPAw}, 0x3000
        s_mov_b32 s{s01}, 0
        {f"s_mov_b32 s{s2k}, 0x2000" if opt.get("rk") else ""}
        s_mov_b32 s{s01+1}, 0x3f803f80
        s_mov_b32 s{sC2}, s{sC}
        s_mov_b32 s{sC2+1}, s{sC}
        s_mov_b32 s{sMaskQ}, 0xcccccccc
        s_mov_b32 s{sMaskQ+1}, 0xcccccccc
        s_mov_b32 s{sOnes}, 0x3f803f80
        s_mov_b32 s{sOnes+1}, 0x3f803f80
        """)
        if opt.get("dbgout"):
            a("s_mov_b32 s92, 0")
        if opt.get('stamps'):
            for k in range(36, 50):
                a(f's_mov_b32 s{k}, 0')
            a('s_memtime s[90:91]')
            if opt.get("trace"):
                a(f"s_mov_b32 s36, {WS_XN + 0x180000}")
        if opt.get("diag"):
            a("s_memtime s[96:97]\ns_memrealtime s[98:99]\ns_waitcnt lgkmcnt(0)")
        L, X, idle = r_loop(w, pl, opt)
        a.lines += idle
        done0 = opt.get("hinit") and opt.get("pub0") and not opt.get("r_only") and not opt.get("first")
        a("s_waitcnt lgkmcnt(0)")
        if opt.get("anyplace") and not opt.get("r_only"):
            assert done0
            a(f"s_cmp_lg_u32 s{sMode}, 0\ns_cbranch_scc1 S{w}_pub2")
            o2 = dict(opt)
            o2.update({k: SLOW[k] for k in ("st", "hold", "dH", "depA", "dep", "dA", "dE", "idg", "idn", "ackA", "stamps", "stept")})
            L2, X2, _ = r_loop(w, pl, o2)
            slow += [re.sub(r"\bR([0-3]_)", r"S\1", x) for x in L2 + X2]
        a(f"s_branch R{w}_pub{'2' if done0 else ''}")
        a(".p2align 6")
        a.lines += ["s_nop 0"] * (2 * opt.get("shift", [0] * 4)[w])
        if opt.get("alx"):
            for lab in ("pa1", "pe1"):
                X.insert(X.index(f"R{w}_{lab}:"), ".p2align 5")
        a.lines += L + X + pl.side
    a.lines += slow
    a.label("R_DONE")
    if opt.get("wb"):
        a(f"s_cmp_lg_u32 s{sW}, 0\ns_cbranch_scc1 R_NOWB\ns_cmp_lg_u32 s{sH}, 0\ns_cbranch_scc1 R_NOWB\ns_waitcnt vmcnt(0)\nbuffer_wbl2 sc1\ns_waitcnt vmcnt(0)")
        a.label("R_NOWB")
    if opt.get("diag"):
        a(f"""
        s_memtime s[72:73]
        s_memrealtime s[74:75]
        s_waitcnt lgkmcnt(0)
        s_mov_b32 s49, s72
        s_sub_u32 s72, s72, s96
        s_mov_b32 s93, s72
        v_mov_b32 v20, s72
        v_mov_b32 v21, s100
        v_mov_b32 v22, s98
        v_mov_b32 v23, s74
        s_lshl_b32 s72, s{sH}, 2
        s_add_u32 s72, s72, s{sW}
        s_lshl_b32 s72, s72, 6
        s_add_u32 s72, s72, {WS_DIAG}
        buffer_store_dwordx4 v[20:23], off, s[{sWS}:{sWS+3}], s72
        """)
        if opt.get("raw"):
            a("s_mov_b32 s47, s49")
        for k in range(12):
            a(f"v_mov_b32 v{24+k}, s{36+k}")
        for k in range(3):
            a(f"buffer_store_dwordx4 v[{24+4*k}:{27+4*k}], off, s[{sWS}:{sWS+3}], s72 offset:{16+16*k}")
        if opt.get("raw") or opt.get("trace"):
            a("s_sleep 40\ns_add_u32 s72, s72, 0x2000")
            for k in range(8):
                a(f"s_memtime s[{36+4*k}:{37+4*k}]\ns_memrealtime s[{38+4*k}:{39+4*k}]")
            a("s_waitcnt lgkmcnt(0)")
            for k in range(16):
                a(f"v_mov_b32 v{40+k}, s{36+2*k}")
            for k in range(4):
                a(f"buffer_store_dwordx4 v[{40+4*k}:{43+4*k}], off, s[{sWS}:{sWS+3}], s72 offset:{16*k}")
    a("s_branch L_END")
```

```python
import sys
from asmlib import *
from layout import *
import role_r, role_w

NAME = "parallel_sum__memory_aug_recurrent_mem_tr__glu_gated_swiglu__prompt"
L_BC = 32000
BEST = {"pack": 1, "mlast": 1, "al8": 1, "alx": 1, "osplit": 1, "dmaL": 1, "ladder": 1, "barS": 0, "depA": [2, 2, 2, 2], "earlyE": [0, 0, 0, 0], "dep": [3, 3, 3, 3],
        "dA": [1, 18, 34, 46], "gapA": [23, 18, 28, 26], "gapE": [15, 17, 21, 19], "dE": [28, 10, 0, 0], "posL": [14, 14, 14, 14],
        "barB": 18, "barA": [2, 2, 2, 2], "posP": [1, 0, 0, 0], "vfill": 1, "dH": [7, 0, 2, 6], "idg": 1, "idn": [0, 0, 99, 99],
        "hold": [1, 1, 1, 1], "hpos": 0, "dL": [0, 0, 0, 0],
        "kvpos": [19, 23, 25, 28, 21, 31, 35], "kvoff": [1, 0, 0, 1], "e1": 0, "barpos2": 0,
        "pfq": 3, "pfk": 0, "pfw": 1, "hinit": 1, "anyplace": 1, "pfwin": 4, "fwait": 1, "earlykv": 1, "thr": [1, 23, 4], "pub0": 1, "pfc2": [20], "perm": [7, 0, 5, 6, 1, 2, 3, 4], "touch2": 1, "touch3": 2,
        "outfl": "nt", "fnext": 10, "qone": 1, "qsleep": 1, "fsleep": 0}
OLD = {"hold": [0, 0, 0, 0], "dH": [0, 0, 0, 0], "dA": [6, 18, 44, 42], "gapA": [24, 28, 32, 28], "gapE": [16, 12, 22, 20], "dE": [30, 34, 0, 2],
       "barA": [2, 2, 2, 2], "posP": [1, 1, 0, 1], "dep": [3, 3, 2, 2], "idg": 0, "idn": [99, 99, 99, 99]}

DOC = """;
"""


def entry(a, opt):
    full = not opt.get("r_only")
    a(f"""
    s_cmp_ge_u32 s2, 256
    s_cbranch_scc1 {"L_END2" if opt.get("diag") and full else "L_END"}
    """)
    if opt.get("diag"):
        a("s_memrealtime s[100:101]\ns_mov_b32 s93, 0")
    a(f"""
    s_load_dwordx4 s[60:63], s[0:1], 96
    s_load_dwordx16 s[36:51], s[0:1], 0
    s_load_dwordx8 s[52:59], s[0:1], 64
    s_getreg_b32 s{sXCC}, hwreg(HW_REG_XCC_ID)
    s_and_b32 s{sXCC}, s{sXCC}, 7
    s_lshl_b32 s{sXCC}, s{sXCC}, 2
    s_lshr_b32 s{sXCC}, {hex(sum(v << (4 * i) for i, v in enumerate(opt.get("perm", range(8)))))}, s{sXCC}
    s_and_b32 s{sXCC}, s{sXCC}, 7
    """)
    for k, (xa, xb, n) in enumerate(opt.get("fake", [])):
        a(f"s_cmp_lg_u32 s{sXCC}, {xa}\ns_cbranch_scc1 L_FK{k}\ns_cmp_ge_u32 s2, {8 * n}\ns_cbranch_scc1 L_FK{k}\ns_mov_b32 s{sXCC}, {xb}\ns_branch L_FKE\nL_FK{k}:")
    a(f"""
    {"L_FKE:" if opt.get("fake") else ""}
    v_lshrrev_b32 v1, 6, v0
    v_and_b32 v0, 63, v0
    v_readfirstlane_b32 s{sW}, v1
    v_mov_b32 v4, {L_BC}
    v_lshlrev_b32 v12, 7, v0
    s_lshr_b32 s13, s2, 3
    """)
    if opt.get("pfcode", 1):
        a(f"""
        s_cmp_lg_u32 s{sW}, 3
        s_cbranch_scc1 L_NOPF
        s_getpc_b64 s[14:15]
        """)
        a.label("L_PC")
        a(f"""
        s_and_b32 s12, s13, 15
        s_lshl_b32 s12, s12, 13
        v_add_u32 v13, s12, v12
        v_min_u32 v13, L_LAST-L_PC, v13
        global_load_dword v127, v13, s[14:15]
        """)
        a.label("L_NOPF")
    a(f"""
    s_waitcnt lgkmcnt(0)
    s_mov_b32 s{sWS}, s{P_WS}
    s_mov_b32 s{sWS+1}, s{P_WS+1}
    s_mov_b32 s{sWS+2}, {hex(WS_BYTES)}
    s_mov_b32 s{sWS+3}, 0x20000
    s_cmp_lg_u32 s{sW}, 0
    s_cbranch_scc1 L_NOTK
    s_lshl_b32 s8, s{sXCC}, 5
    s_mov_b32 s9, 1
    s_atomic_add s9, s[{P_DBG}:{P_DBG+1}], s8 glc
    """)
    a.label("L_NOTK")
    crow = lambda c: 256 * (c & 1) + 32 * (c >> 1)
    a(f"""
    s_mov_b32 s18, 0x400000
    s_mov_b32 s19, 0x20000
    s_lshr_b32 s11, s{sW}, 1
    s_lshl_b32 s11, s11, 7
    s_add_u32 s11, s11, s13
    s_lshl_b32 s11, s11, 13
    s_and_b32 s12, s{sW}, 1
    v_lshlrev_b32 v13, 4, v0
    s_cmp_lg_u32 s{sXCC}, 0
    s_cbranch_scc1 L_PWQ
    s_mov_b32 s16, s{P_WK}
    s_mov_b32 s17, s{P_WK+1}
    s_lshl_b32 s12, s12, 12
    s_add_u32 s11, s11, s12
    v_add_u32 v13, s11, v13
    """)
    for c in range(opt.get("pfw", 2)):
        a(f"s_mov_b32 s12, {crow(c) * 8192}")
        for k in range(4):
            a(f"buffer_load_dwordx4 v[124:127], v13, s[16:19], s12 offen offset:{1024 * k}")
    a("s_branch L_NOPW")
    a.label("L_PWQ")
    a(f"""
    s_cmp_ge_u32 s{sXCC}, 5
    s_cbranch_scc1 L_PWO
    s_lshl_b32 s12, s12, 10
    s_add_u32 s11, s11, s12
    s_sub_u32 s12, s{sXCC}, 1
    s_lshl_b32 s12, s12, 11
    s_add_u32 s11, s11, s12
    v_add_u32 v13, s11, v13
    """)
    for p in [P_WK] if not opt.get("nopfq") else []:
        a(f"s_mov_b32 s16, s{p}\ns_mov_b32 s17, s{p+1}")
        for c in range(8):
            a(f"s_mov_b32 s12, {crow(c) * 8192}\nbuffer_load_dwordx4 v[124:127], v13, s[16:19], s12 offen")
    a("s_branch L_NOPW")
    a.label("L_PWO")
    if opt.get("pfh"):
        a(f"""
        s_mov_b32 s16, s{P_WK}
        s_mov_b32 s17, s{P_WK+1}
        s_lshl_b32 s12, s12, 12
        s_add_u32 s11, s11, s12
        v_add_u32 v13, s11, v13
        """)
        for x, cs in enumerate(opt["pfh"]):
            a(f"s_cmp_lg_u32 s{sXCC}, {5 + x}\ns_cbranch_scc1 L_PH{x}")
            for c in cs:
                a(f"s_mov_b32 s12, {crow(c) * 8192}")
                for k in range(4):
                    a(f"buffer_load_dwordx4 v[124:127], v13, s[16:19], s12 offen offset:{1024 * k}")
            a.label(f"L_PH{x}")
        a("s_waitcnt vmcnt(0)")
    a.label("L_NOPW")
    a(f"""
    s_cmp_lg_u32 s{sW}, 0
    s_cbranch_scc1 L_RANKED
    s_waitcnt lgkmcnt(0)
    v_mov_b32 v3, s9
    ds_write_b32 v4, v3
    s_waitcnt lgkmcnt(0)
    """)
    a.label("L_RANKED")
    a(f"""
    s_barrier
    ds_read_b32 v3, v4
    s_waitcnt lgkmcnt(0)
    v_readfirstlane_b32 s{sH}, v3
    s_barrier
    """)
    if opt.get("marke"):
        role_w.mark(a, opt, 0)
        role_w.mark(a, opt, 1)
        a("s_branch L_END")
    a(f"""
    s_cmp_ge_u32 s{sH}, 32
    s_cbranch_scc1 {"L_OVER" if opt.get("anyplace") and full else "L_END"}
    """)
    a.label("L_ROLE")


def overflow(a):
    a("""
    L_OVER:
    """)
    a.lines += read_tickets("L_OVER1", 2, 3, False, ["s_cmp_ge_u32 s88, 256", "s_cbranch_scc1 L_OVER2"])
    a.label("L_OVER2")
    a(f"s_sub_u32 s88, s{sH}, 32")
    for x in range(7):
        a(f"s_max_u32 s89, s{80+x}, 32\ns_sub_u32 s89, s89, 32\ns_cmp_gt_u32 s{sXCC}, {x}\ns_cselect_b32 s89, s89, 0\ns_add_u32 s88, s88, s89")
    for y in range(8):
        a(f"""
        s_min_u32 s89, s{80+y}, 32
        s_add_u32 s{sH}, s89, s88
        s_mov_b32 s{sXCC}, {y}
        s_cmp_lt_u32 s{sH}, 32
        s_cbranch_scc1 L_ROLE
        s_sub_u32 s88, s{sH}, 32
        """)
    a("s_branch L_END")


def build(opt):
    a = Asm()
    entry(a, opt)
    a(f"s_cmp_eq_u32 s{sXCC}, 0\ns_cbranch_scc1 ROLE_R")
    if opt.get("r_only"):
        a("s_branch L_END")
    else:
        a(f"""
        s_cmp_eq_u32 s{sXCC}, 7
        s_cbranch_scc1 ROLE_H
        s_cmp_ge_u32 s{sXCC}, 5
        s_cbranch_scc1 ROLE_F
        """)
        n0 = len(a.lines)
        role_w.role_qa(a, opt)
        role_w.role_fu(a, opt)
        role_w.role_h(a, opt)
        role_w.role_f(a, opt)
        errs = check_hazards(a.lines, name="W")
        for e in errs:
            print("HAZARD", e)
        assert not errs
    if opt.get("r_only"):
        opt = dict(opt, first=0)
    elif opt.get("first"):
        role_r.role_s(a, opt)
    role_r.role_r(a, opt)
    if opt.get("anyplace") and not opt.get("r_only"):
        overflow(a)
    a.label("L_END")
    if opt.get("diag") and not opt.get("r_only"):
        a(f"""
        s_cmp_ge_u32 s2, 256
        s_cbranch_scc1 L_END2
        s_waitcnt vmcnt(0)
        s_memrealtime s[74:75]
        s_waitcnt lgkmcnt(0)
        v_mov_b32 v20, s100
        v_mov_b32 v21, s74
        v_mov_b32 v22, s94
        v_mov_b32 v23, s95
        s_lshl_b32 s72, s{sXCC}, 5
        s_add_u32 s72, s72, s{sH}
        s_lshl_b32 s72, s72, 2
        s_add_u32 s72, s72, s{sW}
        s_lshl_b32 s72, s72, 4
        s_add_u32 s72, s72, {WS_DIAG + 0x4000}
        buffer_store_dwordx4 v[20:23], off, s[{sWS}:{sWS+3}], s72
        """)
        if opt.get("probe") is not None:
            lo, hi, src = opt["probe"]
            a(f"""
            s_cmp_lt_u32 s{sXCC}, {lo}
            s_cbranch_scc1 L_END2
            s_cmp_gt_u32 s{sXCC}, {hi}
            s_cbranch_scc1 L_END2
            s_cmp_ge_u32 s{sH}, 24
            s_cbranch_scc1 L_END2
            s_and_b32 s76, s{sH}, {3 if "pcls" in opt else 0}
            s_cmp_lg_u32 s76, {opt.get("pcls", 0)}
            s_cbranch_scc1 L_END2
            s_lshr_b32 s80, s93, 4
            s_add_u32 s80, s80, s100
            s_sub_u32 s81, s95, s94
            s_add_u32 s81, s81, s100
            s_add_u32 s76, s{src}, 20000
            s_mov_b32 s77, 0
            """)
            a.label("L_PROBE")
            a(f"""
            s_memrealtime s[78:79]
            s_add_u32 s77, s77, 1
            s_waitcnt lgkmcnt(0)
            s_cmp_gt_u32 s77, 100000
            s_cbranch_scc1 L_END2
            s_sub_u32 s78, s78, s76
            s_cmp_lt_i32 s78, 0
            s_cbranch_scc1 L_PROBE
            """)
        if opt.get("dbgout"):
            a(f"""
            s_cmp_lg_u32 s{sW}, 0
            s_cbranch_scc1 L_END2
            s_load_dwordx2 s[{P_DBG}:{P_DBG+1}], s[0:1], 96
            s_waitcnt lgkmcnt(0)
            s_cmp_eq_u32 s{sXCC}, 7
            s_cbranch_scc1 L_END2
            s_sleep 127
            s_sleep 127
            s_sleep 127
            s_mov_b64 exec, 1
            v_mov_b32 v24, 0
            v_not_b32 v20, v20
            global_atomic_umax v24, v20, s[{P_DBG}:{P_DBG+1}] offset:12
            global_atomic_umax v24, v21, s[{P_DBG}:{P_DBG+1}] offset:28
            s_cmp_lg_u32 s{sXCC}, 0
            s_cbranch_scc1 L_DBG1
            v_mov_b32 v25, s98
            global_atomic_umax v24, v25, s[{P_DBG}:{P_DBG+1}] offset:16
            global_atomic_umax v24, v21, s[{P_DBG}:{P_DBG+1}] offset:20
            global_atomic_umax v24, v22, s[{P_DBG}:{P_DBG+1}] offset:44
            global_atomic_umax v24, v23, s[{P_DBG}:{P_DBG+1}] offset:48
            v_mov_b32 v25, s93
            global_atomic_umax v24, v25, s[{P_DBG}:{P_DBG+1}] offset:52
            v_mov_b32 v25, s92
            global_atomic_add v24, v25, s[{P_DBG}:{P_DBG+1}] offset:8
            s_branch L_END2
            """)
            a.label("L_DBG1")
            a(f"""
            s_cmp_ge_u32 s{sXCC}, 5
            s_cbranch_scc1 L_DBG2
            s_cmp_ge_u32 s{sH}, 24
            s_cbranch_scc1 L_END2
            global_atomic_umax v24, v22, s[{P_DBG}:{P_DBG+1}] offset:24
            global_atomic_umax v24, v23, s[{P_DBG}:{P_DBG+1}] offset:36
            global_atomic_umax v24, v21, s[{P_DBG}:{P_DBG+1}] offset:40
            s_branch L_END2
            """)
            a.label("L_DBG2")
            a(f"""
            global_atomic_umax v24, v23, s[{P_DBG}:{P_DBG+1}] offset:56
            global_atomic_umax v24, v22, s[{P_DBG}:{P_DBG+1}] offset:60
            """)
        a.label("L_END2")
    hdr = open("cdna_kernels/" + NAME + ".s.ref").read().split("; Override launch geometry")[0] if not opt.get("nohdr") else ""
    return hdr + f"""; @launch grid=(256,1,1) block=(256,1,1) lds=163840
{DOC}.amdgcn_target "amdgcn-amd-amdhsa--gfx950"
.text
.globl {NAME}_kernel
.p2align 8
.type {NAME}_kernel,@function
{NAME}_kernel:
""" + a.text() + f"""L_LAST:
    s_endpgm
.section .rodata,"a"
.p2align 6
.amdhsa_kernel {NAME}_kernel
  .amdhsa_next_free_vgpr 512
  .amdhsa_next_free_sgpr 102
  .amdhsa_accum_offset 256
  .amdhsa_group_segment_fixed_size 0
  .amdhsa_kernarg_size 112
  .amdhsa_user_sgpr_count 2
  .amdhsa_user_sgpr_kernarg_segment_ptr 1
  .amdhsa_system_sgpr_workgroup_id_x 1
.end_amdhsa_kernel
"""

if __name__ == "__main__":
    s = build(BEST)
    open("cdna_kernels/" + NAME + ".s", "w").write(s)
```
